```python
import torch

def _softmax(x, axis=-1):
    return torch.softmax(x, dim=axis)
def _gelu(x):
    return torch.nn.functional.gelu(x, approximate="tanh")
def _silu(x):
    return torch.nn.functional.silu(x)
def _sigmoid(x):
    return torch.sigmoid(x)
def _layernorm(x, axis=-1, eps=1e-5):
    m = x.mean(dim=axis, keepdim=True)
    v = x.var(dim=axis, keepdim=True, unbiased=False)
    return (x - m) / torch.sqrt(v + eps)
def _scatter_add(tgt, idx, src, axis=0):
    return tgt.clone().index_add_(axis, idx, src)
def _segment_sum(src, seg, n):
    out = torch.zeros((n,) + src.shape[1:], dtype=src.dtype)
    return out.index_add_(0, seg, src)
def _pad(x, pw):
    flat = tuple(v for pair in reversed(pw) for v in pair)
    return torch.nn.functional.pad(x, flat)

kernel_name = 'standalone__mha_block_cached__near_ridge'

def setup_inputs():

    _w = (lambda a: (lambda t: t.to(torch.bfloat16) if t.is_floating_point() else t)(torch.as_tensor(a)))
    B, Sq, D = 16, 144, 1024
    H, Sk, Dh = 32, 512, 128
    return {
        "x": _w((lambda *s: torch.randn(*s, dtype=torch.bfloat16) * 0.8)(B, Sq, D)),
        "k_cache": _w((lambda *s: torch.randn(*s, dtype=torch.bfloat16) * 0.8)(B, H, Sk, Dh)),
        "v_cache": _w((lambda *s: torch.randn(*s, dtype=torch.bfloat16) * 0.05)(B, H, Sk, Dh)),
        "wq": _w((lambda *s: torch.randn(*s, dtype=torch.bfloat16) * 0.8)(D, H * Dh) * (D ** -0.5)),
        "wo": _w((lambda *s: torch.randn(*s, dtype=torch.bfloat16) * 0.05)(H * Dh, D) * ((H * Dh) ** -0.5)),
    }

def reference(x, k_cache, v_cache, wq, wo):
    B, Sq, D = x.shape
    H, Dh = 32, 128
    q = (lambda x, *d: x.permute(*d))((x @ wq).reshape(B, Sq, H, Dh), 0, 2, 1, 3)
    scores = torch.einsum("bhqd,bhkd->bhqk", q, k_cache) * (Dh ** -0.5)
    p = _softmax(scores, axis=-1)
    o = torch.einsum("bhqk,bhkd->bhqd", p, v_cache)
    return (lambda x, *d: x.permute(*d))(o, 0, 2, 1, 3).reshape(B, Sq, H * Dh) @ wo
```

```python
import re

REG_RE = re.compile(r"\b([vsa])(\d+)\b|\b([vsa])\[(\d+):(\d+)\]|\b(vcc|exec|m0|scc)(?:_lo|_hi)?\b")
TRANS = ("v_exp_f32", "v_log_f32", "v_rcp_f32", "v_rsq_f32", "v_sqrt_f32", "v_sin_f32", "v_cos_f32")


def regs_of(tok):
    out = []
    for m in REG_RE.finditer(tok):
        if m.group(1):
            out.append(m.group(1) + m.group(2))
        elif m.group(3):
            out += [m.group(3) + str(i) for i in range(int(m.group(4)), int(m.group(5)) + 1)]
        else:
            out.append(m.group(6))
    return out


def split_ops(s):
    ops, cur, depth = [], "", 0
    for ch in s:
        if ch in "[(":
            depth += 1
        if ch in "])":
            depth -= 1
        if ch == "," and depth == 0:
            ops.append(cur.strip())
            cur = ""
        else:
            cur += ch
    if cur.strip():
        ops.append(cur.strip())
    return ops


class Inst:
    __slots__ = ("text", "mn", "ops", "defs", "uses", "cls", "srcc", "tag", "states", "wide_store")

    def __init__(self, text, tag=None):
        self.text = text
        self.tag = tag
        t = text.split(";")[0].strip()
        parts = t.split(None, 1)
        mn = parts[0]
        self.mn = mn
        ops = split_ops(parts[1]) if len(parts) > 1 else []
        self.ops = ops
        self.srcc = set()
        self.states = 1
        self.wide_store = False
        base = re.sub(r"_e(32|64)$", "", mn)
        R = [regs_of(o) for o in ops]
        flat = lambda idx: [r for i in idx for r in R[i]]
        n = len(ops)
        defs, uses = [], []
        if mn.startswith("v_mfma"):
            cls = "mfma"
            defs = R[0]
            uses = flat(range(1, n))
            self.srcc = set(R[3])
        elif mn.startswith("ds_read"):
            cls = "ldsr"
            defs = R[0]
            uses = R[1]
        elif mn.startswith("ds_write"):
            cls = "ldsw"
            uses = flat(range(n))
        elif mn.startswith(("buffer_load", "global_load")):
            if re.search(r"\blds\b", t):
                cls = "dma"
                uses = flat(range(n)) + ["m0"]
            else:
                cls = "vload"
                defs = R[0]
                uses = flat(range(1, n))
        elif mn.startswith(("buffer_store", "global_store")):
            cls = "vstore"
            uses = flat(range(n))
            self.wide_store = mn.endswith(("x3", "x4"))
        elif mn.startswith(("global_atomic", "buffer_atomic")):
            cls = "vstore"
            uses = flat(range(n))
            if mn.startswith("global_atomic") and n >= 4:
                cls = "vload"
                defs = R[0]
                uses = flat(range(1, n))
        elif mn.startswith(("buffer_inv", "buffer_wbl2")):
            cls = "vstore"
        elif mn.startswith("v_"):
            cls = "trans" if base in TRANS else "valu"
            if base.startswith("v_permlane") and "swap" in base:
                cls = "perm"
                defs = R[0] + R[1]
                uses = R[0] + R[1]
            elif base.startswith(("v_readfirstlane", "v_readlane")):
                cls = "rdlane"
                defs = R[0]
                uses = flat(range(1, n))
            else:
                defs = R[0]
                uses = flat(range(1, n))
                if base.startswith(("v_fmac", "v_pk_fmac")):
                    uses += R[0]
                if base.startswith(("v_add_co", "v_sub_co", "v_addc_co")):
                    defs = R[0] + R[1]
                    uses = flat(range(2, n))
        elif mn == "s_nop":
            cls = "nop"
            self.states = int(ops[0]) + 1
        elif mn.startswith(("s_load", "s_memtime", "s_memrealtime")):
            cls = "smem"
            defs = R[0]
            uses = flat(range(1, n))
        elif mn.startswith(("s_waitcnt", "s_barrier", "s_branch", "s_cbranch", "s_endpgm", "s_setprio", "s_sleep")):
            cls = "ctl"
        elif mn.startswith("s_cmp"):
            cls = "salu"
            uses = flat(range(n))
        elif mn.startswith("s_"):
            cls = "salu"
            defs = R[0] if n else []
            uses = flat(range(1, n))
        else:
            raise ValueError("unknown instruction: " + text)
        self.cls = cls
        self.defs = set(defs)
        self.uses = set(uses)


VALU_LIKE = ("valu", "trans", "perm", "rdlane")


def mfma_passes(i):
    return 8 if "32x32" in i.mn else 4


def need_states(p, c):
    need = 0
    pv = {r for r in p.defs if r[0] in "va" and r not in ("vcc",)}
    ps = {r for r in p.defs if r[0] == "s" or r == "vcc"}
    if p.cls in VALU_LIKE:
        if c.cls == "mfma" and pv & c.uses:
            need = max(need, 2)
        if c.cls == "perm" and pv & c.uses:
            need = max(need, 2)
        if c.cls == "rdlane" and pv & c.uses:
            need = max(need, 1)
        if p.cls == "trans" and c.cls in ("valu", "perm", "rdlane") and pv & c.uses:
            need = max(need, 1)
        if ps:
            if c.cls in VALU_LIKE and ps & c.uses:
                need = max(need, 2)
            if c.cls in ("dma", "vload", "vstore") and ps & c.uses:
                need = max(need, 5)
            if c.cls == "salu" and ps & c.uses:
                need = max(need, 1)
    if p.cls == "mfma":
        n = mfma_passes(p)
        big = {4: 8, 8: 12}[n]
        if c.cls == "mfma":
            ab = c.uses - c.srcc
            if pv & ab:
                need = max(need, big)
            if pv & c.srcc and not (c.srcc == pv and c.mn == p.mn):
                need = max(need, {4: 6, 8: 10}[n])
            if pv & c.defs and not (pv & c.srcc):
                need = max(need, big)
        elif c.cls in VALU_LIKE:
            if pv & (c.uses | c.defs):
                need = max(need, big)
            if p.srcc & c.defs:
                need = max(need, {4: 3, 8: 7}[n])
        elif c.cls in ("ldsr", "ldsw", "vload", "vstore", "dma"):
            if pv & (c.uses | c.defs):
                need = max(need, big)
    if p.cls == "salu" and "m0" in p.defs and c.cls == "dma":
        need = max(need, 1)
    if p.cls == "vstore" and p.wide_store:
        data = set(regs_of(p.ops[0] if p.mn.startswith("buffer") else p.ops[1]))
        if data & c.defs:
            need = max(need, 2)
    return need


class State:
    def __init__(self):
        self.lgkm = []
        self.vm = []
        self.hist = []

    def copy(self):
        s = State()
        s.lgkm = [set(x) for x in self.lgkm]
        s.vm = [(set(a), b) for a, b in self.vm]
        s.hist = [list(h) for h in self.hist]
        return s


class Emitter:
    HIST = 24

    def __init__(self):
        self.lines = []
        self.st = State()
        self.st.hist = [[]]
        self.auto_vm = True
        self.count = {}

    def raw(self, s):
        self.lines.append(s)

    def label(self, name):
        self.lines.append(name + ":")

    def comment(self, s):
        self.lines.append("    ; " + s)

    def _push(self, inst):
        self.lines.append("    " + inst.text)
        self.count[inst.cls] = self.count.get(inst.cls, 0) + 1
        for h in self.st.hist:
            h.append(inst)
            if len(h) > self.HIST:
                del h[0]
        if len(self.st.hist) > 1 and all(
            len(h) >= self.HIST and h == self.st.hist[0] for h in self.st.hist
        ):
            self.st.hist = [self.st.hist[0]]

    def wait(self, vm=None, lgkm=None):
        parts = []
        if vm is not None:
            vm = min(vm, 63)
            parts.append(f"vmcnt({vm})")
            if len(self.st.vm) > vm:
                self.st.vm = self.st.vm[len(self.st.vm) - vm:] if vm else []
        if lgkm is not None:
            lgkm = min(lgkm, 15)
            parts.append(f"lgkmcnt({lgkm})")
            if len(self.st.lgkm) > lgkm:
                self.st.lgkm = self.st.lgkm[len(self.st.lgkm) - lgkm:] if lgkm else []
        self._push(Inst("s_waitcnt " + " ".join(parts)))

    def vm_needed_for_tags(self, pred):
        last = -1
        for i, (_, tag) in enumerate(self.st.vm):
            if tag is not None and pred(tag):
                last = i
        if last < 0:
            return None
        return len(self.st.vm) - 1 - last

    def __call__(self, text, tag=None):
        inst = Inst(text, tag)
        touched = inst.uses | inst.defs
        lg = vm = None
        for i, regs in enumerate(self.st.lgkm):
            if regs & touched:
                lg = len(self.st.lgkm) - 1 - i
        if self.auto_vm:
            for i, (regs, _) in enumerate(self.st.vm):
                if regs & touched:
                    vm = len(self.st.vm) - 1 - i
        if lg is not None or vm is not None:
            self.wait(vm=vm, lgkm=lg)
        pad = 0
        for h in self.st.hist:
            dist = 0
            for p in reversed(h):
                n = need_states(p, inst)
                if n > dist:
                    pad = max(pad, n - dist)
                dist += p.states
                if dist >= 20:
                    break
        while pad > 0:
            k = min(pad, 16)
            self._push(Inst(f"s_nop {k - 1}"))
            pad -= k
        self._push(inst)
        if inst.cls == "ldsr":
            self.st.lgkm.append(set(inst.defs))
        elif inst.cls == "ldsw":
            self.st.lgkm.append(set())
        elif inst.cls == "smem":
            pass
        elif inst.cls == "vload":
            self.st.vm.append((set(inst.defs), tag))
        elif inst.cls in ("dma", "vstore"):
            self.st.vm.append((set(), tag))
        return inst

    def snapshot(self):
        return self.st.copy()

    def restore(self, st):
        self.st = st.copy()

    def merge(self, states):
        s = states[0].copy()
        for o in states[1:]:
            assert [sorted(x) for x in o.lgkm] == [sorted(x) for x in s.lgkm], (o.lgkm, s.lgkm)
            if self.auto_vm:
                assert len(o.vm) == len(s.vm)
            s.hist += [list(h) for h in o.hist]
        self.st = s

    def text(self):
        return "\n".join(self.lines) + "\n"


def vr(base, n=4):
    return f"v[{base}:{base + n - 1}]" if n > 1 else f"v{base}"


def sr(base, n=4):
    return f"s[{base}:{base + n - 1}]" if n > 1 else f"s{base}"


def interleave(main, fill, start=0, end=None):
    end = len(main) if end is None else end
    slots = max(end - start, 1)
    out = []
    k = 0
    for i, m in enumerate(main):
        out.append(m)
        if start <= i < end:
            want = (len(fill) * (i - start + 1) + slots - 1) // slots
            while k < want:
                out.append(fill[k])
                k += 1
    out += fill[k:]
    return out
```

```python
import sys, struct, math
from asmlib import *

NAME = "standalone__mha_block_cached__near_ridge"
OPT = dict(stamp=False, kvflag="nt", xflag="", wflag="", oflag="", ostore="", fused=False)
for a in sys.argv[2:]:
    k, v = a.split("=", 1)
    OPT[k] = {"True": True, "False": False}.get(v, v)

HEADER = """; Kernarg layout for this problem (64 bytes, ptrs only, base s[0:1]):
"""


def f32bits(x):
    return struct.unpack("<I", struct.pack("<f", x))[0]


MF = "v_mfma_f32_16x16x32_bf16"
STAMP_OFF = 64 << 20


def stamp(e, idx):
    if OPT["stamp"]:
        e(f"s_memrealtime s[{60 + 2 * idx}:{61 + 2 * idx}]")


def stamp_store(e, n, ws_lo, base_off):
    if not OPT["stamp"]:
        return
    e.wait(lgkm=0)
    e("v_mov_b32 v0, 0")
    e(f"s_lshl_b32 s58, s2, 2")
    e(f"s_add_u32 s58, s58, s24")
    e(f"s_lshl_b32 s58, s58, 6")
    e(f"s_add_u32 s58, s58, {base_off}")
    e(f"s_add_u32 s56, s{ws_lo}, s58")
    e(f"s_addc_u32 s57, s{ws_lo + 1}, 0")
    for i in range(n):
        e(f"v_mov_b32 v1, s{60 + 2 * i}")
        e(f"global_store_dword v0, v1, s[56:57] offset:{4 * i}")
    e("s_getreg_b32 s58, hwreg(HW_REG_HW_ID)")
    e("s_getreg_b32 s59, hwreg(HW_REG_XCC_ID)")
    e(f"v_mov_b32 v1, s58")
    e(f"global_store_dword v0, v1, s[56:57] offset:56")
    e(f"v_mov_b32 v1, s59")
    e(f"global_store_dword v0, v1, s[56:57] offset:60")


def producer(e):
    SX, SW, SK, SV, SO = 4, 8, 12, 16, 20
    W = 24
    kvf, xf, wf = OPT["kvflag"], OPT["xflag"], OPT["wflag"]
    XM, X8, WQ = 0, 40960, 49152
    SLOT = [0, 16384, 32768, 49152]
    QIMG = 45056
    O = lambda qt, T: 32 * qt + 4 * T
    Q = lambda qt, u: 96 + 16 * qt + 4 * u
    S = lambda kt, qt: 144 + 16 * qt + 4 * kt
    F = lambda i: 192 + 4 * (i % 8)
    NEGM = lambda qt: 224 + 4 * qt
    L = lambda qt: 236 + qt
    TMP = lambda qt: 239 + qt
    AK = lambda u: 242 + u
    AV = lambda T: 246 + T
    VKV = lambda i: 254 + (i & 1)
    PF = lambda n, i: 16 * n + 4 * i
    ACC = lambda t, i: 64 + 16 * t + 4 * i
    ACC8 = lambda t: 128 + 4 * t
    FA = lambda p, t: 136 + 36 * p + 4 * t
    FB = lambda p, i: 136 + 36 * p + 16 + 4 * i
    AA = lambda t: 208 + t
    AB = 212
    VXM = lambda i: 213 + i
    VX8 = 215
    VWQ = lambda i: 216 + i
    LANE = 218
    T0, T1, T2, T3 = 219, 220, 221, 222
    DUMMY = 224

    stamp(e, 0)
    e("s_load_dwordx4 s[28:31], s[0:1], 0")
    e("s_load_dwordx4 s[32:35], s[0:1], 16")
    e("s_load_dwordx2 s[36:37], s[0:1], 56")
    e(f"v_lshrrev_b32 v{T0}, 6, v0")
    e(f"v_and_b32 v{LANE}, 63, v0")
    e(f"v_readfirstlane_b32 s{W}, v{T0}")
    e("s_and_b32 s25, s2, 1")
    e("s_lshl_b32 s25, s25, 3")
    e("s_bfe_u32 s26, s2, 0x30003")
    e("s_add_u32 s25, s25, s26")
    e("s_bfe_u32 s26, s2, 0x20001")
    e("s_lshl_b32 s26, s26, 3")
    e("s_lshr_b32 s27, s2, 6")
    e("s_add_u32 s26, s26, s27")
    e("s_lshl_b32 s27, s25, 5")
    e("s_add_u32 s27, s27, s26")
    g4 = T0
    e(f"v_lshrrev_b32 v{g4}, 4, v{LANE}")
    e(f"v_and_b32 v{T1}, 2, v{g4}")
    e(f"v_and_b32 v{T2}, 3, v{LANE}")
    e(f"v_xor_b32 v{T1}, v{T1}, v{T2}")
    e(f"v_lshlrev_b32 v{T1}, 4, v{T1}")
    e(f"v_lshrrev_b32 v{T2}, 2, v{LANE}")
    e(f"v_lshl_add_u32 v{T1}, v{T2}, 11, v{T1}")
    e(f"s_lshl_b32 s38, s{W}, 16")
    e(f"v_add_u32 v{VXM(0)}, s38, v{T1}")
    e(f"v_add_u32 v{VXM(1)}, {32768 - 1024}, v{VXM(0)}")
    e(f"v_and_b32 v{T1}, 15, v{LANE}")
    e(f"v_lshlrev_b32 v{T2}, 1, v{g4}")
    e(f"v_xor_b32 v{T1}, v{T1}, v{T2}")
    e(f"s_and_b32 s39, s{W}, 1")
    e(f"s_lshl_b32 s40, s39, 3")
    e(f"v_xor_b32 v{T2}, s40, v{T1}")
    e(f"v_lshlrev_b32 v{T2}, 4, v{T2}")
    e(f"v_lshl_add_u32 v{T3}, v{g4}, 13, v{T2}")
    e(f"v_add_u32 v{VWQ(0)}, s38, v{T3}")
    e(f"v_add_u32 v{VWQ(1)}, {32768 - 1024}, v{VWQ(0)}")
    e(f"v_lshl_add_u32 v{T3}, v{g4}, 11, v{T2}")
    e(f"s_lshl_b32 s40, s{W}, 13")
    e(f"s_add_u32 s40, s40, {128 * 2048}")
    e(f"v_add_u32 v{VX8}, s40, v{T3}")
    e(f"v_lshlrev_b32 v{T1}, 4, v{T1}")
    e(f"v_lshl_add_u32 v{T1}, v{g4}, 8, v{T1}")
    e(f"s_lshl_b32 s41, s{W}, 12")
    e(f"v_add_u32 v{VKV(0)}, s41, v{T1}")
    e(f"v_xor_b32 v{VKV(1)}, 0x80, v{VKV(0)}")
    e(f"s_lshl_b32 s42, s{W}, 11")
    e(f"s_lshl_b32 s43, s{W}, 10")
    e.wait(lgkm=0)
    e("s_mul_i32 s44, s25, 294912")
    e(f"s_add_u32 s{SX}, s28, s44")
    e(f"s_addc_u32 s{SX + 1}, s29, 0")
    e(f"s_mov_b32 s{SX + 2}, 294912")
    e(f"s_mov_b32 s{SX + 3}, 0x20000")
    e("s_lshl_b32 s44, s26, 8")
    e(f"s_add_u32 s{SW}, s34, s44")
    e(f"s_addc_u32 s{SW + 1}, s35, 0")
    e(f"s_sub_u32 s{SW + 2}, 8388608, s44")
    e(f"s_mov_b32 s{SW + 3}, 0x20000")

    def dma_x(pair):
        out = []
        for hh in range(2):
            st = 2 * pair + hh
            out.append(f"s_add_u32 m0, s42, {XM + 8192 * (st % 5)}")
            out.append(f"s_mov_b32 s45, {st * 64}")
            out.append((f"buffer_load_dwordx4 v{VXM(0)}, {sr(SX)}, s45 offen {xf} lds", ("q", st)))
            out.append((f"buffer_load_dwordx4 v{VXM(1)}, {sr(SX)}, s45 offen offset:1024 {xf} lds", ("q", st)))
        return out

    def dma_x8(grp):
        return [f"s_add_u32 m0, s43, {X8 + 4096 * (grp % 2)}",
                f"s_mov_b32 s45, {grp * 256}",
                (f"buffer_load_dwordx4 v{VX8}, {sr(SX)}, s45 offen {xf} lds", ("q", 4 * grp))]

    def dma_wq(st):
        return [f"s_add_u32 m0, s42, {WQ + 8192 * (st % 4)}",
                f"s_mov_b32 s45, {st * 262144}",
                (f"buffer_load_dwordx4 v{VWQ(0)}, {sr(SW)}, s45 offen {wf} lds", ("q", st)),
                (f"buffer_load_dwordx4 v{VWQ(1)}, {sr(SW)}, s45 offen offset:1024 {wf} lds", ("q", st))]

    def emit(items):
        for it in items:
            if isinstance(it, tuple):
                e(it[0], it[1])
            elif callable(it):
                it()
            else:
                e(it)

    emit(dma_x(0) + dma_x8(0) + dma_wq(0) + dma_wq(1))
    e("s_lshl_b32 s44, s27, 17")
    e(f"s_add_u32 s{SK}, s30, s44")
    e(f"s_addc_u32 s{SK + 1}, s31, 0")
    e(f"s_mov_b32 s{SK + 2}, 131072")
    e(f"s_mov_b32 s{SK + 3}, 0x20000")
    e(f"s_add_u32 s{SV}, s32, s44")
    e(f"s_addc_u32 s{SV + 1}, s33, 0")
    e(f"s_mov_b32 s{SV + 2}, 131072")
    e(f"s_mov_b32 s{SV + 3}, 0x20000")
    e("s_mul_i32 s44, s27, 36864")
    e(f"s_add_u32 s{SO}, s36, s44")
    e(f"s_addc_u32 s{SO + 1}, s37, 0")
    e(f"s_mov_b32 s{SO + 2}, 36864")
    e(f"s_mov_b32 s{SO + 3}, 0x20000")
    emit(dma_x(1) + dma_wq(2) + dma_wq(3) + dma_x8(1))
    e("s_getpc_b64 s[46:47]")
    e("s_lshr_b32 s44, s2, 3")
    e("s_lshl_b32 s44, s44, 2")
    e(f"s_add_u32 s44, s44, s{W}")
    e("s_and_b32 s44, s44, 31")
    e("s_min_u32 s44, s44, CODE_KB_P")
    e("s_lshl_b32 s44, s44, 10")
    e(f"v_lshl_add_u32 v{T1}, v{LANE}, 4, s44")
    e(f"global_load_dwordx4 {vr(DUMMY)}, v{T1}, s[46:47]")
    q, g = T0, T1
    e(f"v_and_b32 v{q}, 15, v{LANE}")
    e(f"v_lshrrev_b32 v{g}, 4, v{LANE}")
    e(f"v_and_b32 v{T2}, 7, v{q}")
    e(f"v_lshlrev_b32 v{T2}, 1, v{T2}")
    e(f"v_xor_b32 v{T2}, v{T2}, v{g}")
    e(f"v_lshlrev_b32 v{T2}, 4, v{T2}")
    e(f"v_lshl_add_u32 v{AK(0)}, v{q}, 8, v{T2}")
    for u in range(1, 4):
        e(f"v_xor_b32 v{AK(u)}, {64 * u}, v{AK(0)}")
    e(f"v_lshrrev_b32 v{T2}, 2, v{q}")
    e(f"v_and_b32 v{T2}, 2, v{T2}")
    e(f"v_xor_b32 v{T2}, v{T2}, v{g}")
    e(f"v_lshlrev_b32 v{T2}, 4, v{T2}")
    e(f"v_lshl_add_u32 v{T2}, v{q}, 6, v{T2}")
    e(f"s_lshl_b32 s44, s39, 12")
    e(f"v_add_u32 v{AB}, s44, v{T2}")
    rp, cq = T2, T3
    e(f"v_bfe_u32 v{rp}, v{LANE}, 2, 2")
    e(f"v_and_b32 v{cq}, 3, v{LANE}")
    e(f"v_lshlrev_b32 v{cq}, 3, v{cq}")
    e(f"v_lshrrev_b32 v{q}, 2, v{LANE}")
    e(f"v_lshl_add_u32 v{AV(0)}, v{q}, 8, v{cq}")
    e(f"v_and_b32 v{q}, 7, v{q}")
    e(f"v_lshl_add_u32 v{AV(0)}, v{q}, 5, v{AV(0)}")
    for T in range(1, 8):
        e(f"v_xor_b32 v{AV(T)}, {32 * T}, v{AV(0)}")
    e(f"v_lshl_add_u32 v{q}, v{g}, 3, v{rp}")
    e(f"v_lshl_add_u32 v{q}, v{q}, 8, v{cq}")
    e(f"v_lshl_add_u32 v{q}, v{rp}, 5, v{q}")
    e(f"v_and_b32 v{g}, 1, v{g}")
    e(f"v_lshl_add_u32 v{q}, v{g}, 7, v{q}")
    e(f"s_lshr_b32 s44, s{W}, 1")
    e(f"s_lshl_b32 s44, s44, 7")
    e(f"s_lshl_b32 s48, s39, 6")
    e(f"s_or_b32 s48, s48, s44")
    e(f"v_xor_b32 v{q}, s48, v{q}")
    e(f"v_add_u32 v{AA(0)}, {WQ}, v{q}")
    for t in range(1, 4):
        e(f"v_xor_b32 v{AA(t)}, {32 * t}, v{AA(0)}")

    def q_reads(st):
        p = st & 1
        out = []
        for t in range(4):
            for ee in range(2):
                out.append(f"ds_read_b64_tr_b16 {vr(FA(p, t) + 2 * ee, 2)}, v{AA(t)} offset:{8192 * (st % 4) + 1024 * ee}")
        rb = [f"ds_read_b128 {vr(FB(p, i))}, v{AB} offset:{XM + 8192 * (st % 5) + 1024 * i}" for i in range(4)]
        rb.append(f"ds_read_b128 {vr(FB(p, 4))}, v{AK(st & 3)} offset:{X8 + 4096 * ((st >> 2) & 1)}")
        return interleave(out, rb)

    def q_sync(upto):
        n = e.vm_needed_for_tags(lambda t: t[0] == "q" and t[1] <= upto)
        e.wait(vm=n, lgkm=0)
        e("s_barrier")

    q_sync(1)
    stamp(e, 1)
    emit(q_reads(0))
    e.wait(lgkm=0)
    e("s_barrier")

    def kv_pf(n, i):
        srd = SK if n % 2 == 0 else SV
        so = "0" if n < 2 else "s49"
        return (f"buffer_load_dwordx4 {vr(PF(n, i))}, v{VKV(i)}, {sr(srd)}, {so} offen offset:{1024 * i} {kvf}", ("pf", n))

    e("s_mov_b32 s49, 16384")
    PFSTEP = {1: 0, 7: 1, 13: 2, 19: 3}
    WADDR = T0
    e(f"v_lshl_add_u32 v{WADDR}, v{LANE}, 4, s41")
    for st in range(32):
        p = st & 1
        m = []
        for t in range(4):
            for i in range(4):
                c = "0" if st == 0 else vr(ACC(t, i))
                m.append(f"{MF} {vr(ACC(t, i))}, {vr(FA(p, t))}, {vr(FB(p, i))}, {c}")
            if t < 2:
                c = "0" if st == 0 else vr(ACC8(t))
                m.append(f"{MF} {vr(ACC8(t))}, {vr(FA(p, t))}, {vr(FB(p, 4))}, {c}")
        d = []
        if st + 4 < 32:
            d += dma_wq(st + 4)
        if st % 2 == 0 and st + 4 < 32:
            d += dma_x(st // 2 + 2)
        if st % 4 == 3 and st // 4 + 2 < 8:
            d += dma_x8(st // 4 + 2)
        if st in PFSTEP:
            d += [kv_pf(PFSTEP[st], i) for i in range(4)]
        if st < 31:
            fill = interleave(q_reads(st + 1), d)
            emit(interleave(m, fill, 0, 14))
            q_sync(st + 2)
        else:
            fill = [f"ds_write_b128 v{WADDR}, {vr(PF(n, i))} offset:{SLOT[n] + 1024 * i}" for n in range(2) for i in range(4)]
            emit(interleave(m, fill, 0, 16))
    stamp(e, 2)
    e(f"s_mov_b32 s50, {f32bits(math.log2(math.e) / math.sqrt(128.0)):#x}")
    q, g = T1, T2
    e(f"v_and_b32 v{q}, 15, v{LANE}")
    e(f"v_lshrrev_b32 v{g}, 4, v{LANE}")
    e(f"v_lshlrev_b32 v{g}, 3, v{g}")
    e(f"v_lshl_add_u32 v{g}, v{q}, 8, v{g}")
    e(f"v_and_b32 v{q}, 7, v{q}")
    e(f"v_lshl_add_u32 v{g}, v{q}, 5, v{g}")
    e(f"v_xor_b32 v{g}, s48, v{g}")
    e(f"v_add_u32 v{AA(0)}, {QIMG}, v{g}")
    e(f"s_lshl_b32 s44, s39, 14")
    for t in range(1, 4):
        e(f"v_xor_b32 v{AA(t)}, {32 * t}, v{AA(0)}")
    for t in range(2):
        a = ACC8(t)
        for r in range(4):
            e(f"v_mul_f32 v{a + r}, s50, v{a + r}")
        e(f"v_cvt_pk_bf16_f32 v{a}, v{a}, v{a + 1}")
        e(f"v_cvt_pk_bf16_f32 v{a + 1}, v{a + 2}, v{a + 3}")
        e(f"ds_write_b64 v{AA(t)}, {vr(a, 2)} offset:32768")
    for t in range(4):
        e(f"v_add_u32 v{AA(t)}, s44, v{AA(t)}")
    for t in range(4):
        for i in range(4):
            a = ACC(t, i)
            for r in range(4):
                e(f"v_mul_f32 v{a + r}, s50, v{a + r}")
            e(f"v_cvt_pk_bf16_f32 v{a}, v{a}, v{a + 1}")
            e(f"v_cvt_pk_bf16_f32 v{a + 1}, v{a + 2}, v{a + 3}")
            e(f"ds_write_b64 v{AA(t)}, {vr(a, 2)} offset:{4096 * i}")
    e(f"s_lshl_b32 s44, s{W}, 13")
    e(f"s_add_u32 s44, s44, {QIMG}")
    QA = lambda u: 136 + u
    QA8 = lambda u: 140 + u
    QA = lambda u: 192 + u
    QA8 = lambda u: 196 + u
    for u in range(4):
        e(f"v_add_u32 v{QA(u)}, s44, v{AK(u)}")
        e(f"v_add_u32 v{QA8(u)}, {QIMG + 32768}, v{AK(u)}")
    e.wait(lgkm=0)
    e("s_barrier")
    for u in range(4):
        e(f"ds_read_b128 {vr(Q(0, u))}, v{QA(u)}")
        e(f"ds_read_b128 {vr(Q(1, u))}, v{QA(u)} offset:4096")
        e(f"ds_read_b128 {vr(Q(2, u))}, v{QA8(u)}")
    for qt in range(3):
        for r in range(4):
            e(f"v_mov_b32 v{NEGM(qt) + r}, 0")
        e(f"v_mov_b32 v{L(qt)}, 0")
    e.wait(vm=0, lgkm=0)
    e("s_barrier")
    for n in range(2, 4):
        for i in range(4):
            e(f"ds_write_b128 v{WADDR}, {vr(PF(n, i))} offset:{SLOT[n] + 1024 * i}")
    stamp(e, 3)

    e.auto_vm = False
    THR = 10.0
    e(f"s_mov_b32 s50, {f32bits(THR):#x}")
    e("s_mov_b32 s51, 0xff800000")
    e("s_mov_b32 s52, 0xff800000")
    e("s_mov_b32 s53, 0")
    e("s_mov_b32 s54, 32768")
    D = 6

    def k_read(par, f):
        kt, u = f // 4, f % 4
        return [f"ds_read_b128 {vr(F(f))}, v{AK(u)} offset:{SLOT[2 * par] + 4096 * kt}"]

    def v_read(par, f):
        s, T = f // 8, f % 8
        return [f"ds_read_b64_tr_b16 {vr(F(f) + 2 * ee, 2)}, v{AV(T)} offset:{SLOT[2 * par + 1] + 4096 * (2 * s + ee)}" for ee in range(2)]

    def refill(slot, srd, bump):
        out = [lambda: e.wait(vm=8, lgkm=0), "s_barrier", f"s_add_u32 m0, s41, {slot}"]
        out += [f"buffer_load_dwordx4 v{VKV(i)}, {sr(srd)}, s54 offen offset:{1024 * i} {kvf} lds" for i in range(4)]
        if bump:
            out.append("s_add_u32 s54, s54, 16384")
        return out

    slow_paths = []

    def slow_path(name, qts, floor, st):
        e.restore(st)
        e.label(name)
        for qt in qts:
            t, x = TMP(qt), F(0) if False else None
        for qt in qts:
            t = TMP(qt)
            c = NEGM(qt) + 1
            e(f"v_mov_b32 v{c}, v{t}")
            e(f"v_permlane32_swap_b32 v{c}, v{t}")
            e(f"v_max_f32 v{t}, v{t}, v{c}")
            e(f"v_mov_b32 v{c}, v{t}")
            e(f"v_permlane16_swap_b32 v{c}, v{t}")
            e(f"v_max_f32 v{t}, v{t}, v{c}")
            e(f"v_max_f32 v{t}, s{floor}, v{t}")
            e(f"v_sub_f32 v{NEGM(qt)}, v{NEGM(qt)}, v{t}")
            for r in range(1, 4):
                e(f"v_mov_b32 v{NEGM(qt) + r}, v{NEGM(qt)}")
            for kt in range(4):
                for r in range(4):
                    e(f"v_sub_f32 v{S(kt, qt) + r}, v{S(kt, qt) + r}, v{t}")
        e(f"s_cmp_eq_u32 s{floor}, 0")
        e(f"s_cbranch_scc1 {name}_resc")
        st1 = e.snapshot()
        for qt in qts:
            for T in range(8):
                for r in range(0, 4, 2):
                    e(f"v_mov_b64 {vr(O(qt, T) + r, 2)}, 0")
        e(f"s_mov_b32 s{floor}, 0")
        e("s_nop 1")
        e(f"s_branch {name}_ret")
        e.restore(st1)
        e.label(name + "_resc")
        for qt in qts:
            t = TMP(qt)
            e(f"v_exp_f32 v{t}, -v{t}")
            e(f"v_mul_f32 v{L(qt)}, v{L(qt)}, v{t}")
            for T in range(8):
                for r in range(4):
                    e(f"v_mul_f32 v{O(qt, T) + r}, v{O(qt, T) + r}, v{t}")
        e("s_nop 1")
        e(f"s_branch {name}_ret")

    def tile_code(par, nq, name):
        qts = list(range(nq))
        items = []
        pend_max = []
        for f in range(16):
            kt, u = f // 4, f % 4
            m = []
            for qt in qts:
                c = vr(NEGM(qt)) if u == 0 else vr(S(kt, qt))
                m.append(f"{MF} {vr(S(kt, qt))}, {vr(F(f))}, {vr(Q(qt, u))}, {c}")
            fill = []
            nf = f + D
            if nf < 16:
                fill += k_read(par, nf)
            else:
                if nf == 16:
                    fill += refill(SLOT[2 * par], SK, False)
                fill += v_read(par, nf - 16)
            if u >= 2 and kt >= 1:
                k0 = kt - 1
                for qt in qts:
                    s = S(k0, qt)
                    if u == 2:
                        if k0 == 0:
                            fill.append(f"v_max_f32 v{TMP(qt)}, v{s}, v{s + 1}")
                        else:
                            fill.append(f"v_max3_f32 v{TMP(qt)}, v{s}, v{s + 1}, v{TMP(qt)}")
                    else:
                        fill.append(f"v_max3_f32 v{TMP(qt)}, v{s + 2}, v{s + 3}, v{TMP(qt)}")
            items += interleave(m, fill)
        emit(items)
        for qt in qts:
            s = S(3, qt)
            e(f"v_max3_f32 v{TMP(qt)}, v{s}, v{s + 1}, v{TMP(qt)}")
            e(f"v_max3_f32 v{TMP(qt)}, v{s + 2}, v{s + 3}, v{TMP(qt)}")
        for grp, floor in (([0, 1], 51), ([2], 52)):
            if grp[0] >= nq:
                continue
            nm = f"{name}_sl{grp[0]}"
            e(f"v_cmp_lt_f32 vcc, s50, v{TMP(grp[0])}")
            if len(grp) > 1:
                e(f"v_cmp_lt_f32 s[56:57], s50, v{TMP(grp[1])}")
                e("s_or_b64 vcc, vcc, s[56:57]")
            e(f"s_or_b32 s55, vcc_lo, s{floor}".replace("vcc_lo", "vcc_lo"))
            e("s_or_b32 s55, s55, vcc_hi")
            e(f"s_cbranch_scc1 {nm}")
            slow_paths.append((nm, grp, floor, e.snapshot()))
            e.label(nm + "_ret")

        def softmax(s):
            out = []
            for qt in qts:
                a, b = S(2 * s, qt), S(2 * s + 1, qt)
                regs = [a, a + 1, a + 2, a + 3, b, b + 1, b + 2, b + 3]
                ex = [f"v_exp_f32 v{r}, v{r}" for r in regs]
                ad = [f"v_add_f32 v{L(qt)}, v{L(qt)}, v{r}" for r in regs]
                cv = [f"v_cvt_pk_bf16_f32 v{a + k}, v{regs[2 * k]}, v{regs[2 * k + 1]}" for k in range(4)]
                out += [ex[0], ex[1], ex[2], ad[0], ex[3], ad[1], cv[0], ex[4], ad[2], ex[5], ad[3], cv[1],
                        ex[6], ad[4], ex[7], ad[5], cv[2], ad[6], ad[7], cv[3]]
            return out

        emit(softmax(0))
        sm1 = softmax(1)
        per = (len(sm1) + 7) // 8
        items = []
        for f in range(16):
            s, T = f // 8, f % 8
            m = [f"{MF} {vr(O(qt, T))}, {vr(F(f))}, {vr(S(2 * s, qt))}, {vr(O(qt, T))}" for qt in qts]
            fill = []
            nf = f + D
            if nf < 16:
                fill += v_read(par, nf)
            else:
                if nf == 16:
                    fill += refill(SLOT[2 * par + 1], SV, True)
                fill += k_read(par ^ 1, nf - 16)
            if s == 0:
                fill += sm1[per * T: per * (T + 1)]
            items += interleave(m, fill)
        emit(items)

    for f in range(D):
        emit(k_read(0, f))
    e.wait(lgkm=D)
    entry = e.snapshot()
    exits = []
    mark = len(e.lines)
    cnt0 = dict(e.count)
    for rounds in range(2):
        del e.lines[mark:]
        e.count = dict(cnt0)
        slow_paths.clear()
        e.merge([entry] + exits)
        e.label("P_loop")
        exits = []
        for par in range(2):
            e("s_and_b32 s55, s53, 3")
            e(f"s_cmp_eq_u32 s55, s{W}")
            e(f"s_cbranch_scc1 P_t{par}_v3")
            st = e.snapshot()
            tile_code(par, 2, f"P_t{par}_v2")
            e(f"s_branch P_t{par}_join")
            a = e.snapshot()
            e.restore(st)
            e.label(f"P_t{par}_v3")
            tile_code(par, 3, f"P_t{par}_v3")
            b = e.snapshot()
            e.merge([a, b])
            e.label(f"P_t{par}_join")
            e("s_add_u32 s53, s53, 1")
        e("s_cmp_lt_u32 s53, 8")
        e("s_cbranch_scc1 P_loop")
        exits = [e.snapshot()]
    stamp(e, 4)
    e.wait(vm=0, lgkm=0)
    e.auto_vm = True
    e("s_barrier")
    LN = S(0, 0)
    X0, X1, X2, X3 = LN + 1, LN + 2, LN + 3, LN + 4
    e(f"v_mbcnt_lo_u32_b32 v{LN}, -1, 0")
    e(f"v_mbcnt_hi_u32_b32 v{LN}, -1, v{LN}")
    for qt in range(3):
        l = L(qt)
        e(f"v_mov_b32 v{X0}, v{l}")
        e(f"v_permlane32_swap_b32 v{X0}, v{l}")
        e(f"v_add_f32 v{l}, v{l}, v{X0}")
        e(f"v_mov_b32 v{X0}, v{l}")
        e(f"v_permlane16_swap_b32 v{X0}, v{l}")
        e(f"v_add_f32 v{l}, v{l}, v{X0}")
    e(f"s_lshl_b32 s44, s{W}, 13")
    e(f"v_lshl_add_u32 v{X1}, v{LN}, 4, s44")
    for T in range(8):
        e(f"ds_write_b128 v{X1}, {vr(O(2, T))} offset:{1024 * T}")
    e(f"s_lshl_b32 s44, s{W}, 9")
    e(f"v_lshl_add_u32 v{X2}, v{LN}, 3, s44")
    e(f"v_mov_b32 v{NEGM(2) + 1}, v{L(2)}")
    e(f"ds_write_b64 v{X2}, {vr(NEGM(2), 2)} offset:32768")
    e(f"v_lshlrev_b32 v{X3}, 4, v{LN}")
    e(f"v_add_u32 v{X0}, s42, v{X3}")
    osf = OPT["ostore"]
    for qt in range(2):
        e(f"v_rcp_f32 v{L(qt)}, v{L(qt)}")
    for qt in range(2):
        for u in range(4):
            a = O(qt, 2 * u)
            for r in range(8):
                e(f"v_mul_f32 v{a + r}, v{a + r}, v{L(qt)}")
            for k in range(4):
                e(f"v_cvt_pk_bf16_f32 v{a + k}, v{a + 2 * k}, v{a + 2 * k + 1}")
            e(f"s_mov_b32 s45, {u * 9216}")
            e(f"buffer_store_dwordx4 {vr(a)}, v{X0}, {sr(SO)}, s45 offen offset:{1024 * qt} {osf}")
    e.wait(lgkm=0)
    e("s_barrier")
    e(f"v_add_u32 v{X1}, s42, v{X3}")
    e(f"v_lshlrev_b32 v{X2}, 3, v{LN}")
    ST = lambda i: 96 + 2 * i
    PO = lambda i, k: 104 + 8 * i + 4 * k
    for i in range(4):
        e(f"ds_read_b64 {vr(ST(i), 2)}, v{X2} offset:{32768 + 512 * i}")
    for i in range(4):
        for k in range(2):
            e(f"ds_read_b128 {vr(PO(i, k))}, v{X1} offset:{8192 * i + 1024 * k}")
    mn = 136
    e(f"v_min_f32 v{mn}, v{ST(0)}, v{ST(1)}")
    e(f"v_min3_f32 v{mn}, v{ST(2)}, v{ST(3)}, v{mn}")
    for i in range(4):
        e(f"v_sub_f32 v{ST(i)}, v{mn}, v{ST(i)}")
    for i in range(4):
        e(f"v_exp_f32 v{ST(i)}, v{ST(i)}")
    e(f"v_mul_f32 v{mn}, v{ST(0)}, v{ST(0) + 1}")
    for i in range(1, 4):
        e(f"v_fma_f32 v{mn}, v{ST(i)}, v{ST(i) + 1}, v{mn}")
    e(f"v_rcp_f32 v{mn}, v{mn}")
    for i in range(4):
        e(f"v_mul_f32 v{ST(i)}, v{ST(i)}, v{mn}")
    a = PO(0, 0)
    for r in range(8):
        e(f"v_mul_f32 v{a + r}, v{a + r}, v{ST(0)}")
    for i in range(1, 4):
        for r in range(8):
            e(f"v_fma_f32 v{a + r}, v{PO(i, 0) + r}, v{ST(i)}, v{a + r}")
    for k in range(4):
        e(f"v_cvt_pk_bf16_f32 v{a + k}, v{a + 2 * k}, v{a + 2 * k + 1}")
    e(f"s_mul_i32 s45, s{W}, 9216")
    e(f"s_add_u32 s45, s45, 8192")
    e(f"buffer_store_dwordx4 {vr(a)}, v{X3}, {sr(SO)}, s45 offen {osf}")
    if OPT["stamp"]:
        e.wait(vm=0)
    stamp(e, 5)
    stamp_store(e, 6, 36, STAMP_OFF)
    e("s_endpgm")
    for sp in list(slow_paths):
        slow_path(*sp)


def consumer(e, idreg="s2"):
    SO, SW, SD = 4, 8, 12
    W = 24
    of, wf = OPT["oflag"], OPT["wflag"]
    ACC = lambda mt, t: 16 * mt + 4 * t
    FB = lambda p, mt: 144 + 36 * p + 4 * mt
    FA = lambda p, t: 216 + 16 * p + 4 * t
    AA = lambda t: 248 + t
    VB, VA, LANE, T0 = 252, 253, 254, 255
    stamp(e, 0)
    e("s_load_dwordx4 s[28:31], s[0:1], 32")
    e("s_load_dwordx2 s[36:37], s[0:1], 56")
    e(f"v_lshrrev_b32 v{T0}, 6, v0")
    e(f"v_and_b32 v{LANE}, 63, v0")
    e(f"v_readfirstlane_b32 s{W}, v{T0}")
    e(f"s_bfe_u32 s25, {idreg}, 0x20001")
    e("s_lshl_b32 s25, s25, 2")
    e(f"s_bfe_u32 s26, {idreg}, 0x20003")
    e("s_add_u32 s25, s25, s26")
    e(f"s_and_b32 s26, {idreg}, 1")
    e("s_lshl_b32 s26, s26, 3")
    e(f"s_bfe_u32 s27, {idreg}, 0x30005")
    e("s_add_u32 s26, s26, s27")
    e(f"s_mul_i32 s38, s{W}, 9216")
    e(f"v_lshl_add_u32 v{VB}, v{LANE}, 4, s38")
    e(f"v_lshrrev_b32 v{T0}, 4, v{LANE}")
    e(f"v_lshlrev_b32 v{T0}, 1, v{T0}")
    e(f"v_and_b32 v{VA}, 7, v{LANE}")
    e(f"v_xor_b32 v{VA}, v{VA}, v{T0}")
    e(f"v_lshlrev_b32 v{VA}, 4, v{VA}")
    e(f"v_lshrrev_b32 v{T0}, 3, v{LANE}")
    e(f"v_lshl_add_u32 v{VA}, v{T0}, 11, v{VA}")
    e(f"s_lshl_b32 s38, s{W}, 16")
    e(f"v_add_u32 v{VA}, s38, v{VA}")
    e(f"s_lshl_b32 s41, s{W}, 14")
    e(f"v_lshrrev_b32 v{T0}, 2, v{LANE}")
    e(f"v_and_b32 v{AA(1)}, 3, v{LANE}")
    e(f"v_lshlrev_b32 v{AA(1)}, 3, v{AA(1)}")
    e(f"v_lshl_add_u32 v{AA(0)}, v{T0}, 7, v{AA(1)}")
    e(f"v_bfe_u32 v{T0}, v{LANE}, 3, 2")
    e(f"v_xor_b32 v{T0}, s{W}, v{T0}")
    e(f"v_lshl_add_u32 v{AA(0)}, v{T0}, 5, v{AA(0)}")
    e(f"v_add_u32 v{AA(0)}, s41, v{AA(0)}")
    for t in range(1, 4):
        e(f"v_xor_b32 v{AA(t)}, {32 * t}, v{AA(0)}")
    e.wait(lgkm=0)
    e(f"s_mul_i32 s44, s25, {32 * 36864}")
    e(f"s_add_u32 s{SO}, s36, s44")
    e(f"s_addc_u32 s{SO + 1}, s37, 0")
    e(f"s_mov_b32 s{SO + 2}, {32 * 36864}")
    e(f"s_mov_b32 s{SO + 3}, 0x20000")
    e("s_lshl_b32 s44, s26, 7")
    e(f"s_add_u32 s{SW}, s28, s44")
    e(f"s_addc_u32 s{SW + 1}, s29, 0")
    e(f"s_sub_u32 s{SW + 2}, 8388608, s44")
    e(f"s_mov_b32 s{SW + 3}, 0x20000")
    e("s_mul_i32 s45, s25, 294912")
    e("s_add_u32 s44, s44, s45")
    e(f"s_add_u32 s{SD}, s30, s44")
    e(f"s_addc_u32 s{SD + 1}, s31, 0")
    e(f"s_sub_u32 s{SD + 2}, {16 * 294912}, s44")
    e(f"s_mov_b32 s{SD + 3}, 0x20000")
    e.auto_vm = False

    def dma_a(slot):
        out = [f"s_add_u32 m0, s41, {4096 * slot}", "s_lshl_b32 s48, s46, 18"]
        for i in range(4):
            if i:
                out.append(f"s_add_u32 s48, s48, {16384 - 1024}")
            out.append(f"buffer_load_dwordx4 v{VA}, {sr(SW)}, s48 offen offset:{1024 * i} {wf} lds")
        out.append("s_add_u32 s46, s46, 1")
        return out

    def b_prep():
        return ["s_mul_i32 s49, s47, 36864", "s_add_u32 s50, s49, 4096", "s_add_u32 s51, s49, 8192", "s_add_u32 s47, s47, 1"]

    def b_load(p, mt):
        return f"buffer_load_dwordx4 {vr(FB(p, mt))}, v{VB}, {sr(SO)}, s{49 + mt // 4} offen offset:{1024 * (mt % 4)} {of}"

    def a_reads(p, slot):
        return [f"ds_read_b64_tr_b16 {vr(FA(p, t) + 2 * ee, 2)}, v{AA(t)} offset:{4096 * slot + 2048 * ee}"
                for t in range(4) for ee in range(2)]

    def emit(items):
        for it in items:
            if callable(it):
                it()
            else:
                e(it)

    e("s_mov_b32 s46, 0")
    e("s_mov_b32 s47, 0")
    emit(dma_a(0) + dma_a(1) + dma_a(2) + b_prep() + [b_load(0, mt) for mt in range(9)])
    emit(dma_a(3) + b_prep() + [b_load(1, mt) for mt in range(9)])
    for mt in range(9):
        for t in range(4):
            for r in range(0, 4, 2):
                e(f"v_mov_b64 {vr(ACC(mt, t) + r, 2)}, 0")
    e.wait(vm=30)
    stamp(e, 1)
    emit(a_reads(0, 0))
    e("s_mov_b32 s52, 8")
    entry = e.snapshot()
    exits = []
    mark = len(e.lines)
    cnt0 = dict(e.count)
    for rounds in range(2):
        del e.lines[mark:]
        e.count = dict(cnt0)
        e.merge([entry] + exits)
        e.label("C_loop")
        for st in range(4):
            p = st & 1
            e.wait(lgkm=0)
            emit(dma_a(st) + b_prep())
            rd = a_reads(p ^ 1, (st + 1) % 4)
            for mt in range(9):
                e.wait(vm=25)
                m = [f"{MF} {vr(ACC(mt, t))}, {vr(FA(p, t))}, {vr(FB(p, mt))}, {vr(ACC(mt, t))}" for t in range(4)]
                fill = rd[2 * mt: 2 * mt + 2] if mt < 4 else []
                emit(interleave(m, fill))
                e(b_load(p, mt))
        e("s_sub_u32 s52, s52, 1")
        e("s_cmp_lg_u32 s52, 0")
        e("s_cbranch_scc1 C_loop")
        exits = [e.snapshot()]
    stamp(e, 2)
    e.wait(vm=0, lgkm=0)
    e.auto_vm = True
    e("s_barrier")
    WA, RA = VB, VA
    e(f"s_mul_i32 s44, s{W}, 18432")
    e(f"v_lshl_add_u32 v{WA}, v{LANE}, 4, s44")
    e(f"s_xor_b32 s45, s{W}, 2")
    e(f"s_mul_i32 s44, s45, 18432")
    e(f"v_lshl_add_u32 v{RA}, v{LANE}, 4, s44")
    for mt in range(9):
        for k in range(2):
            e(f"ds_write_b128 v{WA}, {vr(ACC(mt, 2 + k))} offset:{1024 * (2 * mt + k)}")
    e.wait(lgkm=0)
    e("s_barrier")
    for mt in range(9):
        for k in range(2):
            e(f"ds_read_b128 {vr(ACC(mt, 2 + k))}, v{RA} offset:{1024 * (2 * mt + k)}")
    for mt in range(9):
        for k in (1, 0):
            for r in range(4):
                e(f"v_add_f32 v{ACC(mt, k) + r}, v{ACC(mt, k) + r}, v{ACC(mt, 2 + k) + r}")
    e.wait(lgkm=0)
    for mt in range(9):
        e(f"ds_write_b128 v{RA}, {vr(ACC(mt, 1))} offset:{1024 * mt}")
    e(f"s_xor_b32 s45, s{W}, 3")
    e(f"s_mul_i32 s44, s45, 18432")
    e(f"v_lshl_add_u32 v{WA}, v{LANE}, 4, s44")
    e.wait(lgkm=0)
    e("s_barrier")
    for mt in range(9):
        e(f"ds_read_b128 {vr(ACC(mt, 1))}, v{WA} offset:{1024 * mt}")
    IMG = lambda mt: 9216 + 2048 * mt if mt < 4 else (27648 + 2048 * (mt - 4) if mt < 8 else 46080)
    X0, X1 = AA(0), AA(1)
    e(f"v_lshrrev_b32 v{X0}, 5, v{LANE}")
    e(f"s_lshl_b32 s44, s{W}, 1")
    e(f"v_add_u32 v{X0}, s44, v{X0}")
    e(f"v_and_b32 v{X1}, 7, v{LANE}")
    e(f"v_xor_b32 v{X0}, v{X0}, v{X1}")
    e(f"v_lshlrev_b32 v{X0}, 4, v{X0}")
    e(f"v_bfe_u32 v{X1}, v{LANE}, 4, 1")
    e(f"v_lshl_add_u32 v{X0}, v{X1}, 3, v{X0}")
    e(f"v_and_b32 v{X1}, 15, v{LANE}")
    e(f"v_lshl_add_u32 v{X0}, v{X1}, 7, v{X0}")
    for mt in range(9):
        a = ACC(mt, 0)
        for r in range(4):
            e(f"v_add_f32 v{a + r}, v{a + r}, v{ACC(mt, 1) + r}")
        e(f"v_cvt_pk_bf16_f32 v{a}, v{a}, v{a + 1}")
        e(f"v_cvt_pk_bf16_f32 v{a + 1}, v{a + 2}, v{a + 3}")
        e(f"ds_write_b64 v{X0}, {vr(a, 2)} offset:{IMG(mt)}")
    X2, X3 = AA(2), AA(3)
    e(f"v_lshrrev_b32 v{X1}, 3, v{LANE}")
    e(f"v_and_b32 v{X2}, 7, v{LANE}")
    e(f"v_xor_b32 v{X2}, v{X2}, v{X1}")
    e(f"v_lshlrev_b32 v{X2}, 4, v{X2}")
    e(f"v_lshl_add_u32 v{X2}, v{X1}, 11, v{X2}")
    e(f"s_lshr_b32 s44, s{W}, 1")
    e(f"s_mul_i32 s44, s44, 18432")
    e(f"s_and_b32 s45, s{W}, 1")
    e(f"s_lshl_b32 s45, s45, 12")
    e(f"s_add_u32 s44, s44, s45")
    e(f"v_lshl_add_u32 v{X3}, v{LANE}, 4, s44")
    e(f"s_lshl_b32 s45, s{W}, 10")
    e(f"v_lshl_add_u32 v{X1}, v{LANE}, 4, s45")
    e.wait(lgkm=0)
    e("s_barrier")
    for i in range(4):
        e(f"ds_read_b128 {vr(4 * i)}, v{X3} offset:{9216 + 1024 * i}")
    e(f"ds_read_b128 {vr(16)}, v{X1} offset:{IMG(8)}")
    e(f"s_lshl_b32 s44, s{W}, 16")
    for i in range(4):
        e(f"buffer_store_dwordx4 {vr(4 * i)}, v{X2}, {sr(SD)}, s44 offen")
        e(f"s_add_u32 s44, s44, 16384")
    e(f"s_cmp_ge_u32 s{W}, 2")
    e("s_cbranch_scc1 C_done")
    e(f"s_lshl_b32 s44, s{W}, 14")
    e(f"s_add_u32 s44, s44, {128 * 2048}")
    e(f"buffer_store_dwordx4 {vr(16)}, v{X2}, {sr(SD)}, s44 offen")
    e.label("C_done")
    if OPT["stamp"]:
        e.wait(vm=0, lgkm=0)
    stamp(e, 3)
    stamp_store(e, 4, 36, STAMP_OFF + (1 << 20))
    e("s_endpgm")


def kd(name):
    return f""".section .rodata,"a"
.p2align 6
.amdhsa_kernel {name}
  .amdhsa_next_free_vgpr 256
  .amdhsa_next_free_sgpr 96
  .amdhsa_accum_offset 256
  .amdhsa_group_segment_fixed_size 0
  .amdhsa_kernarg_size 64
  .amdhsa_user_sgpr_count 2
  .amdhsa_user_sgpr_kernarg_segment_ptr 1
  .amdhsa_system_sgpr_workgroup_id_x 1
.end_amdhsa_kernel
"""


def main():
    out = HEADER
    out += "; @launch kernel=att_kernel grid=(512,1,1) block=(256,1,1) lds=81920\n"
    out += "; @launch kernel=oproj_kernel grid=(256,1,1) block=(256,1,1) lds=81920\n"
    out += '.amdgcn_target "amdgcn-amd-amdhsa--gfx950"\n.text\n'
    e = Emitter()
    e.raw(".globl att_kernel\n.p2align 8\n.type att_kernel,@function\natt_kernel:")
    e("s_cmp_ge_u32 s2, 512")
    e("s_cbranch_scc1 P_exit")
    producer(e)
    e.label("P_exit")
    e("s_endpgm")
    e.label("P_end")
    e.raw(".set CODE_KB_P, (P_end - att_kernel) / 1024 - 1")
    sys.stderr.write("producer counts: %s\n" % e.count)
    out += e.text()
    e = Emitter()
    e.raw(".globl oproj_kernel\n.p2align 8\n.type oproj_kernel,@function\noproj_kernel:")
    e("s_cmp_ge_u32 s2, 256")
    e("s_cbranch_scc1 C_exit")
    consumer(e)
    e.label("C_exit")
    e("s_endpgm")
    sys.stderr.write("consumer counts: %s\n" % e.count)
    out += e.text()
    out += kd("att_kernel") + kd("oproj_kernel")
    open(sys.argv[1], "w").write(out)


main()
```

```python
import re

REG_RE = re.compile(r"\b([vsa])(\d+)\b|\b([vsa])\[(\d+):(\d+)\]|\b(vcc|exec|m0|scc)(?:_lo|_hi)?\b")
TRANS = ("v_exp_f32", "v_log_f32", "v_rcp_f32", "v_rsq_f32", "v_sqrt_f32", "v_sin_f32", "v_cos_f32")


def regs_of(tok):
    out = []
    for m in REG_RE.finditer(tok):
        if m.group(1):
            out.append(m.group(1) + m.group(2))
        elif m.group(3):
            out += [m.group(3) + str(i) for i in range(int(m.group(4)), int(m.group(5)) + 1)]
        else:
            out.append(m.group(6))
    return out


def split_ops(s):
    ops, cur, depth = [], "", 0
    for ch in s:
        if ch in "[(":
            depth += 1
        if ch in "])":
            depth -= 1
        if ch == "," and depth == 0:
            ops.append(cur.strip())
            cur = ""
        else:
            cur += ch
    if cur.strip():
        ops.append(cur.strip())
    return ops


class Inst:
    __slots__ = ("text", "mn", "ops", "defs", "uses", "cls", "srcc", "tag", "states", "wide_store")

    def __init__(self, text, tag=None):
        self.text = text
        self.tag = tag
        t = text.split(";")[0].strip()
        parts = t.split(None, 1)
        mn = parts[0]
        self.mn = mn
        ops = split_ops(parts[1]) if len(parts) > 1 else []
        self.ops = ops
        self.srcc = set()
        self.states = 1
        self.wide_store = False
        base = re.sub(r"_e(32|64)$", "", mn)
        R = [regs_of(o) for o in ops]
        flat = lambda idx: [r for i in idx for r in R[i]]
        n = len(ops)
        defs, uses = [], []
        if mn.startswith("v_mfma"):
            cls = "mfma"
            defs = R[0]
            uses = flat(range(1, n))
            self.srcc = set(R[3])
        elif mn.startswith("ds_read"):
            cls = "ldsr"
            defs = R[0]
            uses = R[1]
        elif mn.startswith("ds_write"):
            cls = "ldsw"
            uses = flat(range(n))
        elif mn.startswith(("buffer_load", "global_load")):
            if re.search(r"\blds\b", t) or "load_lds" in mn:
                cls = "dma"
                uses = flat(range(n)) + ["m0"]
            else:
                cls = "vload"
                defs = R[0]
                uses = flat(range(1, n))
        elif mn.startswith(("buffer_store", "global_store")):
            cls = "vstore"
            uses = flat(range(n))
            self.wide_store = mn.endswith(("x3", "x4"))
        elif mn.startswith(("global_atomic", "buffer_atomic")):
            cls = "vstore"
            uses = flat(range(n))
            if mn.startswith("global_atomic") and n >= 4:
                cls = "vload"
                defs = R[0]
                uses = flat(range(1, n))
        elif mn.startswith(("buffer_inv", "buffer_wbl2")):
            cls = "vstore"
        elif mn.startswith("v_"):
            cls = "trans" if base in TRANS else "valu"
            if base.startswith("v_permlane") and "swap" in base:
                cls = "perm"
                defs = R[0] + R[1]
                uses = R[0] + R[1]
            elif base.startswith(("v_readfirstlane", "v_readlane")):
                cls = "rdlane"
                defs = R[0]
                uses = flat(range(1, n))
            else:
                defs = R[0]
                uses = flat(range(1, n))
                if base.startswith(("v_fmac", "v_pk_fmac")):
                    uses += R[0]
                if base.startswith(("v_add_co", "v_sub_co", "v_addc_co")):
                    defs = R[0] + R[1]
                    uses = flat(range(2, n))
        elif mn == "s_nop":
            cls = "nop"
            self.states = int(ops[0]) + 1
        elif mn.startswith(("s_load", "s_memtime", "s_memrealtime")):
            cls = "smem"
            defs = R[0]
            uses = flat(range(1, n))
        elif mn.startswith(("s_waitcnt", "s_barrier", "s_branch", "s_cbranch", "s_endpgm", "s_setprio", "s_sleep")):
            cls = "ctl"
        elif mn.startswith("s_cmp"):
            cls = "salu"
            uses = flat(range(n))
        elif mn.startswith("s_"):
            cls = "salu"
            defs = R[0] if n else []
            uses = flat(range(1, n))
        else:
            raise ValueError("unknown instruction: " + text)
        self.cls = cls
        self.defs = set(defs)
        self.uses = set(uses)


VALU_LIKE = ("valu", "trans", "perm", "rdlane")


def mfma_passes(i):
    return 8 if "32x32" in i.mn else 4


def need_states(p, c):
    need = 0
    pv = {r for r in p.defs if r[0] in "va" and r not in ("vcc",)}
    ps = {r for r in p.defs if r[0] == "s" or r == "vcc"}
    if p.cls in VALU_LIKE:
        if c.cls == "mfma" and pv & c.uses:
            need = max(need, 2)
        if c.cls == "perm" and pv & c.uses:
            need = max(need, 2)
        if c.cls == "rdlane" and pv & c.uses:
            need = max(need, 1)
        if p.cls == "trans" and c.cls in ("valu", "perm", "rdlane") and pv & c.uses:
            need = max(need, 1)
        if ps:
            if c.cls in VALU_LIKE and ps & c.uses:
                need = max(need, 2)
            if c.cls in ("dma", "vload", "vstore") and ps & c.uses:
                need = max(need, 5)
            if c.cls == "salu" and ps & c.uses:
                need = max(need, 1)
    if p.cls == "mfma":
        n = mfma_passes(p)
        big = {4: 8, 8: 12}[n]
        if c.cls == "mfma":
            ab = c.uses - c.srcc
            if pv & ab:
                need = max(need, big)
            if pv & c.srcc and not (c.srcc == pv and c.mn == p.mn):
                need = max(need, {4: 6, 8: 10}[n])
            if pv & c.defs and not (pv & c.srcc):
                need = max(need, big)
        elif c.cls in VALU_LIKE:
            if pv & (c.uses | c.defs):
                need = max(need, big)
            if p.srcc & c.defs:
                need = max(need, {4: 3, 8: 7}[n])
        elif c.cls in ("ldsr", "ldsw", "vload", "vstore", "dma"):
            if pv & (c.uses | c.defs):
                need = max(need, big)
    if p.cls == "salu" and "m0" in p.defs and c.cls == "dma":
        need = max(need, 1)
    if p.cls == "vstore" and p.wide_store:
        data = set(regs_of(p.ops[0] if p.mn.startswith("buffer") else p.ops[1]))
        if data & c.defs:
            need = max(need, 2)
    return need


class State:
    def __init__(self):
        self.lgkm = []
        self.vm = []
        self.hist = []

    def copy(self):
        s = State()
        s.lgkm = [set(x) for x in self.lgkm]
        s.vm = [(set(a), b) for a, b in self.vm]
        s.hist = [list(h) for h in self.hist]
        return s


class Emitter:
    HIST = 24

    def __init__(self):
        self.lines = []
        self.st = State()
        self.st.hist = [[]]
        self.auto_vm = True
        self.count = {}

    def raw(self, s):
        self.lines.append(s)

    def label(self, name):
        self.lines.append(name + ":")

    def comment(self, s):
        self.lines.append("    ; " + s)

    def _push(self, inst):
        self.lines.append("    " + inst.text)
        self.count[inst.cls] = self.count.get(inst.cls, 0) + 1
        for h in self.st.hist:
            h.append(inst)
            if len(h) > self.HIST:
                del h[0]
        if len(self.st.hist) > 1 and all(
            len(h) >= self.HIST and h == self.st.hist[0] for h in self.st.hist
        ):
            self.st.hist = [self.st.hist[0]]

    def wait(self, vm=None, lgkm=None):
        parts = []
        if vm is not None:
            vm = min(vm, 63)
            parts.append(f"vmcnt({vm})")
            if len(self.st.vm) > vm:
                self.st.vm = self.st.vm[len(self.st.vm) - vm:] if vm else []
        if lgkm is not None:
            lgkm = min(lgkm, 15)
            parts.append(f"lgkmcnt({lgkm})")
            if len(self.st.lgkm) > lgkm:
                self.st.lgkm = self.st.lgkm[len(self.st.lgkm) - lgkm:] if lgkm else []
        self._push(Inst("s_waitcnt " + " ".join(parts)))

    def vm_needed_for_tags(self, pred):
        last = -1
        for i, (_, tag) in enumerate(self.st.vm):
            if tag is not None and pred(tag):
                last = i
        if last < 0:
            return None
        return len(self.st.vm) - 1 - last

    def __call__(self, text, tag=None):
        inst = Inst(text, tag)
        touched = inst.uses | inst.defs
        if inst.cls == "vload":
            touched = touched | {"w:" + r for r in inst.defs}
        lg = vm = None
        for i, regs in enumerate(self.st.lgkm):
            if regs & touched:
                lg = len(self.st.lgkm) - 1 - i
        if self.auto_vm:
            for i, (regs, _) in enumerate(self.st.vm):
                if regs & touched:
                    vm = len(self.st.vm) - 1 - i
        if lg is not None or vm is not None:
            self.wait(vm=vm, lgkm=lg)
        pad = 0
        for h in self.st.hist:
            dist = 0
            for p in reversed(h):
                n = need_states(p, inst)
                if n > dist:
                    pad = max(pad, n - dist)
                dist += p.states
                if dist >= 20:
                    break
        while pad > 0:
            k = min(pad, 16)
            self._push(Inst(f"s_nop {k - 1}"))
            pad -= k
        self._push(inst)
        if inst.cls == "ldsr":
            self.st.lgkm.append(set(inst.defs))
        elif inst.cls == "ldsw":
            self.st.lgkm.append({"w:" + r for o in inst.ops[1:] for r in regs_of(o)})
        elif inst.cls == "smem":
            pass
        elif inst.cls == "vload":
            self.st.vm.append((set(inst.defs), tag))
        elif inst.cls in ("dma", "vstore"):
            self.st.vm.append((set(), tag))
        return inst

    def snapshot(self):
        return self.st.copy()

    def restore(self, st):
        self.st = st.copy()

    def merge(self, states):
        s = states[0].copy()
        for o in states[1:]:
            assert [sorted(x) for x in o.lgkm] == [sorted(x) for x in s.lgkm], (o.lgkm, s.lgkm)
            if self.auto_vm:
                assert len(o.vm) == len(s.vm)
            s.hist += [list(h) for h in o.hist]
        self.st = s

    def text(self):
        return "\n".join(self.lines) + "\n"


def vr(base, n=4):
    return f"v[{base}:{base + n - 1}]" if n > 1 else f"v{base}"


def sr(base, n=4):
    return f"s[{base}:{base + n - 1}]" if n > 1 else f"s{base}"


def interleave(main, fill, start=0, end=None):
    end = len(main) if end is None else end
    slots = max(end - start, 1)
    out = []
    k = 0
    for i, m in enumerate(main):
        out.append(m)
        if start <= i < end:
            want = (len(fill) * (i - start + 1) + slots - 1) // slots
            while k < want:
                out.append(fill[k])
                k += 1
    out += fill[k:]
    return out


def cost_of(it):
    t = it[0] if isinstance(it, tuple) else it
    if callable(t):
        return 0
    mn = t.split()[0]
    if mn.startswith(TRANS):
        return 8
    if mn.startswith(("v_", "ds_", "buffer_", "global_")):
        return 4
    return 0


def kind_of(it):
    t = it[0] if isinstance(it, tuple) else it
    if callable(t):
        return "s"
    mn = t.split()[0]
    if mn.startswith("v_"):
        return "v"
    if mn.startswith(("ds_", "buffer_", "global_")):
        return "d"
    return "s"


def weave(mf, valu, ds, sal=(), lo=0, hi=None, at=None):
    n = len(mf)
    hi = n if hi is None else hi
    g = hi - lo
    at = at or {}
    dsg = [[] for _ in range(n)]
    for k, it in enumerate(ds):
        dsg[lo + (k * g) // len(ds)].append(it)
    sg = [[] for _ in range(n)]
    for k, it in enumerate(sal):
        sg[lo + (k * g) // len(sal)].append(it)
    total = sum(cost_of(x) for x in valu) + sum(cost_of(x) for x in ds) + sum(cost_of(x) for v in at.values() for x in v)
    vg = [[] for _ in range(n)]
    k = 0
    acc = 0
    for i in range(lo, hi):
        acc += sum(cost_of(x) for x in dsg[i]) + sum(cost_of(x) for x in at.get(i, []))
        target = total * (i - lo + 1) / g
        while k < len(valu) and (acc + cost_of(valu[k]) / 2 <= target or i == hi - 1):
            vg[i].append(valu[k])
            acc += cost_of(valu[k])
            k += 1
    out = []
    for i in range(n):
        out.append(mf[i])
        out += at.get(i, []) + sg[i] + dsg[i] + vg[i]
    return out
```

```python
import sys, struct, math
from asmlib import *

OPT = dict(stamp=False, kvflag="nt", xflag="", wflag="", oflag="", ostore="sc0 sc1",
           lead="4", qlead="4", prewarm=True, pf0="3", pfd="6", pfstag="0,1,3,4", npf="4", abl_noload=False, abl_not8=False, gap="2")
for a in sys.argv[2:]:
    k, v = a.split("=", 1)
    assert k in OPT, k
    OPT[k] = {"True": True, "False": False}.get(v, v)

HEADER = """; Kernarg layout for this problem (64 bytes, ptrs only, base s[0:1]):
"""


def f32bits(x):
    return struct.unpack("<I", struct.pack("<f", x))[0]


MF = "v_mfma_f32_16x16x32_bf16"
STAMP_OFF = 64 << 20
SPIN_MAX = 1 << 18


def stamp(e, idx):
    if OPT["stamp"]:
        e(f"s_memrealtime s[{60 + 2 * idx}:{61 + 2 * idx}]")
        e(f"s_memtime s[{76 + 2 * idx}:{77 + 2 * idx}]")
        if idx == 0:
            e("s_mov_b32 s92, 0")
        if idx == 2:
            e("s_mov_b32 s93, s92")
            e("s_mov_b32 s92, 0")


def stamp_store(e, n, ws_lo, base_off, rec):
    if not OPT["stamp"]:
        return
    e.wait(lgkm=0)
    e("v_mov_b32 v0, 0")
    for r in rec:
        e(r)
    e(f"s_lshl_b32 s58, s58, 6")
    e(f"s_add_u32 s58, s58, {base_off}")
    e(f"s_add_u32 s56, s{ws_lo}, s58")
    e(f"s_addc_u32 s57, s{ws_lo + 1}, 0")
    for i in range(n):
        e(f"v_mov_b32 v1, s{60 + 2 * i}")
        e(f"global_store_dword v0, v1, s[56:57] offset:{4 * i}")
    for i in range(n):
        e(f"v_mov_b32 v1, s{76 + 2 * i}")
        e(f"global_store_dword v0, v1, s[56:57] offset:{32 + 4 * i}")
    e(f"v_mov_b32 v1, s93")
    e(f"global_store_dword v0, v1, s[56:57] offset:24")
    e(f"v_mov_b32 v1, s92")
    e(f"global_store_dword v0, v1, s[56:57] offset:28")


def mk_emit(e):
    def emit(items):
        for it in items:
            if isinstance(it, tuple):
                e(it[0], it[1])
            elif callable(it):
                it()
            else:
                e(it)
    return emit


XR = 98304
WQREG = lambda st: 16384 * [(0, 1), (3, 2), (4, 5)][((st >> 1) - 13) % 3][st & 1]
KS, VS = 0, 49152
QIA, QIB = 89856, 126720
MRG = 98304
FLG = 163584
F_FULL, F_FREE, F_GB, F_GB1 = 0, 16, 32, 48
W = 24
MF16 = "v_mfma_f32_16x16x16_bf16"
THR = 10.0


def blocking_poll4(e, name, addr, off, tmp, need):
    e(f"s_mov_b32 s59, {SPIN_MAX}")
    e.label(name)
    e(f"ds_read_b32 v{tmp}, v{addr} offset:{off}")
    e.wait(lgkm=0)
    e(f"v_cmp_lt_u32 s[56:57], v{tmp}, {need}")
    e("s_cmp_eq_u64 s[56:57], 0")
    e(f"s_cbranch_scc1 {name}_ok")
    e("s_sleep 1")
    e("s_sub_u32 s59, s59, 1")
    e("s_cmp_lg_u32 s59, 0")
    e(f"s_cbranch_scc1 {name}")
    e.label(name + "_ok")
    if OPT["stamp"]:
        e(f"s_sub_u32 s59, {SPIN_MAX + 1}, s59")
        e("s_add_u32 s92, s92, s59")
        e("s_add_u32 s92, s92, 0x10000")


def kv_addr_setup(e, LANE, AK, AV, T, xor_sgpr, add_k, add_v):
    T0, T1, T2, T3 = T
    q, g = T0, T1
    e(f"v_and_b32 v{q}, 15, v{LANE}")
    e(f"v_lshrrev_b32 v{g}, 4, v{LANE}")
    e(f"v_and_b32 v{T2}, 7, v{q}")
    e(f"v_lshlrev_b32 v{T2}, 1, v{T2}")
    e(f"v_xor_b32 v{T2}, v{T2}, v{g}")
    e(f"v_lshlrev_b32 v{T2}, 4, v{T2}")
    e(f"v_lshl_add_u32 v{AK(0)}, v{q}, 8, v{T2}")
    if add_k is not None:
        e(f"v_add_u32 v{AK(0)}, {add_k}, v{AK(0)}")
    for u in range(1, 4):
        e(f"v_xor_b32 v{AK(u)}, {64 * u}, v{AK(0)}")
    e(f"v_and_b32 v{T3}, 3, v{LANE}")
    e(f"v_lshlrev_b32 v{T3}, 3, v{T3}")
    e(f"v_lshrrev_b32 v{T2}, 2, v{LANE}")
    e(f"v_lshl_add_u32 v{AV(0)}, v{T2}, 8, v{T3}")
    e(f"v_and_b32 v{T2}, 7, v{T2}")
    e(f"v_lshl_add_u32 v{AV(0)}, v{T2}, 5, v{AV(0)}")
    if xor_sgpr is not None:
        e(f"v_xor_b32 v{AV(0)}, {xor_sgpr}, v{AV(0)}")
    e(f"v_add_u32 v{AV(0)}, {add_v}, v{AV(0)}")
    for Tt in range(1, 8):
        e(f"v_xor_b32 v{AV(Tt)}, {32 * Tt}, v{AV(0)}")


def lane_reduce(e, op, x, t):
    e(f"v_mov_b32 v{t}, v{x}")
    e(f"v_permlane32_swap_b32 v{t}, v{x}")
    e(f"{op} v{x}, v{x}, v{t}")
    e(f"v_mov_b32 v{t}, v{x}")
    e(f"v_permlane16_swap_b32 v{t}, v{x}")
    e(f"{op} v{x}, v{x}, v{t}")


def o_srd(e, SO):
    e("s_mul_i32 s44, s27, 36864")
    e(f"s_add_u32 s{SO}, s36, s44")
    e(f"s_addc_u32 s{SO + 1}, s37, 0")
    e(f"s_mov_b32 s{SO + 2}, {2 * 36864}")
    e(f"s_mov_b32 s{SO + 3}, 0x20000")


def joined(e, states):
    st = states[0].copy()
    for s in states[1:]:
        st.hist += [list(h) for h in s.hist]
    return st


def compute_group(e):
    emit = mk_emit(e)
    SO = 20
    O = lambda qt, T: 32 * qt + 4 * T
    Q = lambda qt, u: 64 + 16 * qt + 4 * u
    S = lambda par, kt, qt: 96 + 32 * par + 16 * qt + 4 * kt
    F = lambda i: 160 + 4 * (i % 16)
    NEGM = lambda qt: 224 + 4 * qt
    L = lambda qt: 232 + qt
    TMP = lambda qt: 234 + qt
    FD = 237
    AK = lambda u: 238 + u
    AV = lambda T: 242 + T
    FA_, FQ, PL = 250, 251, 252
    ACC = lambda t, qt: 16 * qt + 4 * t
    FA = lambda p, t: 144 + 16 * p + 4 * t
    NB = 8
    FB = lambda k: 176 + 4 * (k % NB)
    AA = lambda t: 208 + t
    AH = lambda t: 212 + t
    AB, LANE = 216, 217
    T0, T1, T2, T3 = 218, 219, 220, 221
    late = []

    e("s_setprio 3")
    e(f"v_and_b32 v{LANE}, 63, v0")
    e(f"v_mov_b32 v{T0}, 0")
    e(f"v_lshlrev_b32 v{T1}, 2, v{LANE}")
    e(f"v_add_u32 v{T1}, {FLG}, v{T1}")
    e(f"ds_write_b32 v{T1}, v{T0}")
    e(f"s_lshl_b32 s44, s{W}, 2")
    e(f"s_add_u32 s44, s44, {FLG}")
    e(f"v_mov_b32 v{FA_}, s44")
    e(f"v_and_b32 v{FQ}, 0xfffffe0c, v{T1}")
    e(f"v_or_b32 v{FQ}, {FLG & 0x1f0}, v{FQ}")
    e.wait(lgkm=0)
    e("s_barrier")
    o_srd(e, SO)
    kv_addr_setup(e, LANE, AK, AV, (T0, T1, T2, T3), None, None, VS)
    q, g, cq = T0, T1, T3
    e(f"v_lshrrev_b32 v{T2}, 2, v{q}")
    e(f"v_and_b32 v{T2}, 2, v{T2}")
    e(f"v_xor_b32 v{T2}, v{T2}, v{g}")
    e(f"v_lshlrev_b32 v{T2}, 4, v{T2}")
    e(f"v_lshl_add_u32 v{T2}, v{q}, 6, v{T2}")
    e(f"v_add_u32 v{AB}, {XR}, v{T2}")
    rp = T2
    e(f"v_bfe_u32 v{rp}, v{LANE}, 2, 2")
    e(f"v_lshl_add_u32 v{q}, v{g}, 3, v{rp}")
    e(f"v_lshl_add_u32 v{q}, v{q}, 8, v{cq}")
    e(f"v_lshl_add_u32 v{q}, v{rp}, 5, v{q}")
    e(f"v_and_b32 v{g}, 1, v{g}")
    e(f"v_lshl_add_u32 v{q}, v{g}, 7, v{q}")
    e(f"s_and_b32 s48, s{W}, 1")
    e(f"s_lshl_b32 s48, s48, 7")
    e(f"v_xor_b32 v{q}, s48, v{q}")
    e(f"s_lshr_b32 s49, s{W}, 1")
    e(f"s_lshl_b32 s44, s49, 13")
    e(f"v_add_u32 v{AA(0)}, s44, v{q}")
    for t in range(1, 4):
        e(f"v_xor_b32 v{AA(t)}, {32 * t}, v{AA(0)}")
    for t in range(4):
        e(f"v_add_u32 v{AH(t)}, 49152, v{AA(t)}")

    def a_reads(st):
        p, base = st & 1, WQREG(st)
        out = []
        for t in range(4):
            for ee in range(2):
                if base < 65536:
                    out.append(f"ds_read_b64_tr_b16 {vr(FA(p, t) + 2 * ee, 2)}, v{AA(t)} offset:{base + 1024 * ee}")
                else:
                    out.append(f"ds_read_b64_tr_b16 {vr(FA(p, t) + 2 * ee, 2)}, v{AH(t)} offset:{base - 49152 + 1024 * ee}")
        return out

    def b_read(k):
        st, qt = k // 9, k % 9
        return f"ds_read_b128 {vr(FB(k))}, v{AB} offset:{18432 * ((st >> 1) % 3) + 9216 * (st & 1) + 1024 * qt}"

    def check_items(nm, need, sink, off=F_FULL, pre=None):
        def br():
            e("s_cmp_eq_u64 s[56:57], 0")
            e(f"s_cbranch_scc0 {nm}")
            snap = e.snapshot()
            e.label(nm + "_ret")

            def slow():
                e.restore(snap)
                e.label(nm)
                if pre:
                    e(pre)
                blocking_poll4(e, nm + "_p", FQ, off, PL, need)
                e(f"s_branch {nm}_ret")
            sink.append(slow)
        return [f"ds_read_b32 v{PL}, v{FQ} offset:{off}", f"v_cmp_lt_u32 s[56:57], v{PL}, {need}", br]

    DB = 6
    blocking_poll4(e, "G0_first", FQ, F_FULL, PL, 1)
    stamp(e, 1)
    emit(a_reads(0) + [b_read(k) for k in range(DB)])
    e(f"s_mov_b32 s50, {f32bits(math.log2(math.e) / math.sqrt(128.0)):#x}")
    QW = 222
    e(f"v_and_b32 v{T1}, 15, v{LANE}")
    e(f"v_lshlrev_b32 v{QW}, 4, v{T1}")
    e(f"v_lshrrev_b32 v{T1}, 5, v{LANE}")
    e(f"v_lshl_add_u32 v{QW}, v{T1}, 8, v{QW}")
    e(f"v_bfe_u32 v{T1}, v{LANE}, 4, 1")
    e(f"v_lshl_add_u32 v{QW}, v{T1}, 3, v{QW}")
    e(f"s_mul_i32 s44, s49, {QIB - QIA}")
    e(f"s_lshl_b32 s45, s48, 4")
    e(f"s_add_u32 s44, s44, s45")
    e(f"s_add_u32 s44, s44, {QIA}")
    e(f"v_add_u32 v{QW}, s44, v{QW}")

    def qconv(qt):
        out = []
        for t in range(4):
            a = ACC(t, qt)
            out += [f"v_mul_f32 v{a + r}, s50, v{a + r}" for r in range(4)]
            out += [f"v_cvt_pk_bf16_f32 v{a}, v{a}, v{a + 1}", f"v_cvt_pk_bf16_f32 v{a + 1}, v{a + 2}, v{a + 3}"]
        return out

    conv = []
    for st in range(32):
        p = st & 1
        ar = a_reads(st + 1) if st < 31 else []
        chk = check_items(f"G0_qs{st + 1}", st + 2, late) if st < 31 else check_items("G0_qfree", 32, late, F_FREE)
        for qt in range(9):
            k = 9 * st + qt
            m = []
            for t in range(4):
                c = "0" if st == 0 else vr(ACC(t, qt))
                m.append(f"{MF} {vr(ACC(t, qt))}, {vr(FA(p, t))}, {vr(FB(k))}, {c}")
            fill = []
            nk = k + DB
            c0 = 0 if st < 31 else 5
            if qt == c0:
                fill.append(chk[0])
            if qt == c0 + 3:
                fill.append(chk[2])
            if nk < 288:
                fill.append(b_read(nk))
            if qt == 1 and st & 1:
                fill.append(f"v_mov_b32 v{FD}, {st + 1}")
            if qt == 2 and st & 1:
                fill.append(f"ds_write_b32 v{FA_}, v{FD} offset:{F_FREE}")
            if qt == c0 + 2:
                fill.append(chk[1])
            if 3 <= qt < 7:
                fill += ar[2 * (qt - 3): 2 * (qt - 3) + 2]
            if st == 31 and qt >= 2:
                conv += qconv(qt - 2)
                fill += conv[:10]
                del conv[:10]
            emit(weave(m, [x for x in fill if kind_of(x) == "v"], [x for x in fill if kind_of(x) == "d"],
                       at={0: [x for x in fill if kind_of(x) == "s"]}))
    stamp(e, 2)
    conv += qconv(7) + qconv(8)
    done = 9 - (len(conv) + 23) // 24
    wr = lambda qt: [f"ds_write_b64 v{QW}, {vr(ACC(t, qt), 2)} offset:{4096 * qt + 512 * t}" for t in range(4)]
    for qt in range(done):
        emit(wr(qt))
    for qt in range(done, 9):
        n = len(conv) - 24 * (8 - qt)
        emit(conv[:n])
        del conv[:n]
        emit(wr(qt))
    e(f"v_mov_b32 v{FD}, 1")
    e(f"ds_write_b32 v{FA_}, v{FD} offset:{F_GB}")
    blocking_poll4(e, "G0_gb0", FQ, F_GB, PL, 1)

    def load_q(img):
        e(f"s_lshl_b32 s44, s{W}, 13")
        e(f"s_add_u32 s44, s44, {img}")
        e(f"v_mbcnt_lo_u32_b32 v{PL}, -1, 0")
        e(f"v_mbcnt_hi_u32_b32 v{PL}, -1, v{PL}")
        e(f"v_lshl_add_u32 v{PL}, v{PL}, 4, s44")
        for qt in range(2):
            for u in range(4):
                e(f"ds_read_b128 {vr(Q(qt, u))}, v{PL} offset:{4096 * qt + 1024 * u}")
        for qt in range(2):
            for r in range(4):
                e(f"v_mov_b32 v{NEGM(qt) + r}, 0")
        e.wait(lgkm=0)

    load_q(QIA)
    e(f"s_mov_b32 s50, {f32bits(THR):#x}")
    blocking_poll4(e, "G0_k0", FQ, F_FULL, PL, 34)
    stamp(e, 3)

    def k_read(sl, kt, u, f):
        return [f"ds_read_b128 {vr(F(f))}, v{AK(u)} offset:{KS + 16384 * sl + 4096 * kt}"]

    def v_read(sl, s, T, f):
        return [f"ds_read_b64_tr_b16 {vr(F(f) + 2 * ee, 2)}, v{AV(T)} offset:{16384 * sl + 4096 * (2 * s + ee)}" for ee in range(2)]

    def qk(par, kt, u, f):
        return [f"{MF} {vr(S(par, kt, qt))}, {vr(F(f))}, {vr(Q(qt, u))}, {vr(NEGM(qt)) if u == 0 else vr(S(par, kt, qt))}"
                for qt in range(2)]

    def maxes(par, kts):
        out = []
        for kt in kts:
            for h in range(2):
                for qt in range(2):
                    s = S(par, kt, qt) + 2 * h
                    if kt == 0 and h == 0:
                        out.append(f"v_max_f32 v{TMP(qt)}, v{s}, v{s + 1}")
                    else:
                        out.append(f"v_max3_f32 v{TMP(qt)}, v{s}, v{s + 1}, v{TMP(qt)}")
        return out

    def softmax(par, s):
        out = []
        for qt in range(2):
            a, b = S(par, 2 * s, qt), S(par, 2 * s + 1, qt)
            regs = [a, a + 1, a + 2, a + 3, b, b + 1, b + 2, b + 3]
            ex = [f"v_exp_f32 v{r}, v{r}" for r in regs]
            ad = [f"v_add_f32 v{L(qt)}, v{L(qt)}, v{r}" for r in regs]
            cv = [f"v_cvt_pk_bf16_f32 v{a + k}, v{regs[2 * k]}, v{regs[2 * k + 1]}" for k in range(4)]
            out += [ex[0], ex[1], ex[2], ad[0], ex[3], ad[1], cv[0], ex[4], ad[2], ex[5], ad[3], cv[1],
                    ex[6], ad[4], ex[7], ad[5], cv[2], ad[6], ad[7], cv[3]]
        return out

    def group_wait(f):
        def w():
            regs = set(f"v{r}" for i in range(4) for r in range(F(f + i), F(f + i) + 4))
            lg = None
            for i, rs in enumerate(e.st.lgkm):
                if rs & regs:
                    lg = len(e.st.lgkm) - 1 - i
            if lg is not None:
                e.wait(lgkm=lg)
        return w

    for f in range(16):
        emit(k_read(0, f // 4, f % 4, f))
    e(f"v_mov_b32 v{FD}, 33")
    e(f"ds_write_b32 v{FA_}, v{FD} offset:{F_FREE}")
    for f in range(16):
        if f % 4 == 0:
            group_wait(f)()
        emit(qk(0, f // 4, f % 4, f))
        if f >= 8:
            emit(k_read(1, (f - 8) // 4, f % 4, f - 8))
    emit(maxes(0, range(4)))
    first_states = [e.snapshot()]
    e("s_call_b64 s[38:39], G0_first_path")
    e("s_mov_b32 s53, 0")
    e("s_mov_b32 s42, 35")
    e("s_mov_b32 s43, 36")
    e.wait(lgkm=4)
    entry = e.snapshot()
    loop_late = []
    slow_states = {0: [], 1: []}
    epi_states = []

    def iteration(v):
        name = f"G0_v{v}"
        cur, nxt = v & 1, (v & 1) ^ 1
        ks, vs, ks2 = (v + 1) % 3, v % 3, (v + 2) % 3
        sm0, sm1 = softmax(cur, 0), softmax(cur, 1)
        rel = f"ds_write_b32 v{FA_}, v{FD} offset:{F_FREE}"
        chv = check_items(name + "_xv", "s42", loop_late, pre=rel)
        chk = check_items(name + "_xk", "s43", loop_late, pre=rel)
        tail = maxes(nxt, range(4)) + [f"v_max_f32 v{TMP(2)}, v{TMP(0)}, v{TMP(1)}", f"v_cmp_lt_f32 vcc, s50, v{TMP(2)}"]
        sal = ["s_add_u32 s42, s42, 2", "s_add_u32 s43, s43, 2", "s_add_u32 s53, s53, 1"]
        inc = f"v_add_u32 v{FD}, 1, v{FD}"
        rel = f"ds_write_b32 v{FA_}, v{FD} offset:{F_FREE}"
        sm = sm0 + sm1
        c1, c2 = 31, 56
        valu = [sm[:c1] + [inc, chv[1]], sm[c1:c2], sm[c2:] + [inc, chk[1]], tail]
        for seg in range(4):
            m, rd = [], []
            for i in range(8):
                f = 8 * seg + i
                if seg < 2:
                    m += qk(nxt, 2 * seg + i // 4, i % 4, f)
                else:
                    m += [f"{MF} {vr(O(qt, i))}, {vr(F(f))}, {vr(S(cur, 2 * (seg - 2), qt))}, {vr(O(qt, i))}" for qt in range(2)]
                if seg == 0:
                    rd += k_read(ks, 2 + i // 4, i % 4, f + 8)
                elif seg < 3:
                    rd += v_read(vs, seg - 1, i, f + 8)
                else:
                    rd += k_read(ks2, i // 4, i % 4, f + 8)
            at = {7: [group_wait(8 * seg + 4)], 15: [group_wait(8 * seg + 8)]}
            if seg in (0, 2):
                at[6] = [(chv if seg == 0 else chk)[0]]
                emit(weave(m, valu[seg], rd, at=at))
            elif seg == 1:
                at[0] = [chv[2], rel]
                emit(weave(m, valu[seg], rd, at=at))
            else:
                at[0] = [chk[2], rel]
                emit(weave(m, valu[seg], rd, sal, lo=1, hi=14, at=at))
        if v in (1, 3):
            e(f"s_cmp_eq_u32 s53, {8 if v == 1 else 16}")
            e(f"s_cbranch_scc1 {name}_end")
            snap = e.snapshot()

            def headend(v=v, snap=snap, name=name):
                e.restore(snap)
                e.label(name + "_end")
                epi_states.append(e.snapshot())
                e("s_call_b64 s[38:39], G0_epi")
                if v == 1:
                    stamp(e, 4)
                    first_states.append(e.snapshot())
                    e("s_call_b64 s[38:39], G0_first_path")
                    e(f"s_branch {name}_ret")
                else:
                    e("s_branch G0_done")
            loop_late.append(headend)
        e(f"s_cbranch_vccnz {name}_g")
        snap = e.snapshot()
        slow_states[nxt].append(snap)
        e.label(name + "_ret")

        def tramp(name=name, snap=snap, nxt=nxt):
            e.restore(snap)
            e.label(name + "_g")
            e(f"s_call_b64 s[38:39], G0_slow{nxt}")
            e(f"s_branch {name}_ret")
        loop_late.append(tramp)
        if v == 0:
            e("s_cmp_eq_u32 s53, 7")
            e(f"s_cbranch_scc1 {name}_q")
            snap2 = e.snapshot()
            e.label(name + "_qret")

            def newq(name=name, snap2=snap2):
                e.restore(snap2)
                e.label(name + "_q")
                load_q(QIB)
                e("s_nop 1")
                e(f"s_branch {name}_qret")
            loop_late.append(newq)

    exits = []
    mark = len(e.lines)
    cnt0 = dict(e.count)
    for rounds in range(2):
        del e.lines[mark:]
        e.count = dict(cnt0)
        loop_late.clear()
        slow_states[0].clear()
        slow_states[1].clear()
        e.merge([entry] + exits)
        e.label("G0_loop")
        for v in range(6):
            iteration(v)
        e("s_branch G0_loop")
        exits = [e.snapshot()]
    e.label("G0_done")
    if OPT["stamp"]:
        e.wait(vm=0)
    stamp(e, 5)
    stamp_store(e, 6, 36, STAMP_OFF, ["s_lshl_b32 s58, s2, 2", f"s_add_u32 s58, s58, s{W}"])
    e("s_endpgm")
    for f in late + list(loop_late):
        f()

    def shift(par, first):
        for qt in range(2):
            t = TMP(qt)
            lane_reduce(e, "v_max_f32", t, NEGM(qt) + 1)
            if not first:
                e(f"v_max_f32 v{t}, 0, v{t}")
            e(f"v_sub_f32 v{NEGM(qt)}, v{NEGM(qt)}, v{t}")
            for r in range(1, 4):
                e(f"v_mov_b32 v{NEGM(qt) + r}, v{NEGM(qt)}")
            for kt in range(4):
                for r in range(4):
                    e(f"v_sub_f32 v{S(par, kt, qt) + r}, v{S(par, kt, qt) + r}, v{t}")

    e.restore(joined(e, first_states))
    e.label("G0_first_path")
    e("s_nop 7")
    shift(0, True)
    for qt in range(2):
        e(f"v_mov_b32 v{L(qt)}, 0")
        for r in range(0, 32, 2):
            e(f"v_mov_b64 {vr(O(qt, 0) + r, 2)}, 0")
    e("s_nop 1")
    e("s_setpc_b64 s[38:39]")
    for par in range(2):
        e.restore(joined(e, slow_states[par]))
        e.label(f"G0_slow{par}")
        shift(par, False)
        for qt in range(2):
            t = TMP(qt)
            e(f"v_exp_f32 v{t}, -v{t}")
            e(f"v_mul_f32 v{L(qt)}, v{L(qt)}, v{t}")
            for r in range(32):
                e(f"v_mul_f32 v{O(qt, 0) + r}, v{O(qt, 0) + r}, v{t}")
        e("s_nop 1")
        e("s_setpc_b64 s[38:39]")
    e.restore(joined(e, epi_states))
    e.label("G0_epi")
    X0 = PL
    e(f"v_mbcnt_lo_u32_b32 v{X0}, -1, 0")
    e(f"v_mbcnt_hi_u32_b32 v{X0}, -1, v{X0}")
    for qt in range(2):
        lane_reduce(e, "v_add_f32", L(qt), PL + 1)
    e(f"s_lshl_b32 s44, s{W}, 11")
    e(f"v_lshl_add_u32 v{X0}, v{X0}, 4, s44")
    e("s_lshr_b32 s45, s53, 4")
    e("s_mul_i32 s45, s45, 36864")
    osf = OPT["ostore"]
    for qt in range(2):
        e(f"v_rcp_f32 v{L(qt)}, v{L(qt)}")
    for u in range(4):
        for qt in range(2):
            a = O(qt, 2 * u)
            for r in range(8):
                e(f"v_mul_f32 v{a + r}, v{a + r}, v{L(qt)}")
            for k in range(4):
                e(f"v_cvt_pk_bf16_f32 v{a + k}, v{a + 2 * k}, v{a + 2 * k + 1}")
            e(f"buffer_store_dwordx4 {vr(a)}, v{X0}, {sr(SO)}, s45 offen offset:{1024 * qt} {osf}")
        e(f"s_add_u32 s45, s45, 9216")
    e("s_setpc_b64 s[38:39]")


def loader_group(e):
    emit = mk_emit(e)
    SX, SW, SK, SV, SO = 4, 8, 12, 16, 20
    kvf, xf, wf = OPT["kvflag"], OPT["xflag"], OPT["wflag"]
    BUF = lambda c: 4 * c
    O8 = lambda T: 128 + 4 * T
    Q8 = lambda u: 160 + 4 * u
    S8 = 176
    KF = lambda u: 180 + 4 * u
    VF = lambda T: 196 + 2 * T
    NEGM, L8, TM, TM2 = 212, 216, 217, 218
    AK = lambda u: 220 + u
    AV = lambda T: 224 + T
    VXM = lambda i: 232 + i
    VX8 = 234
    VWQ = lambda i: 235 + i
    VKV = lambda i: 237 + (i & 1)
    LANE, FQ, FW, FD, WA = 239, 240, 241, 242, 243
    T0, T1, T2, T3 = 244, 245, 246, 247
    PL, DUMMY = 248, 252
    CF = 57
    late = []
    e(f"v_and_b32 v{LANE}, 63, v0")
    g4 = T0
    e(f"v_lshrrev_b32 v{g4}, 4, v{LANE}")
    e(f"v_and_b32 v{T1}, 2, v{g4}")
    e(f"v_and_b32 v{T2}, 3, v{LANE}")
    e(f"v_xor_b32 v{T1}, v{T1}, v{T2}")
    e(f"v_lshlrev_b32 v{T1}, 4, v{T1}")
    e(f"v_lshrrev_b32 v{T2}, 2, v{LANE}")
    e(f"v_lshl_add_u32 v{T1}, v{T2}, 11, v{T1}")
    e(f"s_lshl_b32 s38, s{W}, 16")
    e(f"v_add_u32 v{VXM(0)}, s38, v{T1}")
    e(f"v_add_u32 v{VXM(1)}, {32768 - 1024}, v{VXM(0)}")
    e(f"v_add_u32 v{VX8}, {128 * 2048}, v{T1}")
    e(f"v_and_b32 v{T1}, 15, v{LANE}")
    e(f"v_lshlrev_b32 v{T2}, 1, v{g4}")
    e(f"v_xor_b32 v{T1}, v{T1}, v{T2}")
    e(f"s_and_b32 s39, s{W}, 1")
    e(f"s_lshl_b32 s40, s39, 3")
    e(f"v_xor_b32 v{T2}, s40, v{T1}")
    e(f"v_lshlrev_b32 v{T2}, 4, v{T2}")
    e(f"v_lshl_add_u32 v{T3}, v{g4}, 13, v{T2}")
    e(f"v_add_u32 v{VWQ(0)}, s38, v{T3}")
    e(f"v_add_u32 v{VWQ(1)}, {32768 - 1024}, v{VWQ(0)}")
    e(f"s_lshl_b32 s41, s{W}, 12")
    e(f"v_lshlrev_b32 v{T1}, 4, v{T1}")
    e(f"v_lshl_add_u32 v{T1}, v{g4}, 8, v{T1}")
    e(f"v_add_u32 v{VKV(0)}, s41, v{T1}")
    e(f"v_xor_b32 v{VKV(1)}, 0x80, v{VKV(0)}")
    e(f"s_lshl_b32 s42, s{W}, 11")
    e("s_lshr_b32 s53, s26, 1")
    e("s_add_u32 s53, s53, s25")
    e("s_and_b32 s53, s53, 3")
    e.wait(lgkm=0)
    e("s_mul_i32 s44, s25, 294912")
    e(f"s_add_u32 s{SX}, s28, s44")
    e(f"s_addc_u32 s{SX + 1}, s29, 0")
    e(f"s_mov_b32 s{SX + 2}, 294912")
    e(f"s_mov_b32 s{SX + 3}, 0x20000")
    e("s_lshl_b32 s44, s26, 8")
    e(f"s_add_u32 s{SW}, s34, s44")
    e(f"s_addc_u32 s{SW + 1}, s35, 0")
    e(f"s_sub_u32 s{SW + 2}, 8388608, s44")
    e(f"s_mov_b32 s{SW + 3}, 0x20000")

    QLEAD = int(OPT["qlead"])

    def unit_of(P):
        if not QLEAD:
            return [f"s_mov_b32 s46, {P}"]
        if P == 0:
            return ["s_mov_b32 s46, s53"]
        tp = P - 1
        if tp < 12:
            return [f"s_cmp_eq_u32 s53, {tp & 3}", f"s_cselect_b32 s46, {tp + 4}, {tp}"]
        return [f"s_cmp_le_u32 s53, {tp - 12}", f"s_cselect_b32 s46, {tp + 1}, {tp}"]

    def gap(st, k):
        g = int(OPT["gap"])
        if st < 2 or g == 0 or (g == 4 and k == 0):
            return []
        return [lambda: e.raw(f"    global_load_dword v{DUMMY}, v{FD}, s[48:49]")]

    def issue_step(st):
        out = []
        P = st >> 1
        if st % 2 == 0:
            xs = XR + 18432 * (P % 3)
            out += unit_of(P)
            out += ["s_lshl_b32 s50, s46, 7", "s_add_u32 s51, s50, 64", "s_lshl_b32 s46, s46, 19"]

            def x8():
                e(f"s_cmp_eq_u32 s{W}, {P & 3}")
                e(f"s_cbranch_scc0 G1_x8s{st}")
                for hf in range(2):
                    e.raw(f"    s_mov_b32 m0, {xs + 9216 * hf + 8192}")
                    e.raw(f"    s_nop 0")
                    e.raw(f"    buffer_load_dwordx4 v{VX8}, {sr(SX)}, s{50 + hf} offen {xf} lds")
                e.label(f"G1_x8s{st}")
            out.append(x8)
            for hf in range(2):
                out.append(f"s_add_u32 m0, s42, {xs + 9216 * hf}")
                out.append((f"buffer_load_dwordx4 v{VXM(0)}, {sr(SX)}, s{50 + hf} offen {xf} lds", ("q", st)))
                out.append((f"buffer_load_dwordx4 v{VXM(1)}, {sr(SX)}, s{50 + hf} offen offset:1024 {xf} lds", ("q", st)))
                out += gap(st, hf)
        for hh in range(2):
            out.append(f"s_add_u32 m0, s42, {WQREG(st) + 8192 * hh}")
            out.append(f"s_add_u32 s45, s46, {262144 * (st & 1) + 256 * hh}")
            out.append((f"buffer_load_dwordx4 v{VWQ(0)}, {sr(SW)}, s45 offen {wf} lds", ("q", st)))
            out.append((f"buffer_load_dwordx4 v{VWQ(1)}, {sr(SW)}, s45 offen offset:1024 {wf} lds", ("q", st)))
            out += gap(st, hh)
        return out

    emit(issue_step(0))
    e("s_lshl_b32 s44, s27, 17")
    e(f"s_add_u32 s{SK}, s30, s44")
    e(f"s_addc_u32 s{SK + 1}, s31, 0")
    e(f"s_mov_b32 s{SK + 2}, 262144")
    e(f"s_mov_b32 s{SK + 3}, 0x20000")
    e(f"s_add_u32 s{SV}, s32, s44")
    e(f"s_addc_u32 s{SV + 1}, s33, 0")
    e(f"s_mov_b32 s{SV + 2}, 262144")
    e(f"s_mov_b32 s{SV + 3}, 0x20000")
    e(f"v_and_b32 v{FQ}, 3, v{LANE}")
    e(f"v_lshlrev_b32 v{FQ}, 2, v{FQ}")
    e(f"v_add_u32 v{FQ}, {FLG}, v{FQ}")
    e(f"s_lshl_b32 s44, s{W}, 2")
    e(f"v_mov_b32 v{FW}, {FLG}")
    e(f"v_add_u32 v{FW}, s44, v{FW}")
    e(f"s_add_u32 s43, s44, {FLG + F_FULL}")
    e("s_getpc_b64 s[54:55]")
    e.raw("G1_pc:")
    e("s_sub_u32 s54, s54, G1_pc - att_kernel")
    e("s_subb_u32 s55, s55, 0")
    e("s_add_u32 s48, s54, cnt_table - att_kernel")
    e("s_addc_u32 s49, s55, 0")
    e("s_lshr_b32 s44, s2, 3")
    e("s_lshl_b32 s44, s44, 2")
    e(f"s_add_u32 s44, s44, s{W}")
    e("s_and_b32 s44, s44, 63")
    e("s_min_u32 s44, s44, CODE_KB_P")
    e("s_lshl_b32 s44, s44, 10")
    e(f"v_lshl_add_u32 v{T1}, v{LANE}, 4, s44")
    e.raw(f"    global_load_dwordx4 {vr(DUMMY)}, v{T1}, s[54:55]")
    o_srd(e, SO)
    e(f"s_lshl_b32 s44, s{W}, 6")
    e(f"s_add_u32 s45, s41, {VS}")
    kv_addr_setup(e, LANE, AK, AV, (T0, T1, T2, T3), "s44", "s41", "s45")
    e(f"v_lshl_add_u32 v{WA}, v{LANE}, 4, s41")
    e("s_barrier")

    def publish(val):
        e(f"v_mov_b32 v{FD}, {4 * val}")
        e("s_mov_b32 m0, s43")
        e("s_mov_b64 exec, 1")
        e(f"global_load_lds_dword v{FD}, s[48:49]", ("f", val))
        e("s_mov_b64 exec, -1")

    trace_n = [0]

    def trace():
        if OPT["stamp"]:
            e("s_memrealtime s[94:95]")
            e("s_memtime s[90:91]")
            e.wait(lgkm=0)
            e(f"v_writelane_b32 v254, s94, {trace_n[0]}")
            e(f"v_writelane_b32 v255, s90, {trace_n[0]}")
            trace_n[0] += 1

    def need_free(nm, need):
        if need > 64:
            e(f"s_mov_b32 s58, {need}")
            need = "s58"
        blocking_poll4(e, nm, FQ, F_FREE, PL, need)
        trace()

    if OPT["abl_noload"]:
        e.wait(vm=0)
        e(f"v_mov_b32 v{FD}, 100")
        e(f"ds_write_b32 v{FW}, v{FD} offset:{F_FULL}")
        e("s_endpgm")

    tile_of = lambda n: (False, 0) if n == 0 else ((False, (n + 1) // 2) if n & 1 else (True, n // 2 - 1))
    NPF = int(OPT["npf"])
    allp = [(n, c) for n in range(5, 33) for c in range(4) if n != 31]
    nreg = 8 * NPF
    regp = [allp[(len(allp) * k + len(allp) // 2) // nreg] for k in range(nreg)] if nreg else []
    assert len(set(regp)) == nreg

    def piece_src(n, c):
        isv, j = tile_of(n)
        return (SV if isv else SK, 16384 * j)

    def piece_slot(n, c):
        isv, j = tile_of(n)
        return (VS if isv else KS) + 16384 * (j % 3)

    def pf_batch(bt, st):
        for k in range(8 * bt, 8 * bt + 8):
            p, c = regp[k]
            srd, off = piece_src(p, c)
            e.raw(f"    s_mov_b32 s52, {off}")
            e.raw(f"    buffer_load_dwordx4 {vr(BUF(k))}, v{VKV(c)}, {sr(srd)}, s52 offen offset:{1024 * (c & 3)} {kvf}")

    def fill(n):
        for c in range(4):
            if (n, c) in regp:
                off = piece_slot(n, c) + 1024 * c
                if off < 65536:
                    e(f"ds_write_b128 v{WA}, {vr(BUF(regp.index((n, c))))} offset:{off}")
                else:
                    e(f"ds_write_b128 v{T3}, {vr(BUF(regp.index((n, c))))} offset:{off - 49152}")
        srd, off = piece_src(n, 0)
        e(f"s_add_u32 m0, s41, {piece_slot(n, 0)}")
        e(f"s_mov_b32 s52, {off}")
        for c in range(4):
            if (n, c) not in regp:
                e(f"buffer_load_dwordx4 v{VKV(c)}, {sr(srd)}, s52 offen offset:{1024 * c} {kvf} lds", ("a", n))

    def landed(p):
        n = e.vm_needed_for_tags(lambda t: t[0] == "a" and t[1] <= p)
        if n is not None:
            e.wait(vm=n)

    stag = [int(x) for x in OPT["pfstag"].split(",")]
    pf0, pfd = int(OPT["pf0"]), int(OPT["pfd"])
    publish(1)
    emit(issue_step(1))
    publish(2)
    stamp(e, 1)
    for st in range(2, 32):
        if st >= 6 and st % 2 == 0:
            need_free(f"G1_fq{st}", st - 4)
        emit(issue_step(st))
        publish(st + 1)
        for bt in range(NPF):
            for r in range(4):
                if pf0 + pfd * bt + stag[r] == st:
                    assert st < 31
                    e(f"s_cmp_eq_u32 s53, {r}")
                    e(f"s_cbranch_scc0 G1_pf{bt}_{r}")
                    pf_batch(bt, st)
                    e.label(f"G1_pf{bt}_{r}")
    e(f"v_add_u32 v{T3}, 49152, v{WA}")
    stamp(e, 2)
    need_free("G1_fa0", 28)
    fill(0)
    fill(1)
    publish(34)
    need_free("G1_fa2", 30)
    fill(2)
    publish(35)
    fill(3)
    publish(36)
    need_free("G1_fa4", 32)
    fill(4)
    publish(37)
    e(f"s_mov_b32 s50, {f32bits(THR):#x}")
    e("s_mov_b32 s47, 0")

    def load_q8(img):
        e(f"s_sub_u32 s44, {img + 32768}, s41")
        e(f"v_add_u32 v{PL}, s44, v{WA}")
        for u in range(4):
            e(f"ds_read_b128 {vr(Q8(u))}, v{PL} offset:{1024 * u}")
        for r in range(4):
            e(f"v_mov_b32 v{NEGM + r}, 0")
        e("s_mov_b32 s51, 0xff800000")
        e.wait(lgkm=0)

    sub_states = {}

    def call(nm):
        sub_states.setdefault(nm, []).append(e.snapshot())
        e(f"s_call_b64 s[38:39], {nm}")
        e.st.hist = [[]]
        e.st.lgkm = []

    def qk8(j):
        landed(0 if j == 0 else 2 * j - 1)
        call(f"G1_qk{j % 3}")

    def pv8(j):
        landed(2 * j + 2)
        call(f"G1_pv{j % 3}")
        if j in (7, 15):
            call("G1_merge1")
        if j == 7:
            load_q8(QIB)

    assert all(k >= 10 or n < 19 for k, (n, c) in enumerate(regp))
    blocking_poll4(e, "G1_gb0", FQ, F_GB, PL, 1)
    load_q8(QIA)
    qk8(0)
    for n in range(5, 33):
        if n != 31:
            need_free(f"G1_fb{n}", 33 + (0 if n == 5 else n - 6))
            fill(n)
            e.wait(lgkm=0)
            publish(33 + n + (1 if n in (30, 32) else 0))
        if n == 32 and OPT["prewarm"]:
            e("s_load_dwordx2 s[54:55], s[0:1], 32")
            e("s_lshl_b32 s44, s2, 2")
            e(f"s_add_u32 s44, s44, s{W}")
            e("s_lshl_b32 s44, s44, 13")
            e(f"v_lshl_add_u32 v{T1}, v{LANE}, 7, s44")
            e.wait(lgkm=0)
            e(f"global_load_dword v{DUMMY}, v{T1}, s[54:55]")
        if n & 1:
            pv8((n - 5) // 2)
        else:
            qk8((n - 4) // 2)
        if n == 21:
            e("s_mov_b32 s46, 0")
            call("G1_merge2")
    pv8(14)
    qk8(15)
    pv8(15)
    e("s_mov_b32 s46, 36864")
    call("G1_merge2")
    e.wait(vm=0)
    trace()
    if OPT["stamp"]:
        e("s_lshl_b32 s58, s2, 2")
        e(f"s_add_u32 s58, s58, s{W}")
        e("s_lshl_b32 s58, s58, 9")
        e(f"s_add_u32 s58, s58, {STAMP_OFF + (2 << 20)}")
        e(f"v_lshl_add_u32 v{T0}, v{LANE}, 2, s58")
        e(f"global_store_dword v{T0}, v254, s[36:37]")
        e(f"global_store_dword v{T0}, v255, s[36:37] offset:256")
        sys.stderr.write("trace points: %d\n" % trace_n[0])
    stamp(e, 3)
    stamp_store(e, 4, 36, STAMP_OFF, ["s_lshl_b32 s58, s2, 2", f"s_add_u32 s58, s58, s{W}", "s_add_u32 s58, s58, 1024"])
    e("s_endpgm")
    for f in late:
        f()

    def sub_begin(nm):
        st = joined(e, sub_states[nm])
        st.lgkm = []
        st.vm = []
        e.restore(st)
        e.label(nm)

    def sub_end():
        e.wait(lgkm=0)
        e("s_nop 7")
        e("s_setpc_b64 s[38:39]")

    for sl in range(3):
        sub_begin(f"G1_qk{sl}")
        for u in range(4):
            e(f"ds_read_b128 {vr(KF(u))}, v{AK(u)} offset:{KS + 16384 * sl}")
        for u in range(4):
            e(f"{MF} {vr(S8)}, {vr(KF(u))}, {vr(Q8(u))}, {vr(NEGM) if u == 0 else vr(S8)}")
        if sl < 2:
            e("s_branch G1_qk_tail")
    e.label("G1_qk_tail")
    e("s_nop 7")
    e(f"v_max_f32 v{TM}, v{S8}, v{S8 + 1}")
    e(f"v_max3_f32 v{TM}, v{S8 + 2}, v{S8 + 3}, v{TM}")
    e(f"v_cmp_lt_f32 vcc, s50, v{TM}")
    e(f"s_or_b32 s55, vcc_lo, s51")
    e("s_or_b32 s55, s55, vcc_hi")
    e("s_cbranch_scc0 G1_qk_sm")
    lane_reduce(e, "v_max_f32", TM, TM2)
    e(f"v_max_f32 v{TM}, s51, v{TM}")
    e(f"v_sub_f32 v{NEGM}, v{NEGM}, v{TM}")
    for r in range(1, 4):
        e(f"v_mov_b32 v{NEGM + r}, v{NEGM}")
    for r in range(4):
        e(f"v_sub_f32 v{S8 + r}, v{S8 + r}, v{TM}")
    e("s_cmp_eq_u32 s51, 0")
    e("s_cbranch_scc1 G1_qk_resc")
    e(f"v_mov_b32 v{L8}, 0")
    for r in range(0, 32, 2):
        e(f"v_mov_b64 {vr(O8(0) + r, 2)}, 0")
    e("s_mov_b32 s51, 0")
    e("s_branch G1_qk_sm")
    e.label("G1_qk_resc")
    e(f"v_exp_f32 v{TM}, -v{TM}")
    e(f"v_mul_f32 v{L8}, v{L8}, v{TM}")
    for r in range(32):
        e(f"v_mul_f32 v{O8(0) + r}, v{O8(0) + r}, v{TM}")
    e.label("G1_qk_sm")
    for r in range(4):
        e(f"v_exp_f32 v{S8 + r}, v{S8 + r}")
    for r in range(4):
        e(f"v_add_f32 v{L8}, v{L8}, v{S8 + r}")
    e(f"v_cvt_pk_bf16_f32 v{S8}, v{S8}, v{S8 + 1}")
    e(f"v_cvt_pk_bf16_f32 v{S8 + 1}, v{S8 + 2}, v{S8 + 3}")
    e("s_nop 1")
    e("s_setpc_b64 s[38:39]")
    for sl in range(3):
        sub_begin(f"G1_pv{sl}")
        for T in range(8):
            e(f"ds_read_b64_tr_b16 {vr(VF(T), 2)}, v{AV(T)} offset:{16384 * sl}")
        for T in range(8):
            e(f"{MF16} {vr(O8(T))}, {vr(VF(T), 2)}, {vr(S8, 2)}, {vr(O8(T))}")
        sub_end()
    sub_begin("G1_merge1")
    X1, X2, X3 = T0, T1, T2
    lane_reduce(e, "v_add_f32", L8, TM)
    e(f"v_lshlrev_b32 v{X3}, 4, v{LANE}")
    for c in range(1, 4):
        e(f"s_xor_b32 s44, s{W}, {c}")
        e(f"s_mul_i32 s44, s44, 6144")
        e(f"s_add_u32 s44, s44, {MRG + 2048 * (c - 1)}")
        e(f"v_add_u32 v{X1}, s44, v{X3}")
        for k in range(2):
            e(f"ds_write_b128 v{X1}, {vr(O8(2 * c + k))} offset:{1024 * k}")
    e(f"s_lshl_b32 s44, s{W}, 9")
    e(f"s_add_u32 s44, s44, {MRG + 24576}")
    e(f"v_lshl_add_u32 v{X2}, v{LANE}, 3, s44")
    e(f"v_mov_b32 v{NEGM + 1}, v{L8}")
    e(f"ds_write_b64 v{X2}, {vr(NEGM, 2)}")
    e("s_add_u32 s47, s47, 1")
    e(f"v_mov_b32 v{FD}, s47")
    e(f"ds_write_b32 v{FW}, v{FD} offset:{F_GB1}")
    for r in range(8):
        e(f"v_mov_b32 v{r}, v{O8(0) + r}")
    sub_end()
    sub_begin("G1_merge2")
    e(f"v_lshlrev_b32 v{X3}, 4, v{LANE}")
    blocking_poll4(e, "G1_gb1", FQ, F_GB1, PL, "s47")
    ST = lambda c: 32 + 2 * c
    PO = lambda c, k: 8 * c + 4 * k
    for c in range(4):
        e(f"s_xor_b32 s44, s{W}, {c}")
        e(f"s_lshl_b32 s44, s44, 9")
        e(f"s_add_u32 s44, s44, {MRG + 24576}")
        e(f"v_lshl_add_u32 v{X2}, v{LANE}, 3, s44")
        e(f"ds_read_b64 {vr(ST(c), 2)}, v{X2}")
    e(f"s_mul_i32 s44, s{W}, 6144")
    e(f"s_add_u32 s44, s44, {MRG}")
    e(f"v_add_u32 v{X1}, s44, v{X3}")
    for c in range(1, 4):
        for k in range(2):
            e(f"ds_read_b128 {vr(PO(c, k))}, v{X1} offset:{2048 * (c - 1) + 1024 * k}")
    mn = TM
    e(f"v_min_f32 v{mn}, v{ST(0)}, v{ST(1)}")
    e(f"v_min3_f32 v{mn}, v{ST(2)}, v{ST(3)}, v{mn}")
    for c in range(4):
        e(f"v_sub_f32 v{ST(c)}, v{mn}, v{ST(c)}")
    for c in range(4):
        e(f"v_exp_f32 v{ST(c)}, v{ST(c)}")
    e(f"v_mul_f32 v{mn}, v{ST(0)}, v{ST(0) + 1}")
    for c in range(1, 4):
        e(f"v_fma_f32 v{mn}, v{ST(c)}, v{ST(c) + 1}, v{mn}")
    e(f"v_rcp_f32 v{mn}, v{mn}")
    for c in range(4):
        e(f"v_mul_f32 v{ST(c)}, v{ST(c)}, v{mn}")
    a = 0
    for r in range(8):
        e(f"v_mul_f32 v{a + r}, v{a + r}, v{ST(0)}")
    for c in range(1, 4):
        for r in range(8):
            e(f"v_fma_f32 v{a + r}, v{PO(c, 0) + r}, v{ST(c)}, v{a + r}")
    for k in range(4):
        e(f"v_cvt_pk_bf16_f32 v{a + k}, v{a + 2 * k}, v{a + 2 * k + 1}")
    e(f"s_mul_i32 s45, s{W}, 9216")
    e(f"s_add_u32 s45, s45, 8192")
    e(f"s_add_u32 s45, s45, s46")
    e(f"buffer_store_dwordx4 {vr(a)}, v{X3}, {sr(SO)}, s45 offen {OPT['ostore']}")
    sub_end()


def engine(e):
    stamp(e, 0)
    e("s_load_dwordx4 s[28:31], s[0:1], 0")
    e("s_load_dwordx4 s[32:35], s[0:1], 16")
    e("s_load_dwordx2 s[36:37], s[0:1], 56")
    e("v_lshrrev_b32 v1, 6, v0")
    e("s_and_b32 s25, s2, 1")
    e("v_readfirstlane_b32 s3, v1")
    e("s_lshl_b32 s25, s25, 3")
    e("s_bfe_u32 s26, s2, 0x30003")
    e("s_add_u32 s25, s25, s26")
    e("s_bfe_u32 s26, s2, 0x20001")
    e("s_lshl_b32 s26, s26, 2")
    e("s_lshr_b32 s27, s2, 6")
    e("s_add_u32 s26, s26, s27")
    e("s_lshl_b32 s26, s26, 1")
    e("s_lshl_b32 s27, s25, 5")
    e("s_add_u32 s27, s27, s26")
    e(f"s_and_b32 s{W}, s3, 3")
    e("s_cmp_lt_u32 s3, 4")
    e("s_cbranch_scc1 G0_start")
    st = e.snapshot()
    loader_group(e)
    e.restore(st)
    e.label("G0_start")
    compute_group(e)


def consumer(e, idreg="s2"):
    emit = mk_emit(e)
    SO, SW, SD = 4, 8, 12
    of, wf = OPT["oflag"], OPT["wflag"]
    ACC = lambda mt, t: 16 * mt + 4 * t
    FB = lambda p, mt: 144 + 36 * p + 4 * mt
    FA = lambda p, t: 216 + 16 * p + 4 * t
    AA = lambda t: 248 + t
    VB, VA, LANE, T0 = 252, 253, 254, 255
    stamp(e, 0)
    e("s_load_dwordx4 s[28:31], s[0:1], 32")
    e("s_load_dwordx2 s[36:37], s[0:1], 56")
    e(f"v_lshrrev_b32 v{T0}, 6, v0")
    e(f"v_and_b32 v{LANE}, 63, v0")
    e(f"v_readfirstlane_b32 s{W}, v{T0}")
    e(f"s_bfe_u32 s25, {idreg}, 0x20001")
    e("s_lshl_b32 s25, s25, 2")
    e(f"s_bfe_u32 s26, {idreg}, 0x20003")
    e("s_add_u32 s25, s25, s26")
    e(f"s_and_b32 s26, {idreg}, 1")
    e("s_lshl_b32 s26, s26, 3")
    e(f"s_bfe_u32 s27, {idreg}, 0x30005")
    e("s_add_u32 s26, s26, s27")
    e(f"s_mul_i32 s38, s{W}, 9216")
    e(f"v_lshl_add_u32 v{VB}, v{LANE}, 4, s38")
    e(f"v_lshrrev_b32 v{T0}, 4, v{LANE}")
    e(f"v_lshlrev_b32 v{T0}, 1, v{T0}")
    e(f"v_and_b32 v{VA}, 7, v{LANE}")
    e(f"v_xor_b32 v{VA}, v{VA}, v{T0}")
    e(f"v_lshlrev_b32 v{VA}, 4, v{VA}")
    e(f"v_lshrrev_b32 v{T0}, 3, v{LANE}")
    e(f"v_lshl_add_u32 v{VA}, v{T0}, 11, v{VA}")
    e(f"s_lshl_b32 s38, s{W}, 16")
    e(f"v_add_u32 v{VA}, s38, v{VA}")
    e(f"s_lshl_b32 s41, s{W}, 14")
    e(f"v_lshrrev_b32 v{T0}, 2, v{LANE}")
    e(f"v_and_b32 v{AA(1)}, 3, v{LANE}")
    e(f"v_lshlrev_b32 v{AA(1)}, 3, v{AA(1)}")
    e(f"v_lshl_add_u32 v{AA(0)}, v{T0}, 7, v{AA(1)}")
    e(f"v_bfe_u32 v{T0}, v{LANE}, 3, 2")
    e(f"v_xor_b32 v{T0}, s{W}, v{T0}")
    e(f"v_lshl_add_u32 v{AA(0)}, v{T0}, 5, v{AA(0)}")
    e(f"v_add_u32 v{AA(0)}, s41, v{AA(0)}")
    for t in range(1, 4):
        e(f"v_xor_b32 v{AA(t)}, {32 * t}, v{AA(0)}")
    e.wait(lgkm=0)
    e(f"s_mul_i32 s44, s25, {32 * 36864}")
    e(f"s_add_u32 s{SO}, s36, s44")
    e(f"s_addc_u32 s{SO + 1}, s37, 0")
    e(f"s_mov_b32 s{SO + 2}, {32 * 36864}")
    e(f"s_mov_b32 s{SO + 3}, 0x20000")
    e("s_lshl_b32 s44, s26, 7")
    e(f"s_add_u32 s{SW}, s28, s44")
    e(f"s_addc_u32 s{SW + 1}, s29, 0")
    e(f"s_sub_u32 s{SW + 2}, 8388608, s44")
    e(f"s_mov_b32 s{SW + 3}, 0x20000")
    e("s_mul_i32 s45, s25, 294912")
    e("s_add_u32 s44, s44, s45")
    e(f"s_add_u32 s{SD}, s30, s44")
    e(f"s_addc_u32 s{SD + 1}, s31, 0")
    e(f"s_sub_u32 s{SD + 2}, {16 * 294912}, s44")
    e(f"s_mov_b32 s{SD + 3}, 0x20000")
    e.auto_vm = False
    LEAD = int(OPT["lead"])

    def order(cnt, dst):
        if not LEAD:
            return [f"s_mov_b32 s{dst}, s{cnt}"]
        return [f"s_sub_u32 s{dst}, s{cnt}, 1",
                f"s_cmp_ge_i32 s{dst}, s54",
                f"s_addc_u32 s{dst}, s{dst}, 0",
                f"s_and_b32 s55, s{dst}, 3",
                f"s_cmp_eq_u32 s55, s53",
                f"s_cselect_b32 s55, 4, 0",
                f"s_add_u32 s{dst}, s{dst}, s55",
                f"s_cmp_eq_u32 s{cnt}, 0",
                f"s_cselect_b32 s{dst}, s53, s{dst}"]

    def dma_a(slot):
        out = [f"s_add_u32 m0, s41, {4096 * slot}"] + order(46, 48) + ["s_lshl_b32 s48, s48, 18"]
        for i in range(4):
            if i:
                out.append(f"s_add_u32 s48, s48, {16384 - 1024}")
            out.append(f"buffer_load_dwordx4 v{VA}, {sr(SW)}, s48 offen offset:{1024 * i} {wf} lds")
        out.append("s_add_u32 s46, s46, 1")
        return out

    def b_prep():
        return order(47, 49) + ["s_mul_i32 s49, s49, 36864", "s_add_u32 s50, s49, 4096", "s_add_u32 s51, s49, 8192", "s_add_u32 s47, s47, 1"]

    def b_load(p, mt):
        return f"buffer_load_dwordx4 {vr(FB(p, mt))}, v{VB}, {sr(SO)}, s{49 + mt // 4} offen offset:{1024 * (mt % 4)} {of}"

    def a_reads(p, slot):
        return [f"ds_read_b64_tr_b16 {vr(FA(p, t) + 2 * ee, 2)}, v{AA(t)} offset:{4096 * slot + 2048 * ee}"
                for t in range(4) for ee in range(2)]

    e("s_mov_b32 s46, 0")
    e("s_mov_b32 s47, 0")
    e("s_add_u32 s53, s25, s26")
    e("s_and_b32 s53, s53, 3")
    e("s_add_u32 s54, s53, 28")
    emit(dma_a(0) + dma_a(1) + dma_a(2) + b_prep() + [b_load(0, mt) for mt in range(9)])
    emit(dma_a(3) + b_prep() + [b_load(1, mt) for mt in range(9)])
    for mt in range(9):
        for t in range(4):
            for r in range(0, 4, 2):
                e(f"v_mov_b64 {vr(ACC(mt, t) + r, 2)}, 0")
    e.wait(vm=30)
    stamp(e, 1)
    emit(a_reads(0, 0))
    e("s_mov_b32 s52, 8")
    entry = e.snapshot()
    exits = []
    mark = len(e.lines)
    cnt0 = dict(e.count)
    for rounds in range(2):
        del e.lines[mark:]
        e.count = dict(cnt0)
        e.merge([entry] + exits)
        e.label("C_loop")
        for st in range(4):
            p = st & 1
            e.wait(lgkm=0)
            emit(dma_a(st) + b_prep())
            rd = a_reads(p ^ 1, (st + 1) % 4)
            for mt in range(9):
                e.wait(vm=25)
                m = [f"{MF} {vr(ACC(mt, t))}, {vr(FA(p, t))}, {vr(FB(p, mt))}, {vr(ACC(mt, t))}" for t in range(4)]
                fill = rd[2 * mt: 2 * mt + 2] if mt < 4 else []
                emit(interleave(m, fill))
                e(b_load(p, mt))
        e("s_sub_u32 s52, s52, 1")
        e("s_cmp_lg_u32 s52, 0")
        e("s_cbranch_scc1 C_loop")
        exits = [e.snapshot()]
    stamp(e, 2)
    e.wait(vm=0, lgkm=0)
    e.auto_vm = True
    e("s_barrier")
    WA, RA = VB, VA
    e(f"s_mul_i32 s44, s{W}, 18432")
    e(f"v_lshl_add_u32 v{WA}, v{LANE}, 4, s44")
    e(f"s_xor_b32 s45, s{W}, 2")
    e(f"s_mul_i32 s44, s45, 18432")
    e(f"v_lshl_add_u32 v{RA}, v{LANE}, 4, s44")
    for mt in range(9):
        for k in range(2):
            e(f"ds_write_b128 v{WA}, {vr(ACC(mt, 2 + k))} offset:{1024 * (2 * mt + k)}")
    e.wait(lgkm=0)
    e("s_barrier")
    for mt in range(9):
        for k in range(2):
            e(f"ds_read_b128 {vr(ACC(mt, 2 + k))}, v{RA} offset:{1024 * (2 * mt + k)}")
    for mt in range(9):
        for k in (1, 0):
            for r in range(4):
                e(f"v_add_f32 v{ACC(mt, k) + r}, v{ACC(mt, k) + r}, v{ACC(mt, 2 + k) + r}")
    e.wait(lgkm=0)
    for mt in range(9):
        e(f"ds_write_b128 v{RA}, {vr(ACC(mt, 1))} offset:{1024 * mt}")
    e(f"s_xor_b32 s45, s{W}, 3")
    e(f"s_mul_i32 s44, s45, 18432")
    e(f"v_lshl_add_u32 v{WA}, v{LANE}, 4, s44")
    e.wait(lgkm=0)
    e("s_barrier")
    for mt in range(9):
        e(f"ds_read_b128 {vr(ACC(mt, 1))}, v{WA} offset:{1024 * mt}")
    IMG = lambda mt: 9216 + 2048 * mt if mt < 4 else (27648 + 2048 * (mt - 4) if mt < 8 else 46080)
    X0, X1 = AA(0), AA(1)
    e(f"v_lshrrev_b32 v{X0}, 5, v{LANE}")
    e(f"s_lshl_b32 s44, s{W}, 1")
    e(f"v_add_u32 v{X0}, s44, v{X0}")
    e(f"v_and_b32 v{X1}, 7, v{LANE}")
    e(f"v_xor_b32 v{X0}, v{X0}, v{X1}")
    e(f"v_lshlrev_b32 v{X0}, 4, v{X0}")
    e(f"v_bfe_u32 v{X1}, v{LANE}, 4, 1")
    e(f"v_lshl_add_u32 v{X0}, v{X1}, 3, v{X0}")
    e(f"v_and_b32 v{X1}, 15, v{LANE}")
    e(f"v_lshl_add_u32 v{X0}, v{X1}, 7, v{X0}")
    for mt in range(9):
        a = ACC(mt, 0)
        for r in range(4):
            e(f"v_add_f32 v{a + r}, v{a + r}, v{ACC(mt, 1) + r}")
        e(f"v_cvt_pk_bf16_f32 v{a}, v{a}, v{a + 1}")
        e(f"v_cvt_pk_bf16_f32 v{a + 1}, v{a + 2}, v{a + 3}")
        e(f"ds_write_b64 v{X0}, {vr(a, 2)} offset:{IMG(mt)}")
    X2, X3 = AA(2), AA(3)
    e(f"v_lshrrev_b32 v{X1}, 3, v{LANE}")
    e(f"v_and_b32 v{X2}, 7, v{LANE}")
    e(f"v_xor_b32 v{X2}, v{X2}, v{X1}")
    e(f"v_lshlrev_b32 v{X2}, 4, v{X2}")
    e(f"v_lshl_add_u32 v{X2}, v{X1}, 11, v{X2}")
    e(f"s_lshr_b32 s44, s{W}, 1")
    e(f"s_mul_i32 s44, s44, 18432")
    e(f"s_and_b32 s45, s{W}, 1")
    e(f"s_lshl_b32 s45, s45, 12")
    e(f"s_add_u32 s44, s44, s45")
    e(f"v_lshl_add_u32 v{X3}, v{LANE}, 4, s44")
    e(f"s_lshl_b32 s45, s{W}, 10")
    e(f"v_lshl_add_u32 v{X1}, v{LANE}, 4, s45")
    e.wait(lgkm=0)
    e("s_barrier")
    for i in range(4):
        e(f"ds_read_b128 {vr(4 * i)}, v{X3} offset:{9216 + 1024 * i}")
    e(f"ds_read_b128 {vr(16)}, v{X1} offset:{IMG(8)}")
    e(f"s_lshl_b32 s44, s{W}, 16")
    for i in range(4):
        e(f"buffer_store_dwordx4 {vr(4 * i)}, v{X2}, {sr(SD)}, s44 offen")
        e(f"s_add_u32 s44, s44, 16384")
    e(f"s_cmp_ge_u32 s{W}, 2")
    e("s_cbranch_scc1 C_done")
    e(f"s_lshl_b32 s44, s{W}, 14")
    e(f"s_add_u32 s44, s44, {128 * 2048}")
    e(f"buffer_store_dwordx4 {vr(16)}, v{X2}, {sr(SD)}, s44 offen")
    e.label("C_done")
    if OPT["stamp"]:
        e.wait(vm=0, lgkm=0)
    stamp(e, 3)
    stamp_store(e, 4, 36, STAMP_OFF + (1 << 20), ["s_lshl_b32 s58, s2, 2", f"s_add_u32 s58, s58, s{W}"])
    e("s_endpgm")


def kd(name):
    return f""".section .rodata,"a"
.p2align 6
.amdhsa_kernel {name}
  .amdhsa_next_free_vgpr 256
  .amdhsa_next_free_sgpr 96
  .amdhsa_accum_offset 256
  .amdhsa_group_segment_fixed_size 0
  .amdhsa_kernarg_size 64
  .amdhsa_user_sgpr_count 2
  .amdhsa_user_sgpr_kernarg_segment_ptr 1
  .amdhsa_system_sgpr_workgroup_id_x 1
.end_amdhsa_kernel
"""


def main():
    out = HEADER
    out += "; @launch kernel=att_kernel grid=(256,1,1) block=(512,1,1) lds=163840\n"
    out += "; @launch kernel=oproj_kernel grid=(256,1,1) block=(256,1,1) lds=81920\n"
    out += '.amdgcn_target "amdgcn-amd-amdhsa--gfx950"\n.text\n'
    e = Emitter()
    e.raw(".globl att_kernel\n.p2align 8\n.type att_kernel,@function\natt_kernel:")
    e("s_cmp_ge_u32 s2, 256")
    e("s_cbranch_scc1 P_exit")
    engine(e)
    e.label("P_exit")
    e("s_endpgm")
    e.raw(".p2align 8\n.type cnt_table,@object\ncnt_table:")
    for k in range(96):
        e.raw(f".long {k}")
    e.raw(".size cnt_table, 384")
    e.label("P_end")
    e.raw(".set CODE_KB_P, (P_end - att_kernel) / 1024")
    sys.stderr.write("engine counts: %s\n" % e.count)
    out += e.text()
    e = Emitter()
    e.raw(".globl oproj_kernel\n.p2align 8\n.type oproj_kernel,@function\noproj_kernel:")
    e("s_cmp_ge_u32 s2, 256")
    e("s_cbranch_scc1 C_exit")
    consumer(e)
    e.label("C_exit")
    e("s_endpgm")
    sys.stderr.write("consumer counts: %s\n" % e.count)
    out += e.text()
    out += kd("att_kernel") + kd("oproj_kernel")
    open(sys.argv[1], "w").write(out)


main()
```

```python
import sys, struct, math
from asmlib import *

NAME = "standalone__mha_block_cached__near_ridge"
OPT = dict(stamp=False, kvflag="nt", xflag="", wflag="", oflag="", ostore="", fused=False,
           npw="512", abl_nokv=False, abl_hot=False, abl_nopf=False, abl_chot=False, lead="0", prewarm=False)
for a in sys.argv[2:]:
    k, v = a.split("=", 1)
    OPT[k] = {"True": True, "False": False}.get(v, v)

HEADER = """; Kernarg layout for this problem (64 bytes, ptrs only, base s[0:1]):
"""


def f32bits(x):
    return struct.unpack("<I", struct.pack("<f", x))[0]


MF = "v_mfma_f32_16x16x32_bf16"
STAMP_OFF = 64 << 20


def stamp(e, idx):
    if OPT["stamp"]:
        e(f"s_memrealtime s[{60 + 2 * idx}:{61 + 2 * idx}]")
        e(f"s_memtime s[{76 + 2 * idx}:{77 + 2 * idx}]")


def stamp_store(e, n, ws_lo, base_off):
    if not OPT["stamp"]:
        return
    e.wait(lgkm=0)
    e("v_mov_b32 v0, 0")
    e(f"s_lshl_b32 s58, s2, 2")
    e(f"s_add_u32 s58, s58, s24")
    e(f"s_lshl_b32 s58, s58, 6")
    e(f"s_add_u32 s58, s58, {base_off}")
    e(f"s_add_u32 s56, s{ws_lo}, s58")
    e(f"s_addc_u32 s57, s{ws_lo + 1}, 0")
    for i in range(n):
        e(f"v_mov_b32 v1, s{60 + 2 * i}")
        e(f"global_store_dword v0, v1, s[56:57] offset:{4 * i}")
    for i in range(n):
        e(f"v_mov_b32 v1, s{76 + 2 * i}")
        e(f"global_store_dword v0, v1, s[56:57] offset:{32 + 4 * i}")


def producer(e):
    SX, SW, SK, SV, SO = 4, 8, 12, 16, 20
    W = 24
    kvf, xf, wf = OPT["kvflag"], OPT["xflag"], OPT["wflag"]
    XM, X8, WQ = 0, 40960, 49152
    SLOT = [0, 16384, 32768, 49152]
    QIMG = 45056
    O = lambda qt, T: 32 * qt + 4 * T
    Q = lambda qt, u: 96 + 16 * qt + 4 * u
    S = lambda kt, qt: 144 + 16 * qt + 4 * kt
    F = lambda i: 192 + 4 * (i % 8)
    NEGM = lambda qt: 224 + 4 * qt
    L = lambda qt: 236 + qt
    TMP = lambda qt: 239 + qt
    AK = lambda u: 242 + u
    AV = lambda T: 246 + T
    VKV = lambda i: 254 + (i & 1)
    PF = lambda n, i: 16 * n + 4 * i
    ACC = lambda t, i: 64 + 16 * t + 4 * i
    ACC8 = lambda t: 128 + 4 * t
    FA = lambda p, t: 136 + 36 * p + 4 * t
    FB = lambda p, i: 136 + 36 * p + 16 + 4 * i
    AA = lambda t: 208 + t
    AB = 212
    VXM = lambda i: 213 + i
    VX8 = 215
    VWQ = lambda i: 216 + i
    LANE = 218
    T0, T1, T2, T3 = 219, 220, 221, 222
    DUMMY = 224

    stamp(e, 0)
    e("s_load_dwordx4 s[28:31], s[0:1], 0")
    e("s_load_dwordx4 s[32:35], s[0:1], 16")
    e("s_load_dwordx2 s[36:37], s[0:1], 56")
    e(f"v_lshrrev_b32 v{T0}, 6, v0")
    e(f"v_and_b32 v{LANE}, 63, v0")
    e(f"v_readfirstlane_b32 s{W}, v{T0}")
    e("s_and_b32 s25, s2, 1")
    e("s_lshl_b32 s25, s25, 3")
    e("s_bfe_u32 s26, s2, 0x30003")
    e("s_add_u32 s25, s25, s26")
    e("s_bfe_u32 s26, s2, 0x20001")
    e("s_lshl_b32 s26, s26, 3")
    e("s_lshr_b32 s27, s2, 6")
    e("s_add_u32 s26, s26, s27")
    e("s_lshl_b32 s27, s25, 5")
    e("s_add_u32 s27, s27, s26")
    g4 = T0
    e(f"v_lshrrev_b32 v{g4}, 4, v{LANE}")
    e(f"v_and_b32 v{T1}, 2, v{g4}")
    e(f"v_and_b32 v{T2}, 3, v{LANE}")
    e(f"v_xor_b32 v{T1}, v{T1}, v{T2}")
    e(f"v_lshlrev_b32 v{T1}, 4, v{T1}")
    e(f"v_lshrrev_b32 v{T2}, 2, v{LANE}")
    e(f"v_lshl_add_u32 v{T1}, v{T2}, 11, v{T1}")
    e(f"s_lshl_b32 s38, s{W}, 16")
    e(f"v_add_u32 v{VXM(0)}, s38, v{T1}")
    e(f"v_add_u32 v{VXM(1)}, {32768 - 1024}, v{VXM(0)}")
    e(f"v_and_b32 v{T1}, 15, v{LANE}")
    e(f"v_lshlrev_b32 v{T2}, 1, v{g4}")
    e(f"v_xor_b32 v{T1}, v{T1}, v{T2}")
    e(f"s_and_b32 s39, s{W}, 1")
    e(f"s_lshl_b32 s40, s39, 3")
    e(f"v_xor_b32 v{T2}, s40, v{T1}")
    e(f"v_lshlrev_b32 v{T2}, 4, v{T2}")
    e(f"v_lshl_add_u32 v{T3}, v{g4}, 13, v{T2}")
    e(f"v_add_u32 v{VWQ(0)}, s38, v{T3}")
    e(f"v_add_u32 v{VWQ(1)}, {32768 - 1024}, v{VWQ(0)}")
    e(f"v_lshl_add_u32 v{T3}, v{g4}, 11, v{T2}")
    e(f"s_lshl_b32 s40, s{W}, 13")
    e(f"s_add_u32 s40, s40, {128 * 2048}")
    e(f"v_add_u32 v{VX8}, s40, v{T3}")
    e(f"v_lshlrev_b32 v{T1}, 4, v{T1}")
    e(f"v_lshl_add_u32 v{T1}, v{g4}, 8, v{T1}")
    e(f"s_lshl_b32 s41, s{W}, 12")
    e(f"v_add_u32 v{VKV(0)}, s41, v{T1}")
    e(f"v_xor_b32 v{VKV(1)}, 0x80, v{VKV(0)}")
    e(f"s_lshl_b32 s42, s{W}, 11")
    e(f"s_lshl_b32 s43, s{W}, 10")
    e.wait(lgkm=0)
    e("s_mul_i32 s44, s25, 294912")
    if OPT["abl_hot"]:
        e("s_mov_b32 s44, 0")
    e(f"s_add_u32 s{SX}, s28, s44")
    e(f"s_addc_u32 s{SX + 1}, s29, 0")
    e(f"s_mov_b32 s{SX + 2}, 294912")
    e(f"s_mov_b32 s{SX + 3}, 0x20000")
    e("s_lshl_b32 s44, s26, 8")
    if OPT["abl_hot"]:
        e("s_mov_b32 s44, 0")
    e(f"s_add_u32 s{SW}, s34, s44")
    e(f"s_addc_u32 s{SW + 1}, s35, 0")
    e(f"s_sub_u32 s{SW + 2}, 8388608, s44")
    e(f"s_mov_b32 s{SW + 3}, 0x20000")

    def dma_x(pair):
        out = []
        for hh in range(2):
            st = 2 * pair + hh
            out.append(f"s_add_u32 m0, s42, {XM + 8192 * (st % 5)}")
            out.append(f"s_mov_b32 s45, {st * 64}")
            out.append((f"buffer_load_dwordx4 v{VXM(0)}, {sr(SX)}, s45 offen {xf} lds", ("q", st)))
            out.append((f"buffer_load_dwordx4 v{VXM(1)}, {sr(SX)}, s45 offen offset:1024 {xf} lds", ("q", st)))
        return out

    def dma_x8(grp):
        return [f"s_add_u32 m0, s43, {X8 + 4096 * (grp % 2)}",
                f"s_mov_b32 s45, {grp * 256}",
                (f"buffer_load_dwordx4 v{VX8}, {sr(SX)}, s45 offen {xf} lds", ("q", 4 * grp))]

    def dma_wq(st):
        return [f"s_add_u32 m0, s42, {WQ + 8192 * (st % 4)}",
                f"s_mov_b32 s45, {st * 262144}",
                (f"buffer_load_dwordx4 v{VWQ(0)}, {sr(SW)}, s45 offen {wf} lds", ("q", st)),
                (f"buffer_load_dwordx4 v{VWQ(1)}, {sr(SW)}, s45 offen offset:1024 {wf} lds", ("q", st))]

    def emit(items):
        for it in items:
            if isinstance(it, tuple):
                e(it[0], it[1])
            elif callable(it):
                it()
            else:
                e(it)

    emit(dma_x(0) + dma_x8(0) + dma_wq(0) + dma_wq(1))
    e("s_lshl_b32 s44, s27, 17")
    e(f"s_add_u32 s{SK}, s30, s44")
    e(f"s_addc_u32 s{SK + 1}, s31, 0")
    e(f"s_mov_b32 s{SK + 2}, 131072")
    e(f"s_mov_b32 s{SK + 3}, 0x20000")
    e(f"s_add_u32 s{SV}, s32, s44")
    e(f"s_addc_u32 s{SV + 1}, s33, 0")
    e(f"s_mov_b32 s{SV + 2}, 131072")
    e(f"s_mov_b32 s{SV + 3}, 0x20000")
    e("s_mul_i32 s44, s27, 36864")
    e(f"s_add_u32 s{SO}, s36, s44")
    e(f"s_addc_u32 s{SO + 1}, s37, 0")
    e(f"s_mov_b32 s{SO + 2}, 36864")
    e(f"s_mov_b32 s{SO + 3}, 0x20000")
    emit(dma_x(1) + dma_wq(2) + dma_wq(3) + dma_x8(1))
    e("s_getpc_b64 s[46:47]")
    e("s_lshr_b32 s44, s2, 3")
    e("s_lshl_b32 s44, s44, 2")
    e(f"s_add_u32 s44, s44, s{W}")
    e("s_and_b32 s44, s44, 31")
    e("s_min_u32 s44, s44, CODE_KB_P")
    e("s_lshl_b32 s44, s44, 10")
    e(f"v_lshl_add_u32 v{T1}, v{LANE}, 4, s44")
    e(f"global_load_dwordx4 {vr(DUMMY)}, v{T1}, s[46:47]")
    q, g = T0, T1
    e(f"v_and_b32 v{q}, 15, v{LANE}")
    e(f"v_lshrrev_b32 v{g}, 4, v{LANE}")
    e(f"v_and_b32 v{T2}, 7, v{q}")
    e(f"v_lshlrev_b32 v{T2}, 1, v{T2}")
    e(f"v_xor_b32 v{T2}, v{T2}, v{g}")
    e(f"v_lshlrev_b32 v{T2}, 4, v{T2}")
    e(f"v_lshl_add_u32 v{AK(0)}, v{q}, 8, v{T2}")
    for u in range(1, 4):
        e(f"v_xor_b32 v{AK(u)}, {64 * u}, v{AK(0)}")
    e(f"v_lshrrev_b32 v{T2}, 2, v{q}")
    e(f"v_and_b32 v{T2}, 2, v{T2}")
    e(f"v_xor_b32 v{T2}, v{T2}, v{g}")
    e(f"v_lshlrev_b32 v{T2}, 4, v{T2}")
    e(f"v_lshl_add_u32 v{T2}, v{q}, 6, v{T2}")
    e(f"s_lshl_b32 s44, s39, 12")
    e(f"v_add_u32 v{AB}, s44, v{T2}")
    rp, cq = T2, T3
    e(f"v_bfe_u32 v{rp}, v{LANE}, 2, 2")
    e(f"v_and_b32 v{cq}, 3, v{LANE}")
    e(f"v_lshlrev_b32 v{cq}, 3, v{cq}")
    e(f"v_lshrrev_b32 v{q}, 2, v{LANE}")
    e(f"v_lshl_add_u32 v{AV(0)}, v{q}, 8, v{cq}")
    e(f"v_and_b32 v{q}, 7, v{q}")
    e(f"v_lshl_add_u32 v{AV(0)}, v{q}, 5, v{AV(0)}")
    for T in range(1, 8):
        e(f"v_xor_b32 v{AV(T)}, {32 * T}, v{AV(0)}")
    e(f"v_lshl_add_u32 v{q}, v{g}, 3, v{rp}")
    e(f"v_lshl_add_u32 v{q}, v{q}, 8, v{cq}")
    e(f"v_lshl_add_u32 v{q}, v{rp}, 5, v{q}")
    e(f"v_and_b32 v{g}, 1, v{g}")
    e(f"v_lshl_add_u32 v{q}, v{g}, 7, v{q}")
    e(f"s_lshr_b32 s44, s{W}, 1")
    e(f"s_lshl_b32 s44, s44, 7")
    e(f"s_lshl_b32 s48, s39, 6")
    e(f"s_or_b32 s48, s48, s44")
    e(f"v_xor_b32 v{q}, s48, v{q}")
    e(f"v_add_u32 v{AA(0)}, {WQ}, v{q}")
    for t in range(1, 4):
        e(f"v_xor_b32 v{AA(t)}, {32 * t}, v{AA(0)}")

    def q_reads(st):
        p = st & 1
        out = []
        for t in range(4):
            for ee in range(2):
                out.append(f"ds_read_b64_tr_b16 {vr(FA(p, t) + 2 * ee, 2)}, v{AA(t)} offset:{8192 * (st % 4) + 1024 * ee}")
        rb = [f"ds_read_b128 {vr(FB(p, i))}, v{AB} offset:{XM + 8192 * (st % 5) + 1024 * i}" for i in range(4)]
        rb.append(f"ds_read_b128 {vr(FB(p, 4))}, v{AK(st & 3)} offset:{X8 + 4096 * ((st >> 2) & 1)}")
        return interleave(out, rb)

    def q_sync(upto):
        n = e.vm_needed_for_tags(lambda t: t[0] == "q" and t[1] <= upto)
        e.wait(vm=n, lgkm=0)
        e("s_barrier")

    q_sync(1)
    stamp(e, 1)
    emit(q_reads(0))
    e.wait(lgkm=0)
    e("s_barrier")

    def kv_pf(n, i):
        srd = SK if n % 2 == 0 else SV
        so = "0" if n < 2 else "s49"
        return (f"buffer_load_dwordx4 {vr(PF(n, i))}, v{VKV(i)}, {sr(srd)}, {so} offen offset:{1024 * i} {kvf}", ("pf", n))

    e("s_mov_b32 s49, 16384")
    PFSTEP = {1: 0, 7: 1, 13: 2, 19: 3}
    WADDR = T0
    e(f"v_lshl_add_u32 v{WADDR}, v{LANE}, 4, s41")
    for st in range(32):
        p = st & 1
        m = []
        for t in range(4):
            for i in range(4):
                c = "0" if st == 0 else vr(ACC(t, i))
                m.append(f"{MF} {vr(ACC(t, i))}, {vr(FA(p, t))}, {vr(FB(p, i))}, {c}")
            if t < 2:
                c = "0" if st == 0 else vr(ACC8(t))
                m.append(f"{MF} {vr(ACC8(t))}, {vr(FA(p, t))}, {vr(FB(p, 4))}, {c}")
        d = []
        if st + 4 < 32:
            d += dma_wq(st + 4)
        if st % 2 == 0 and st + 4 < 32:
            d += dma_x(st // 2 + 2)
        if st % 4 == 3 and st // 4 + 2 < 8:
            d += dma_x8(st // 4 + 2)
        if st in PFSTEP and not OPT["abl_nopf"]:
            d += [kv_pf(PFSTEP[st], i) for i in range(4)]
        if st < 31:
            fill = interleave(q_reads(st + 1), d)
            emit(interleave(m, fill, 0, 14))
            q_sync(st + 2)
        else:
            fill = [f"ds_write_b128 v{WADDR}, {vr(PF(n, i))} offset:{SLOT[n] + 1024 * i}" for n in range(2) for i in range(4)]
            emit(interleave(m, fill, 0, 16))
    stamp(e, 2)
    e(f"s_mov_b32 s50, {f32bits(math.log2(math.e) / math.sqrt(128.0)):#x}")
    q, g = T1, T2
    e(f"v_and_b32 v{q}, 15, v{LANE}")
    e(f"v_lshrrev_b32 v{g}, 4, v{LANE}")
    e(f"v_lshlrev_b32 v{g}, 3, v{g}")
    e(f"v_lshl_add_u32 v{g}, v{q}, 8, v{g}")
    e(f"v_and_b32 v{q}, 7, v{q}")
    e(f"v_lshl_add_u32 v{g}, v{q}, 5, v{g}")
    e(f"v_xor_b32 v{g}, s48, v{g}")
    e(f"v_add_u32 v{AA(0)}, {QIMG}, v{g}")
    e(f"s_lshl_b32 s44, s39, 14")
    for t in range(1, 4):
        e(f"v_xor_b32 v{AA(t)}, {32 * t}, v{AA(0)}")
    for t in range(2):
        a = ACC8(t)
        for r in range(4):
            e(f"v_mul_f32 v{a + r}, s50, v{a + r}")
        e(f"v_cvt_pk_bf16_f32 v{a}, v{a}, v{a + 1}")
        e(f"v_cvt_pk_bf16_f32 v{a + 1}, v{a + 2}, v{a + 3}")
        e(f"ds_write_b64 v{AA(t)}, {vr(a, 2)} offset:32768")
    for t in range(4):
        e(f"v_add_u32 v{AA(t)}, s44, v{AA(t)}")
    for t in range(4):
        for i in range(4):
            a = ACC(t, i)
            for r in range(4):
                e(f"v_mul_f32 v{a + r}, s50, v{a + r}")
            e(f"v_cvt_pk_bf16_f32 v{a}, v{a}, v{a + 1}")
            e(f"v_cvt_pk_bf16_f32 v{a + 1}, v{a + 2}, v{a + 3}")
            e(f"ds_write_b64 v{AA(t)}, {vr(a, 2)} offset:{4096 * i}")
    e(f"s_lshl_b32 s44, s{W}, 13")
    e(f"s_add_u32 s44, s44, {QIMG}")
    QA = lambda u: 136 + u
    QA8 = lambda u: 140 + u
    QA = lambda u: 192 + u
    QA8 = lambda u: 196 + u
    for u in range(4):
        e(f"v_add_u32 v{QA(u)}, s44, v{AK(u)}")
        e(f"v_add_u32 v{QA8(u)}, {QIMG + 32768}, v{AK(u)}")
    e.wait(lgkm=0)
    e("s_barrier")
    for u in range(4):
        e(f"ds_read_b128 {vr(Q(0, u))}, v{QA(u)}")
        e(f"ds_read_b128 {vr(Q(1, u))}, v{QA(u)} offset:4096")
        e(f"ds_read_b128 {vr(Q(2, u))}, v{QA8(u)}")
    for qt in range(3):
        for r in range(4):
            e(f"v_mov_b32 v{NEGM(qt) + r}, 0")
        e(f"v_mov_b32 v{L(qt)}, 0")
    e.wait(vm=0, lgkm=0)
    e("s_barrier")
    for n in range(2, 4):
        for i in range(4):
            e(f"ds_write_b128 v{WADDR}, {vr(PF(n, i))} offset:{SLOT[n] + 1024 * i}")
    if OPT["prewarm"]:
        e("s_load_dwordx2 s[46:47], s[0:1], 32")
        e("s_lshl_b32 s44, s2, 14")
        e(f"v_add_u32 v{T1}, s44, v{WADDR}")
        e.wait(lgkm=0)
        for i in range(4):
            e(f"global_load_dwordx4 {vr(64 + 4 * i)}, v{T1}, s[46:47] offset:{1024 * i}")
        e.wait(vm=0)
    stamp(e, 3)

    e.auto_vm = False
    THR = 10.0
    e(f"s_mov_b32 s50, {f32bits(THR):#x}")
    e("s_mov_b32 s51, 0xff800000")
    e("s_mov_b32 s52, 0xff800000")
    e("s_mov_b32 s53, 0")
    e("s_mov_b32 s54, 32768")
    D = 6

    def k_read(par, f):
        kt, u = f // 4, f % 4
        return [f"ds_read_b128 {vr(F(f))}, v{AK(u)} offset:{SLOT[2 * par] + 4096 * kt}"]

    def v_read(par, f):
        s, T = f // 8, f % 8
        return [f"ds_read_b64_tr_b16 {vr(F(f) + 2 * ee, 2)}, v{AV(T)} offset:{SLOT[2 * par + 1] + 4096 * (2 * s + ee)}" for ee in range(2)]

    def refill(slot, srd, bump):
        out = [lambda: e.wait(vm=8, lgkm=0), "s_barrier", f"s_add_u32 m0, s41, {slot}"]
        if not OPT["abl_nokv"]:
            out += [f"buffer_load_dwordx4 v{VKV(i)}, {sr(srd)}, s54 offen offset:{1024 * i} {kvf} lds" for i in range(4)]
        if bump:
            out.append("s_add_u32 s54, s54, 16384")
        return out

    slow_paths = []

    def slow_path(name, qts, floor, st):
        e.restore(st)
        e.label(name)
        for qt in qts:
            t, x = TMP(qt), F(0) if False else None
        for qt in qts:
            t = TMP(qt)
            c = NEGM(qt) + 1
            e(f"v_mov_b32 v{c}, v{t}")
            e(f"v_permlane32_swap_b32 v{c}, v{t}")
            e(f"v_max_f32 v{t}, v{t}, v{c}")
            e(f"v_mov_b32 v{c}, v{t}")
            e(f"v_permlane16_swap_b32 v{c}, v{t}")
            e(f"v_max_f32 v{t}, v{t}, v{c}")
            e(f"v_max_f32 v{t}, s{floor}, v{t}")
            e(f"v_sub_f32 v{NEGM(qt)}, v{NEGM(qt)}, v{t}")
            for r in range(1, 4):
                e(f"v_mov_b32 v{NEGM(qt) + r}, v{NEGM(qt)}")
            for kt in range(4):
                for r in range(4):
                    e(f"v_sub_f32 v{S(kt, qt) + r}, v{S(kt, qt) + r}, v{t}")
        e(f"s_cmp_eq_u32 s{floor}, 0")
        e(f"s_cbranch_scc1 {name}_resc")
        st1 = e.snapshot()
        for qt in qts:
            for T in range(8):
                for r in range(0, 4, 2):
                    e(f"v_mov_b64 {vr(O(qt, T) + r, 2)}, 0")
        e(f"s_mov_b32 s{floor}, 0")
        e("s_nop 1")
        e(f"s_branch {name}_ret")
        e.restore(st1)
        e.label(name + "_resc")
        for qt in qts:
            t = TMP(qt)
            e(f"v_exp_f32 v{t}, -v{t}")
            e(f"v_mul_f32 v{L(qt)}, v{L(qt)}, v{t}")
            for T in range(8):
                for r in range(4):
                    e(f"v_mul_f32 v{O(qt, T) + r}, v{O(qt, T) + r}, v{t}")
        e("s_nop 1")
        e(f"s_branch {name}_ret")

    def tile_code(par, nq, name):
        qts = list(range(nq))
        items = []
        pend_max = []
        for f in range(16):
            kt, u = f // 4, f % 4
            m = []
            for qt in qts:
                c = vr(NEGM(qt)) if u == 0 else vr(S(kt, qt))
                m.append(f"{MF} {vr(S(kt, qt))}, {vr(F(f))}, {vr(Q(qt, u))}, {c}")
            fill = []
            nf = f + D
            if nf < 16:
                fill += k_read(par, nf)
            else:
                if nf == 16:
                    fill += refill(SLOT[2 * par], SK, False)
                fill += v_read(par, nf - 16)
            if u >= 2 and kt >= 1:
                k0 = kt - 1
                for qt in qts:
                    s = S(k0, qt)
                    if u == 2:
                        if k0 == 0:
                            fill.append(f"v_max_f32 v{TMP(qt)}, v{s}, v{s + 1}")
                        else:
                            fill.append(f"v_max3_f32 v{TMP(qt)}, v{s}, v{s + 1}, v{TMP(qt)}")
                    else:
                        fill.append(f"v_max3_f32 v{TMP(qt)}, v{s + 2}, v{s + 3}, v{TMP(qt)}")
            items += interleave(m, fill)
        emit(items)
        for qt in qts:
            s = S(3, qt)
            e(f"v_max3_f32 v{TMP(qt)}, v{s}, v{s + 1}, v{TMP(qt)}")
            e(f"v_max3_f32 v{TMP(qt)}, v{s + 2}, v{s + 3}, v{TMP(qt)}")
        for grp, floor in (([0, 1], 51), ([2], 52)):
            if grp[0] >= nq:
                continue
            nm = f"{name}_sl{grp[0]}"
            e(f"v_cmp_lt_f32 vcc, s50, v{TMP(grp[0])}")
            if len(grp) > 1:
                e(f"v_cmp_lt_f32 s[56:57], s50, v{TMP(grp[1])}")
                e("s_or_b64 vcc, vcc, s[56:57]")
            e(f"s_or_b32 s55, vcc_lo, s{floor}".replace("vcc_lo", "vcc_lo"))
            e("s_or_b32 s55, s55, vcc_hi")
            e(f"s_cbranch_scc1 {nm}")
            slow_paths.append((nm, grp, floor, e.snapshot()))
            e.label(nm + "_ret")

        def softmax(s):
            out = []
            for qt in qts:
                a, b = S(2 * s, qt), S(2 * s + 1, qt)
                regs = [a, a + 1, a + 2, a + 3, b, b + 1, b + 2, b + 3]
                ex = [f"v_exp_f32 v{r}, v{r}" for r in regs]
                ad = [f"v_add_f32 v{L(qt)}, v{L(qt)}, v{r}" for r in regs]
                cv = [f"v_cvt_pk_bf16_f32 v{a + k}, v{regs[2 * k]}, v{regs[2 * k + 1]}" for k in range(4)]
                out += [ex[0], ex[1], ex[2], ad[0], ex[3], ad[1], cv[0], ex[4], ad[2], ex[5], ad[3], cv[1],
                        ex[6], ad[4], ex[7], ad[5], cv[2], ad[6], ad[7], cv[3]]
            return out

        emit(softmax(0))
        sm1 = softmax(1)
        per = (len(sm1) + 7) // 8
        items = []
        for f in range(16):
            s, T = f // 8, f % 8
            m = [f"{MF} {vr(O(qt, T))}, {vr(F(f))}, {vr(S(2 * s, qt))}, {vr(O(qt, T))}" for qt in qts]
            fill = []
            nf = f + D
            if nf < 16:
                fill += v_read(par, nf)
            else:
                if nf == 16:
                    fill += refill(SLOT[2 * par + 1], SV, True)
                fill += k_read(par ^ 1, nf - 16)
            if s == 0:
                fill += sm1[per * T: per * (T + 1)]
            items += interleave(m, fill)
        emit(items)

    for f in range(D):
        emit(k_read(0, f))
    e.wait(lgkm=D)
    entry = e.snapshot()
    exits = []
    mark = len(e.lines)
    cnt0 = dict(e.count)
    for rounds in range(2):
        del e.lines[mark:]
        e.count = dict(cnt0)
        slow_paths.clear()
        e.merge([entry] + exits)
        e.label("P_loop")
        exits = []
        for par in range(2):
            e("s_and_b32 s55, s53, 3")
            e(f"s_cmp_eq_u32 s55, s{W}")
            e(f"s_cbranch_scc1 P_t{par}_v3")
            st = e.snapshot()
            tile_code(par, 2, f"P_t{par}_v2")
            e(f"s_branch P_t{par}_join")
            a = e.snapshot()
            e.restore(st)
            e.label(f"P_t{par}_v3")
            tile_code(par, 3, f"P_t{par}_v3")
            b = e.snapshot()
            e.merge([a, b])
            e.label(f"P_t{par}_join")
            e("s_add_u32 s53, s53, 1")
        e("s_cmp_lt_u32 s53, 8")
        e("s_cbranch_scc1 P_loop")
        exits = [e.snapshot()]
    stamp(e, 4)
    e.wait(vm=0, lgkm=0)
    e.auto_vm = True
    e("s_barrier")
    LN = S(0, 0)
    X0, X1, X2, X3 = LN + 1, LN + 2, LN + 3, LN + 4
    e(f"v_mbcnt_lo_u32_b32 v{LN}, -1, 0")
    e(f"v_mbcnt_hi_u32_b32 v{LN}, -1, v{LN}")
    for qt in range(3):
        l = L(qt)
        e(f"v_mov_b32 v{X0}, v{l}")
        e(f"v_permlane32_swap_b32 v{X0}, v{l}")
        e(f"v_add_f32 v{l}, v{l}, v{X0}")
        e(f"v_mov_b32 v{X0}, v{l}")
        e(f"v_permlane16_swap_b32 v{X0}, v{l}")
        e(f"v_add_f32 v{l}, v{l}, v{X0}")
    e(f"s_lshl_b32 s44, s{W}, 13")
    e(f"v_lshl_add_u32 v{X1}, v{LN}, 4, s44")
    for T in range(8):
        e(f"ds_write_b128 v{X1}, {vr(O(2, T))} offset:{1024 * T}")
    e(f"s_lshl_b32 s44, s{W}, 9")
    e(f"v_lshl_add_u32 v{X2}, v{LN}, 3, s44")
    e(f"v_mov_b32 v{NEGM(2) + 1}, v{L(2)}")
    e(f"ds_write_b64 v{X2}, {vr(NEGM(2), 2)} offset:32768")
    e(f"v_lshlrev_b32 v{X3}, 4, v{LN}")
    e(f"v_add_u32 v{X0}, s42, v{X3}")
    osf = OPT["ostore"]
    for qt in range(2):
        e(f"v_rcp_f32 v{L(qt)}, v{L(qt)}")
    for qt in range(2):
        for u in range(4):
            a = O(qt, 2 * u)
            for r in range(8):
                e(f"v_mul_f32 v{a + r}, v{a + r}, v{L(qt)}")
            for k in range(4):
                e(f"v_cvt_pk_bf16_f32 v{a + k}, v{a + 2 * k}, v{a + 2 * k + 1}")
            e(f"s_mov_b32 s45, {u * 9216}")
            e(f"buffer_store_dwordx4 {vr(a)}, v{X0}, {sr(SO)}, s45 offen offset:{1024 * qt} {osf}")
    e.wait(lgkm=0)
    e("s_barrier")
    e(f"v_add_u32 v{X1}, s42, v{X3}")
    e(f"v_lshlrev_b32 v{X2}, 3, v{LN}")
    ST = lambda i: 96 + 2 * i
    PO = lambda i, k: 104 + 8 * i + 4 * k
    for i in range(4):
        e(f"ds_read_b64 {vr(ST(i), 2)}, v{X2} offset:{32768 + 512 * i}")
    for i in range(4):
        for k in range(2):
            e(f"ds_read_b128 {vr(PO(i, k))}, v{X1} offset:{8192 * i + 1024 * k}")
    mn = 136
    e(f"v_min_f32 v{mn}, v{ST(0)}, v{ST(1)}")
    e(f"v_min3_f32 v{mn}, v{ST(2)}, v{ST(3)}, v{mn}")
    for i in range(4):
        e(f"v_sub_f32 v{ST(i)}, v{mn}, v{ST(i)}")
    for i in range(4):
        e(f"v_exp_f32 v{ST(i)}, v{ST(i)}")
    e(f"v_mul_f32 v{mn}, v{ST(0)}, v{ST(0) + 1}")
    for i in range(1, 4):
        e(f"v_fma_f32 v{mn}, v{ST(i)}, v{ST(i) + 1}, v{mn}")
    e(f"v_rcp_f32 v{mn}, v{mn}")
    for i in range(4):
        e(f"v_mul_f32 v{ST(i)}, v{ST(i)}, v{mn}")
    a = PO(0, 0)
    for r in range(8):
        e(f"v_mul_f32 v{a + r}, v{a + r}, v{ST(0)}")
    for i in range(1, 4):
        for r in range(8):
            e(f"v_fma_f32 v{a + r}, v{PO(i, 0) + r}, v{ST(i)}, v{a + r}")
    for k in range(4):
        e(f"v_cvt_pk_bf16_f32 v{a + k}, v{a + 2 * k}, v{a + 2 * k + 1}")
    e(f"s_mul_i32 s45, s{W}, 9216")
    e(f"s_add_u32 s45, s45, 8192")
    e(f"buffer_store_dwordx4 {vr(a)}, v{X3}, {sr(SO)}, s45 offen {osf}")
    if OPT["stamp"]:
        e.wait(vm=0)
    stamp(e, 5)
    stamp_store(e, 6, 36, STAMP_OFF)
    e("s_endpgm")
    for sp in list(slow_paths):
        slow_path(*sp)


def consumer(e, idreg="s2"):
    SO, SW, SD = 4, 8, 12
    W = 24
    of, wf = OPT["oflag"], OPT["wflag"]
    ACC = lambda mt, t: 16 * mt + 4 * t
    FB = lambda p, mt: 144 + 36 * p + 4 * mt
    FA = lambda p, t: 216 + 16 * p + 4 * t
    AA = lambda t: 248 + t
    VB, VA, LANE, T0 = 252, 253, 254, 255
    stamp(e, 0)
    e("s_load_dwordx4 s[28:31], s[0:1], 32")
    e("s_load_dwordx2 s[36:37], s[0:1], 56")
    e(f"v_lshrrev_b32 v{T0}, 6, v0")
    e(f"v_and_b32 v{LANE}, 63, v0")
    e(f"v_readfirstlane_b32 s{W}, v{T0}")
    e(f"s_bfe_u32 s25, {idreg}, 0x20001")
    e("s_lshl_b32 s25, s25, 2")
    e(f"s_bfe_u32 s26, {idreg}, 0x20003")
    e("s_add_u32 s25, s25, s26")
    e(f"s_and_b32 s26, {idreg}, 1")
    e("s_lshl_b32 s26, s26, 3")
    e(f"s_bfe_u32 s27, {idreg}, 0x30005")
    e("s_add_u32 s26, s26, s27")
    e(f"s_mul_i32 s38, s{W}, 9216")
    e(f"v_lshl_add_u32 v{VB}, v{LANE}, 4, s38")
    e(f"v_lshrrev_b32 v{T0}, 4, v{LANE}")
    e(f"v_lshlrev_b32 v{T0}, 1, v{T0}")
    e(f"v_and_b32 v{VA}, 7, v{LANE}")
    e(f"v_xor_b32 v{VA}, v{VA}, v{T0}")
    e(f"v_lshlrev_b32 v{VA}, 4, v{VA}")
    e(f"v_lshrrev_b32 v{T0}, 3, v{LANE}")
    e(f"v_lshl_add_u32 v{VA}, v{T0}, 11, v{VA}")
    e(f"s_lshl_b32 s38, s{W}, 16")
    e(f"v_add_u32 v{VA}, s38, v{VA}")
    e(f"s_lshl_b32 s41, s{W}, 14")
    e(f"v_lshrrev_b32 v{T0}, 2, v{LANE}")
    e(f"v_and_b32 v{AA(1)}, 3, v{LANE}")
    e(f"v_lshlrev_b32 v{AA(1)}, 3, v{AA(1)}")
    e(f"v_lshl_add_u32 v{AA(0)}, v{T0}, 7, v{AA(1)}")
    e(f"v_bfe_u32 v{T0}, v{LANE}, 3, 2")
    e(f"v_xor_b32 v{T0}, s{W}, v{T0}")
    e(f"v_lshl_add_u32 v{AA(0)}, v{T0}, 5, v{AA(0)}")
    e(f"v_add_u32 v{AA(0)}, s41, v{AA(0)}")
    for t in range(1, 4):
        e(f"v_xor_b32 v{AA(t)}, {32 * t}, v{AA(0)}")
    e.wait(lgkm=0)
    e(f"s_mul_i32 s44, s25, {32 * 36864}")
    if OPT["abl_chot"]:
        e("s_mov_b32 s44, 0")
    e(f"s_add_u32 s{SO}, s36, s44")
    e(f"s_addc_u32 s{SO + 1}, s37, 0")
    e(f"s_mov_b32 s{SO + 2}, {32 * 36864}")
    e(f"s_mov_b32 s{SO + 3}, 0x20000")
    e("s_lshl_b32 s44, s26, 7")
    if OPT["abl_chot"]:
        e("s_mov_b32 s44, 0")
    e(f"s_add_u32 s{SW}, s28, s44")
    e(f"s_addc_u32 s{SW + 1}, s29, 0")
    e(f"s_sub_u32 s{SW + 2}, 8388608, s44")
    e(f"s_mov_b32 s{SW + 3}, 0x20000")
    e("s_mul_i32 s45, s25, 294912")
    e("s_add_u32 s44, s44, s45")
    e(f"s_add_u32 s{SD}, s30, s44")
    e(f"s_addc_u32 s{SD + 1}, s31, 0")
    e(f"s_sub_u32 s{SD + 2}, {16 * 294912}, s44")
    e(f"s_mov_b32 s{SD + 3}, 0x20000")
    e.auto_vm = False

    LEAD = int(OPT["lead"])

    def order(cnt, dst):
        if not LEAD:
            return [f"s_mov_b32 s{dst}, s{cnt}"]
        n = LEAD // 4
        assert LEAD == 4
        return [f"s_sub_u32 s{dst}, s{cnt}, 1",
                f"s_cmp_ge_i32 s{dst}, s54",
                f"s_addc_u32 s{dst}, s{dst}, 0",
                f"s_and_b32 s55, s{dst}, 3",
                f"s_cmp_eq_u32 s55, s53",
                f"s_cselect_b32 s55, 4, 0",
                f"s_add_u32 s{dst}, s{dst}, s55",
                f"s_cmp_eq_u32 s{cnt}, 0",
                f"s_cselect_b32 s{dst}, s53, s{dst}"]

    def dma_a(slot):
        out = [f"s_add_u32 m0, s41, {4096 * slot}"] + order(46, 48) + ["s_lshl_b32 s48, s48, 18"]
        for i in range(4):
            if i:
                out.append(f"s_add_u32 s48, s48, {16384 - 1024}")
            out.append(f"buffer_load_dwordx4 v{VA}, {sr(SW)}, s48 offen offset:{1024 * i} {wf} lds")
        out.append("s_add_u32 s46, s46, 1")
        return out

    def b_prep():
        return order(47, 49) + ["s_mul_i32 s49, s49, 36864", "s_add_u32 s50, s49, 4096", "s_add_u32 s51, s49, 8192", "s_add_u32 s47, s47, 1"]

    def b_load(p, mt):
        return f"buffer_load_dwordx4 {vr(FB(p, mt))}, v{VB}, {sr(SO)}, s{49 + mt // 4} offen offset:{1024 * (mt % 4)} {of}"

    def a_reads(p, slot):
        return [f"ds_read_b64_tr_b16 {vr(FA(p, t) + 2 * ee, 2)}, v{AA(t)} offset:{4096 * slot + 2048 * ee}"
                for t in range(4) for ee in range(2)]

    def emit(items):
        for it in items:
            if callable(it):
                it()
            else:
                e(it)

    e("s_mov_b32 s46, 0")
    e("s_mov_b32 s47, 0")
    e("s_add_u32 s53, s25, s26")
    e("s_and_b32 s53, s53, 3")
    e("s_add_u32 s54, s53, 28")
    emit(dma_a(0) + dma_a(1) + dma_a(2) + b_prep() + [b_load(0, mt) for mt in range(9)])
    emit(dma_a(3) + b_prep() + [b_load(1, mt) for mt in range(9)])
    for mt in range(9):
        for t in range(4):
            for r in range(0, 4, 2):
                e(f"v_mov_b64 {vr(ACC(mt, t) + r, 2)}, 0")
    e.wait(vm=30)
    stamp(e, 1)
    emit(a_reads(0, 0))
    e("s_mov_b32 s52, 8")
    entry = e.snapshot()
    exits = []
    mark = len(e.lines)
    cnt0 = dict(e.count)
    for rounds in range(2):
        del e.lines[mark:]
        e.count = dict(cnt0)
        e.merge([entry] + exits)
        e.label("C_loop")
        for st in range(4):
            p = st & 1
            e.wait(lgkm=0)
            emit(dma_a(st) + b_prep())
            rd = a_reads(p ^ 1, (st + 1) % 4)
            for mt in range(9):
                e.wait(vm=25)
                m = [f"{MF} {vr(ACC(mt, t))}, {vr(FA(p, t))}, {vr(FB(p, mt))}, {vr(ACC(mt, t))}" for t in range(4)]
                fill = rd[2 * mt: 2 * mt + 2] if mt < 4 else []
                emit(interleave(m, fill))
                e(b_load(p, mt))
        e("s_sub_u32 s52, s52, 1")
        e("s_cmp_lg_u32 s52, 0")
        e("s_cbranch_scc1 C_loop")
        exits = [e.snapshot()]
    stamp(e, 2)
    e.wait(vm=0, lgkm=0)
    e.auto_vm = True
    e("s_barrier")
    WA, RA = VB, VA
    e(f"s_mul_i32 s44, s{W}, 18432")
    e(f"v_lshl_add_u32 v{WA}, v{LANE}, 4, s44")
    e(f"s_xor_b32 s45, s{W}, 2")
    e(f"s_mul_i32 s44, s45, 18432")
    e(f"v_lshl_add_u32 v{RA}, v{LANE}, 4, s44")
    for mt in range(9):
        for k in range(2):
            e(f"ds_write_b128 v{WA}, {vr(ACC(mt, 2 + k))} offset:{1024 * (2 * mt + k)}")
    e.wait(lgkm=0)
    e("s_barrier")
    for mt in range(9):
        for k in range(2):
            e(f"ds_read_b128 {vr(ACC(mt, 2 + k))}, v{RA} offset:{1024 * (2 * mt + k)}")
    for mt in range(9):
        for k in (1, 0):
            for r in range(4):
                e(f"v_add_f32 v{ACC(mt, k) + r}, v{ACC(mt, k) + r}, v{ACC(mt, 2 + k) + r}")
    e.wait(lgkm=0)
    for mt in range(9):
        e(f"ds_write_b128 v{RA}, {vr(ACC(mt, 1))} offset:{1024 * mt}")
    e(f"s_xor_b32 s45, s{W}, 3")
    e(f"s_mul_i32 s44, s45, 18432")
    e(f"v_lshl_add_u32 v{WA}, v{LANE}, 4, s44")
    e.wait(lgkm=0)
    e("s_barrier")
    for mt in range(9):
        e(f"ds_read_b128 {vr(ACC(mt, 1))}, v{WA} offset:{1024 * mt}")
    IMG = lambda mt: 9216 + 2048 * mt if mt < 4 else (27648 + 2048 * (mt - 4) if mt < 8 else 46080)
    X0, X1 = AA(0), AA(1)
    e(f"v_lshrrev_b32 v{X0}, 5, v{LANE}")
    e(f"s_lshl_b32 s44, s{W}, 1")
    e(f"v_add_u32 v{X0}, s44, v{X0}")
    e(f"v_and_b32 v{X1}, 7, v{LANE}")
    e(f"v_xor_b32 v{X0}, v{X0}, v{X1}")
    e(f"v_lshlrev_b32 v{X0}, 4, v{X0}")
    e(f"v_bfe_u32 v{X1}, v{LANE}, 4, 1")
    e(f"v_lshl_add_u32 v{X0}, v{X1}, 3, v{X0}")
    e(f"v_and_b32 v{X1}, 15, v{LANE}")
    e(f"v_lshl_add_u32 v{X0}, v{X1}, 7, v{X0}")
    for mt in range(9):
        a = ACC(mt, 0)
        for r in range(4):
            e(f"v_add_f32 v{a + r}, v{a + r}, v{ACC(mt, 1) + r}")
        e(f"v_cvt_pk_bf16_f32 v{a}, v{a}, v{a + 1}")
        e(f"v_cvt_pk_bf16_f32 v{a + 1}, v{a + 2}, v{a + 3}")
        e(f"ds_write_b64 v{X0}, {vr(a, 2)} offset:{IMG(mt)}")
    X2, X3 = AA(2), AA(3)
    e(f"v_lshrrev_b32 v{X1}, 3, v{LANE}")
    e(f"v_and_b32 v{X2}, 7, v{LANE}")
    e(f"v_xor_b32 v{X2}, v{X2}, v{X1}")
    e(f"v_lshlrev_b32 v{X2}, 4, v{X2}")
    e(f"v_lshl_add_u32 v{X2}, v{X1}, 11, v{X2}")
    e(f"s_lshr_b32 s44, s{W}, 1")
    e(f"s_mul_i32 s44, s44, 18432")
    e(f"s_and_b32 s45, s{W}, 1")
    e(f"s_lshl_b32 s45, s45, 12")
    e(f"s_add_u32 s44, s44, s45")
    e(f"v_lshl_add_u32 v{X3}, v{LANE}, 4, s44")
    e(f"s_lshl_b32 s45, s{W}, 10")
    e(f"v_lshl_add_u32 v{X1}, v{LANE}, 4, s45")
    e.wait(lgkm=0)
    e("s_barrier")
    for i in range(4):
        e(f"ds_read_b128 {vr(4 * i)}, v{X3} offset:{9216 + 1024 * i}")
    e(f"ds_read_b128 {vr(16)}, v{X1} offset:{IMG(8)}")
    e(f"s_lshl_b32 s44, s{W}, 16")
    for i in range(4):
        e(f"buffer_store_dwordx4 {vr(4 * i)}, v{X2}, {sr(SD)}, s44 offen")
        e(f"s_add_u32 s44, s44, 16384")
    e(f"s_cmp_ge_u32 s{W}, 2")
    e("s_cbranch_scc1 C_done")
    e(f"s_lshl_b32 s44, s{W}, 14")
    e(f"s_add_u32 s44, s44, {128 * 2048}")
    e(f"buffer_store_dwordx4 {vr(16)}, v{X2}, {sr(SD)}, s44 offen")
    e.label("C_done")
    if OPT["stamp"]:
        e.wait(vm=0, lgkm=0)
    stamp(e, 3)
    stamp_store(e, 4, 36, STAMP_OFF + (1 << 20))
    e("s_endpgm")


def kd(name):
    return f""".section .rodata,"a"
.p2align 6
.amdhsa_kernel {name}
  .amdhsa_next_free_vgpr 256
  .amdhsa_next_free_sgpr 96
  .amdhsa_accum_offset 256
  .amdhsa_group_segment_fixed_size 0
  .amdhsa_kernarg_size 64
  .amdhsa_user_sgpr_count 2
  .amdhsa_user_sgpr_kernarg_segment_ptr 1
  .amdhsa_system_sgpr_workgroup_id_x 1
.end_amdhsa_kernel
"""


def main():
    out = HEADER
    out += f"; @launch kernel=att_kernel grid=({OPT['npw']},1,1) block=(256,1,1) lds=81920\n"
    out += "; @launch kernel=oproj_kernel grid=(256,1,1) block=(256,1,1) lds=81920\n"
    out += '.amdgcn_target "amdgcn-amd-amdhsa--gfx950"\n.text\n'
    e = Emitter()
    e.raw(".globl att_kernel\n.p2align 8\n.type att_kernel,@function\natt_kernel:")
    e("s_cmp_ge_u32 s2, 512")
    e("s_cbranch_scc1 P_exit")
    producer(e)
    e.label("P_exit")
    e("s_endpgm")
    e.label("P_end")
    e.raw(".set CODE_KB_P, (P_end - att_kernel) / 1024 - 1")
    sys.stderr.write("producer counts: %s\n" % e.count)
    out += e.text()
    e = Emitter()
    e.raw(".globl oproj_kernel\n.p2align 8\n.type oproj_kernel,@function\noproj_kernel:")
    e("s_cmp_ge_u32 s2, 256")
    e("s_cbranch_scc1 C_exit")
    consumer(e)
    e.label("C_exit")
    e("s_endpgm")
    sys.stderr.write("consumer counts: %s\n" % e.count)
    out += e.text()
    out += kd("att_kernel") + kd("oproj_kernel")
    open(sys.argv[1], "w").write(out)


main()
```

```python
import sys, struct, math
from asmlib import *

OPT = dict(stamp=False, kvflag="nt", xflag="", wflag="", oflag="", ostore="sc0 sc1",
           lead="4", qlead="4", prewarm=True, pf0="3", pfd="6", pfstag="0,1,3,4", npf="4", abl_noload=False, abl_not8=False, gap="4", dbg=False)
for a in sys.argv[2:]:
    k, v = a.split("=", 1)
    assert k in OPT, k
    OPT[k] = {"True": True, "False": False}.get(v, v)

HEADER = """; Kernarg layout for this problem (64 bytes, ptrs only, base s[0:1]):
"""


def f32bits(x):
    return struct.unpack("<I", struct.pack("<f", x))[0]


MF = "v_mfma_f32_16x16x32_bf16"
STAMP_OFF = 64 << 20
SPIN_MAX = 1 << 18


def stamp(e, idx):
    if OPT["stamp"] or OPT["dbg"]:
        e(f"s_memrealtime s[{60 + 2 * idx}:{61 + 2 * idx}]")
        e(f"s_memtime s[{76 + 2 * idx}:{77 + 2 * idx}]")
        if idx == 0:
            e("s_mov_b32 s92, 0")
        if idx == 2:
            e("s_mov_b32 s93, s92")
            e("s_mov_b32 s92, 0")


def stamp_store(e, n, ws_lo, base_off, rec):
    if OPT["dbg"] and (n == 6 or base_off != STAMP_OFF):
        lab = "DBG_skip%d" % n
        e("s_or_b32 s58, s2, s24")
        e("s_cmp_lg_u32 s58, 0")
        e(f"s_cbranch_scc1 {lab}")
        e(f"s_add_u32 s56, s{ws_lo}, {STAMP_OFF}")
        e(f"s_addc_u32 s57, s{ws_lo + 1}, 0")
        e.wait(lgkm=0)
        e("v_mov_b32 v0, 0")
        if n == 6:
            for i in range(6):
                e(f"v_mov_b32 v1, s{60 + 2 * i}")
                e(f"global_store_dword v0, v1, s[56:57] offset:{4 * i}")
            for i in range(1, 6):
                e(f"s_sub_u32 s58, s{76 + 2 * i}, s{74 + 2 * i}")
                e(f"v_mov_b32 v1, s58")
                e(f"global_store_dword v0, v1, s[56:57] offset:{20 + 4 * i}")
        else:
            for i in range(3):
                e(f"global_load_dwordx4 v[{4 + 4 * i}:{7 + 4 * i}], v0, s[56:57] offset:{16 * i}")
            e("s_load_dwordx2 s[56:57], s[0:1], 48")
            e.wait(vm=0, lgkm=0)
            for i in range(1, 6):
                e(f"v_sub_u32 v{4 + i}, v{4 + i}, v4")
            for i in range(4):
                e(f"v_sub_u32 v{16 + i}, s{60 + 2 * i}, v4")
            for i in range(4):
                e(f"global_store_dwordx4 v0, v[{4 + 4 * i}:{7 + 4 * i}], s[56:57] offset:{16 * i}")
        e.label(lab)
    if not OPT["stamp"]:
        return
    e.wait(lgkm=0)
    e("v_mov_b32 v0, 0")
    for r in rec:
        e(r)
    e(f"s_lshl_b32 s58, s58, 6")
    e(f"s_add_u32 s58, s58, {base_off}")
    e(f"s_add_u32 s56, s{ws_lo}, s58")
    e(f"s_addc_u32 s57, s{ws_lo + 1}, 0")
    for i in range(n):
        e(f"v_mov_b32 v1, s{60 + 2 * i}")
        e(f"global_store_dword v0, v1, s[56:57] offset:{4 * i}")
    for i in range(n):
        e(f"v_mov_b32 v1, s{76 + 2 * i}")
        e(f"global_store_dword v0, v1, s[56:57] offset:{32 + 4 * i}")
    e(f"v_mov_b32 v1, s93")
    e(f"global_store_dword v0, v1, s[56:57] offset:24")
    e(f"v_mov_b32 v1, s92")
    e(f"global_store_dword v0, v1, s[56:57] offset:28")


def mk_emit(e):
    def emit(items):
        for it in items:
            if isinstance(it, tuple):
                e(it[0], it[1])
            elif callable(it):
                it()
            else:
                e(it)
    return emit


XR = 98304
WQREG = lambda st: 16384 * [(0, 1), (3, 2), (4, 5)][((st >> 1) - 13) % 3][st & 1]
KS, VS = 0, 49152
QIA, QIB = 89856, 126720
MRG = 98304
FLG = 163584
F_FULL, F_FREE, F_GB, F_GB1 = 0, 16, 32, 48
W = 24
MF16 = "v_mfma_f32_16x16x16_bf16"
THR = 10.0


def blocking_poll4(e, name, addr, off, tmp, need):
    e(f"s_mov_b32 s59, {SPIN_MAX}")
    e.label(name)
    e(f"ds_read_b32 v{tmp}, v{addr} offset:{off}")
    e.wait(lgkm=0)
    e(f"v_cmp_lt_u32 s[56:57], v{tmp}, {need}")
    e("s_cmp_eq_u64 s[56:57], 0")
    e(f"s_cbranch_scc1 {name}_ok")
    e("s_sleep 1")
    e("s_sub_u32 s59, s59, 1")
    e("s_cmp_lg_u32 s59, 0")
    e(f"s_cbranch_scc1 {name}")
    e.label(name + "_ok")
    if OPT["stamp"]:
        e(f"s_sub_u32 s59, {SPIN_MAX + 1}, s59")
        e("s_add_u32 s92, s92, s59")
        e("s_add_u32 s92, s92, 0x10000")


def kv_addr_setup(e, LANE, AK, AV, T, xor_sgpr, add_k, add_v):
    T0, T1, T2, T3 = T
    q, g = T0, T1
    e(f"v_and_b32 v{q}, 15, v{LANE}")
    e(f"v_lshrrev_b32 v{g}, 4, v{LANE}")
    e(f"v_and_b32 v{T2}, 7, v{q}")
    e(f"v_lshlrev_b32 v{T2}, 1, v{T2}")
    e(f"v_xor_b32 v{T2}, v{T2}, v{g}")
    e(f"v_lshlrev_b32 v{T2}, 4, v{T2}")
    e(f"v_lshl_add_u32 v{AK(0)}, v{q}, 8, v{T2}")
    if add_k is not None:
        e(f"v_add_u32 v{AK(0)}, {add_k}, v{AK(0)}")
    for u in range(1, 4):
        e(f"v_xor_b32 v{AK(u)}, {64 * u}, v{AK(0)}")
    e(f"v_and_b32 v{T3}, 3, v{LANE}")
    e(f"v_lshlrev_b32 v{T3}, 3, v{T3}")
    e(f"v_lshrrev_b32 v{T2}, 2, v{LANE}")
    e(f"v_lshl_add_u32 v{AV(0)}, v{T2}, 8, v{T3}")
    e(f"v_and_b32 v{T2}, 7, v{T2}")
    e(f"v_lshl_add_u32 v{AV(0)}, v{T2}, 5, v{AV(0)}")
    if xor_sgpr is not None:
        e(f"v_xor_b32 v{AV(0)}, {xor_sgpr}, v{AV(0)}")
    e(f"v_add_u32 v{AV(0)}, {add_v}, v{AV(0)}")
    for Tt in range(1, 8):
        e(f"v_xor_b32 v{AV(Tt)}, {32 * Tt}, v{AV(0)}")


def lane_reduce(e, op, x, t):
    e(f"v_mov_b32 v{t}, v{x}")
    e(f"v_permlane32_swap_b32 v{t}, v{x}")
    e(f"{op} v{x}, v{x}, v{t}")
    e(f"v_mov_b32 v{t}, v{x}")
    e(f"v_permlane16_swap_b32 v{t}, v{x}")
    e(f"{op} v{x}, v{x}, v{t}")


def o_srd(e, SO):
    e("s_mul_i32 s44, s27, 36864")
    e(f"s_add_u32 s{SO}, s36, s44")
    e(f"s_addc_u32 s{SO + 1}, s37, 0")
    e(f"s_mov_b32 s{SO + 2}, {2 * 36864}")
    e(f"s_mov_b32 s{SO + 3}, 0x20000")


def joined(e, states):
    st = states[0].copy()
    for s in states[1:]:
        st.hist += [list(h) for h in s.hist]
    return st


def compute_group(e):
    emit = mk_emit(e)
    SO = 20
    O = lambda qt, T: 32 * qt + 4 * T
    Q = lambda qt, u: 64 + 16 * qt + 4 * u
    S = lambda par, kt, qt: 96 + 32 * par + 16 * qt + 4 * kt
    F = lambda i: 160 + 4 * (i % 16)
    NEGM = lambda qt: 224 + 4 * qt
    L = lambda qt: 232 + qt
    TMP = lambda qt: 234 + qt
    FD = 237
    AK = lambda u: 238 + u
    AV = lambda T: 242 + T
    FA_, FQ, PL = 250, 251, 252
    ACC = lambda t, qt: 16 * qt + 4 * t
    FA = lambda p, t: 144 + 16 * p + 4 * t
    NB = 8
    FB = lambda k: 176 + 4 * (k % NB)
    AA = lambda t: 208 + t
    AH = lambda t: 212 + t
    AB, LANE = 216, 217
    T0, T1, T2, T3 = 218, 219, 220, 221
    late = []

    e("s_setprio 3")
    e(f"v_and_b32 v{LANE}, 63, v0")
    e(f"v_mov_b32 v{T0}, 0")
    e(f"v_lshlrev_b32 v{T1}, 2, v{LANE}")
    e(f"v_add_u32 v{T1}, {FLG}, v{T1}")
    e(f"ds_write_b32 v{T1}, v{T0}")
    e(f"s_lshl_b32 s44, s{W}, 2")
    e(f"s_add_u32 s44, s44, {FLG}")
    e(f"v_mov_b32 v{FA_}, s44")
    e(f"v_and_b32 v{FQ}, 0xfffffe0c, v{T1}")
    e(f"v_or_b32 v{FQ}, {FLG & 0x1f0}, v{FQ}")
    e.wait(lgkm=0)
    e("s_barrier")
    o_srd(e, SO)
    kv_addr_setup(e, LANE, AK, AV, (T0, T1, T2, T3), None, None, VS)
    q, g, cq = T0, T1, T3
    e(f"v_lshrrev_b32 v{T2}, 2, v{q}")
    e(f"v_and_b32 v{T2}, 2, v{T2}")
    e(f"v_xor_b32 v{T2}, v{T2}, v{g}")
    e(f"v_lshlrev_b32 v{T2}, 4, v{T2}")
    e(f"v_lshl_add_u32 v{T2}, v{q}, 6, v{T2}")
    e(f"v_add_u32 v{AB}, {XR}, v{T2}")
    rp = T2
    e(f"v_bfe_u32 v{rp}, v{LANE}, 2, 2")
    e(f"v_lshl_add_u32 v{q}, v{g}, 3, v{rp}")
    e(f"v_lshl_add_u32 v{q}, v{q}, 8, v{cq}")
    e(f"v_lshl_add_u32 v{q}, v{rp}, 5, v{q}")
    e(f"v_and_b32 v{g}, 1, v{g}")
    e(f"v_lshl_add_u32 v{q}, v{g}, 7, v{q}")
    e(f"s_and_b32 s48, s{W}, 1")
    e(f"s_lshl_b32 s48, s48, 7")
    e(f"v_xor_b32 v{q}, s48, v{q}")
    e(f"s_lshr_b32 s49, s{W}, 1")
    e(f"s_lshl_b32 s44, s49, 13")
    e(f"v_add_u32 v{AA(0)}, s44, v{q}")
    for t in range(1, 4):
        e(f"v_xor_b32 v{AA(t)}, {32 * t}, v{AA(0)}")
    for t in range(4):
        e(f"v_add_u32 v{AH(t)}, 49152, v{AA(t)}")

    def a_reads(st):
        p, base = st & 1, WQREG(st)
        out = []
        for t in range(4):
            for ee in range(2):
                if base < 65536:
                    out.append(f"ds_read_b64_tr_b16 {vr(FA(p, t) + 2 * ee, 2)}, v{AA(t)} offset:{base + 1024 * ee}")
                else:
                    out.append(f"ds_read_b64_tr_b16 {vr(FA(p, t) + 2 * ee, 2)}, v{AH(t)} offset:{base - 49152 + 1024 * ee}")
        return out

    def b_read(k):
        st, qt = k // 9, k % 9
        return f"ds_read_b128 {vr(FB(k))}, v{AB} offset:{18432 * ((st >> 1) % 3) + 9216 * (st & 1) + 1024 * qt}"

    def check_items(nm, need, sink, off=F_FULL, pre=None):
        def br():
            e("s_cmp_eq_u64 s[56:57], 0")
            e(f"s_cbranch_scc0 {nm}")
            snap = e.snapshot()
            e.label(nm + "_ret")

            def slow():
                e.restore(snap)
                e.label(nm)
                if pre:
                    e(pre)
                blocking_poll4(e, nm + "_p", FQ, off, PL, need)
                e(f"s_branch {nm}_ret")
            sink.append(slow)
        return [f"ds_read_b32 v{PL}, v{FQ} offset:{off}", f"v_cmp_lt_u32 s[56:57], v{PL}, {need}", br]

    DB = 6
    blocking_poll4(e, "G0_first", FQ, F_FULL, PL, 1)
    stamp(e, 1)
    emit(a_reads(0) + [b_read(k) for k in range(DB)])
    e(f"s_mov_b32 s50, {f32bits(math.log2(math.e) / math.sqrt(128.0)):#x}")
    QW = 222
    e(f"v_and_b32 v{T1}, 15, v{LANE}")
    e(f"v_lshlrev_b32 v{QW}, 4, v{T1}")
    e(f"v_lshrrev_b32 v{T1}, 5, v{LANE}")
    e(f"v_lshl_add_u32 v{QW}, v{T1}, 8, v{QW}")
    e(f"v_bfe_u32 v{T1}, v{LANE}, 4, 1")
    e(f"v_lshl_add_u32 v{QW}, v{T1}, 3, v{QW}")
    e(f"s_mul_i32 s44, s49, {QIB - QIA}")
    e(f"s_lshl_b32 s45, s48, 4")
    e(f"s_add_u32 s44, s44, s45")
    e(f"s_add_u32 s44, s44, {QIA}")
    e(f"v_add_u32 v{QW}, s44, v{QW}")

    def qconv(qt):
        out = []
        for t in range(4):
            a = ACC(t, qt)
            out += [f"v_mul_f32 v{a + r}, s50, v{a + r}" for r in range(4)]
            out += [f"v_cvt_pk_bf16_f32 v{a}, v{a}, v{a + 1}", f"v_cvt_pk_bf16_f32 v{a + 1}, v{a + 2}, v{a + 3}"]
        return out

    conv = []
    for st in range(32):
        p = st & 1
        ar = a_reads(st + 1) if st < 31 else []
        chk = check_items(f"G0_qs{st + 1}", st + 2, late) if st < 31 else check_items("G0_qfree", 32, late, F_FREE)
        for qt in range(9):
            k = 9 * st + qt
            m = []
            for t in range(4):
                c = "0" if st == 0 else vr(ACC(t, qt))
                m.append(f"{MF} {vr(ACC(t, qt))}, {vr(FA(p, t))}, {vr(FB(k))}, {c}")
            fill = []
            nk = k + DB
            c0 = 0 if st < 31 else 5
            if qt == c0:
                fill.append(chk[0])
            if qt == c0 + 3:
                fill.append(chk[2])
            if nk < 288:
                fill.append(b_read(nk))
            if qt == 1 and st & 1:
                fill.append(f"v_mov_b32 v{FD}, {st + 1}")
            if qt == 2 and st & 1:
                fill.append(f"ds_write_b32 v{FA_}, v{FD} offset:{F_FREE}")
            if qt == c0 + 2:
                fill.append(chk[1])
            if 3 <= qt < 7:
                fill += ar[2 * (qt - 3): 2 * (qt - 3) + 2]
            if st == 31 and qt >= 2:
                conv += qconv(qt - 2)
                fill += conv[:10]
                del conv[:10]
            emit(weave(m, [x for x in fill if kind_of(x) == "v"], [x for x in fill if kind_of(x) == "d"],
                       at={0: [x for x in fill if kind_of(x) == "s"]}))
    stamp(e, 2)
    conv += qconv(7) + qconv(8)
    done = 9 - (len(conv) + 23) // 24
    wr = lambda qt: [f"ds_write_b64 v{QW}, {vr(ACC(t, qt), 2)} offset:{4096 * qt + 512 * t}" for t in range(4)]
    for qt in range(done):
        emit(wr(qt))
    for qt in range(done, 9):
        n = len(conv) - 24 * (8 - qt)
        emit(conv[:n])
        del conv[:n]
        emit(wr(qt))
    e(f"v_mov_b32 v{FD}, 1")
    e(f"ds_write_b32 v{FA_}, v{FD} offset:{F_GB}")
    blocking_poll4(e, "G0_gb0", FQ, F_GB, PL, 1)

    def load_q(img):
        e(f"s_lshl_b32 s44, s{W}, 13")
        e(f"s_add_u32 s44, s44, {img}")
        e(f"v_mbcnt_lo_u32_b32 v{PL}, -1, 0")
        e(f"v_mbcnt_hi_u32_b32 v{PL}, -1, v{PL}")
        e(f"v_lshl_add_u32 v{PL}, v{PL}, 4, s44")
        for qt in range(2):
            for u in range(4):
                e(f"ds_read_b128 {vr(Q(qt, u))}, v{PL} offset:{4096 * qt + 1024 * u}")
        for qt in range(2):
            for r in range(4):
                e(f"v_mov_b32 v{NEGM(qt) + r}, 0")
        e.wait(lgkm=0)

    load_q(QIA)
    e(f"s_mov_b32 s50, {f32bits(THR):#x}")
    blocking_poll4(e, "G0_k0", FQ, F_FULL, PL, 34)
    stamp(e, 3)

    def k_read(sl, kt, u, f):
        return [f"ds_read_b128 {vr(F(f))}, v{AK(u)} offset:{KS + 16384 * sl + 4096 * kt}"]

    def v_read(sl, s, T, f):
        return [f"ds_read_b64_tr_b16 {vr(F(f) + 2 * ee, 2)}, v{AV(T)} offset:{16384 * sl + 4096 * (2 * s + ee)}" for ee in range(2)]

    def qk(par, kt, u, f):
        return [f"{MF} {vr(S(par, kt, qt))}, {vr(F(f))}, {vr(Q(qt, u))}, {vr(NEGM(qt)) if u == 0 else vr(S(par, kt, qt))}"
                for qt in range(2)]

    def maxes(par, kts):
        out = []
        for kt in kts:
            for h in range(2):
                for qt in range(2):
                    s = S(par, kt, qt) + 2 * h
                    if kt == 0 and h == 0:
                        out.append(f"v_max_f32 v{TMP(qt)}, v{s}, v{s + 1}")
                    else:
                        out.append(f"v_max3_f32 v{TMP(qt)}, v{s}, v{s + 1}, v{TMP(qt)}")
        return out

    def softmax(par, s):
        out = []
        for qt in range(2):
            a, b = S(par, 2 * s, qt), S(par, 2 * s + 1, qt)
            regs = [a, a + 1, a + 2, a + 3, b, b + 1, b + 2, b + 3]
            ex = [f"v_exp_f32 v{r}, v{r}" for r in regs]
            ad = [f"v_add_f32 v{L(qt)}, v{L(qt)}, v{r}" for r in regs]
            cv = [f"v_cvt_pk_bf16_f32 v{a + k}, v{regs[2 * k]}, v{regs[2 * k + 1]}" for k in range(4)]
            out += [ex[0], ex[1], ex[2], ad[0], ex[3], ad[1], cv[0], ex[4], ad[2], ex[5], ad[3], cv[1],
                    ex[6], ad[4], ex[7], ad[5], cv[2], ad[6], ad[7], cv[3]]
        return out

    def group_wait(f):
        def w():
            regs = set(f"v{r}" for i in range(4) for r in range(F(f + i), F(f + i) + 4))
            lg = None
            for i, rs in enumerate(e.st.lgkm):
                if rs & regs:
                    lg = len(e.st.lgkm) - 1 - i
            if lg is not None:
                e.wait(lgkm=lg)
        return w

    for f in range(16):
        emit(k_read(0, f // 4, f % 4, f))
    e(f"v_mov_b32 v{FD}, 33")
    e(f"ds_write_b32 v{FA_}, v{FD} offset:{F_FREE}")
    for f in range(16):
        if f % 4 == 0:
            group_wait(f)()
        emit(qk(0, f // 4, f % 4, f))
        if f >= 8:
            emit(k_read(1, (f - 8) // 4, f % 4, f - 8))
    emit(maxes(0, range(4)))
    first_states = [e.snapshot()]
    e("s_call_b64 s[38:39], G0_first_path")
    e("s_mov_b32 s53, 0")
    e("s_mov_b32 s42, 35")
    e("s_mov_b32 s43, 36")
    e.wait(lgkm=4)
    entry = e.snapshot()
    loop_late = []
    slow_states = {0: [], 1: []}
    epi_states = []

    def iteration(v):
        name = f"G0_v{v}"
        cur, nxt = v & 1, (v & 1) ^ 1
        ks, vs, ks2 = (v + 1) % 3, v % 3, (v + 2) % 3
        sm0, sm1 = softmax(cur, 0), softmax(cur, 1)
        rel = f"ds_write_b32 v{FA_}, v{FD} offset:{F_FREE}"
        chv = check_items(name + "_xv", "s42", loop_late, pre=rel)
        chk = check_items(name + "_xk", "s43", loop_late, pre=rel)
        tail = maxes(nxt, range(4)) + [f"v_max_f32 v{TMP(2)}, v{TMP(0)}, v{TMP(1)}", f"v_cmp_lt_f32 vcc, s50, v{TMP(2)}"]
        sal = ["s_add_u32 s42, s42, 2", "s_add_u32 s43, s43, 2", "s_add_u32 s53, s53, 1"]
        inc = f"v_add_u32 v{FD}, 1, v{FD}"
        rel = f"ds_write_b32 v{FA_}, v{FD} offset:{F_FREE}"
        sm = sm0 + sm1
        c1, c2 = 31, 56
        valu = [sm[:c1] + [inc, chv[1]], sm[c1:c2], sm[c2:] + [inc, chk[1]], tail]
        for seg in range(4):
            m, rd = [], []
            for i in range(8):
                f = 8 * seg + i
                if seg < 2:
                    m += qk(nxt, 2 * seg + i // 4, i % 4, f)
                else:
                    m += [f"{MF} {vr(O(qt, i))}, {vr(F(f))}, {vr(S(cur, 2 * (seg - 2), qt))}, {vr(O(qt, i))}" for qt in range(2)]
                if seg == 0:
                    rd += k_read(ks, 2 + i // 4, i % 4, f + 8)
                elif seg < 3:
                    rd += v_read(vs, seg - 1, i, f + 8)
                else:
                    rd += k_read(ks2, i // 4, i % 4, f + 8)
            at = {7: [group_wait(8 * seg + 4)], 15: [group_wait(8 * seg + 8)]}
            if seg in (0, 2):
                at[6] = [(chv if seg == 0 else chk)[0]]
                emit(weave(m, valu[seg], rd, at=at))
            elif seg == 1:
                at[0] = [chv[2], rel]
                emit(weave(m, valu[seg], rd, at=at))
            else:
                at[0] = [chk[2], rel]
                emit(weave(m, valu[seg], rd, sal, lo=1, hi=14, at=at))
        if v in (1, 3):
            e(f"s_cmp_eq_u32 s53, {8 if v == 1 else 16}")
            e(f"s_cbranch_scc1 {name}_end")
            snap = e.snapshot()

            def headend(v=v, snap=snap, name=name):
                e.restore(snap)
                e.label(name + "_end")
                epi_states.append(e.snapshot())
                e("s_call_b64 s[38:39], G0_epi")
                if v == 1:
                    stamp(e, 4)
                    first_states.append(e.snapshot())
                    e("s_call_b64 s[38:39], G0_first_path")
                    e(f"s_branch {name}_ret")
                else:
                    e("s_branch G0_done")
            loop_late.append(headend)
        e(f"s_cbranch_vccnz {name}_g")
        snap = e.snapshot()
        slow_states[nxt].append(snap)
        e.label(name + "_ret")

        def tramp(name=name, snap=snap, nxt=nxt):
            e.restore(snap)
            e.label(name + "_g")
            e(f"s_call_b64 s[38:39], G0_slow{nxt}")
            e(f"s_branch {name}_ret")
        loop_late.append(tramp)
        if v == 0:
            e("s_cmp_eq_u32 s53, 7")
            e(f"s_cbranch_scc1 {name}_q")
            snap2 = e.snapshot()
            e.label(name + "_qret")

            def newq(name=name, snap2=snap2):
                e.restore(snap2)
                e.label(name + "_q")
                load_q(QIB)
                e("s_nop 1")
                e(f"s_branch {name}_qret")
            loop_late.append(newq)

    exits = []
    mark = len(e.lines)
    cnt0 = dict(e.count)
    for rounds in range(2):
        del e.lines[mark:]
        e.count = dict(cnt0)
        loop_late.clear()
        slow_states[0].clear()
        slow_states[1].clear()
        e.merge([entry] + exits)
        e.label("G0_loop")
        for v in range(6):
            iteration(v)
        e("s_branch G0_loop")
        exits = [e.snapshot()]
    e.label("G0_done")
    if OPT["stamp"]:
        e.wait(vm=0)
    stamp(e, 5)
    stamp_store(e, 6, 36, STAMP_OFF, ["s_lshl_b32 s58, s2, 2", f"s_add_u32 s58, s58, s{W}"])
    e("s_endpgm")
    for f in late + list(loop_late):
        f()

    def shift(par, first):
        for qt in range(2):
            t = TMP(qt)
            lane_reduce(e, "v_max_f32", t, NEGM(qt) + 1)
            if not first:
                e(f"v_max_f32 v{t}, 0, v{t}")
            e(f"v_sub_f32 v{NEGM(qt)}, v{NEGM(qt)}, v{t}")
            for r in range(1, 4):
                e(f"v_mov_b32 v{NEGM(qt) + r}, v{NEGM(qt)}")
            for kt in range(4):
                for r in range(4):
                    e(f"v_sub_f32 v{S(par, kt, qt) + r}, v{S(par, kt, qt) + r}, v{t}")

    e.restore(joined(e, first_states))
    e.label("G0_first_path")
    e("s_nop 7")
    shift(0, True)
    for qt in range(2):
        e(f"v_mov_b32 v{L(qt)}, 0")
        for r in range(0, 32, 2):
            e(f"v_mov_b64 {vr(O(qt, 0) + r, 2)}, 0")
    e("s_nop 1")
    e("s_setpc_b64 s[38:39]")
    for par in range(2):
        e.restore(joined(e, slow_states[par]))
        e.label(f"G0_slow{par}")
        shift(par, False)
        for qt in range(2):
            t = TMP(qt)
            e(f"v_exp_f32 v{t}, -v{t}")
            e(f"v_mul_f32 v{L(qt)}, v{L(qt)}, v{t}")
            for r in range(32):
                e(f"v_mul_f32 v{O(qt, 0) + r}, v{O(qt, 0) + r}, v{t}")
        e("s_nop 1")
        e("s_setpc_b64 s[38:39]")
    e.restore(joined(e, epi_states))
    e.label("G0_epi")
    X0 = PL
    e(f"v_mbcnt_lo_u32_b32 v{X0}, -1, 0")
    e(f"v_mbcnt_hi_u32_b32 v{X0}, -1, v{X0}")
    for qt in range(2):
        lane_reduce(e, "v_add_f32", L(qt), PL + 1)
    e(f"s_lshl_b32 s44, s{W}, 11")
    e(f"v_lshl_add_u32 v{X0}, v{X0}, 4, s44")
    e("s_lshr_b32 s45, s53, 4")
    e("s_mul_i32 s45, s45, 36864")
    osf = OPT["ostore"]
    for qt in range(2):
        e(f"v_rcp_f32 v{L(qt)}, v{L(qt)}")
    for u in range(4):
        for qt in range(2):
            a = O(qt, 2 * u)
            for r in range(8):
                e(f"v_mul_f32 v{a + r}, v{a + r}, v{L(qt)}")
            for k in range(4):
                e(f"v_cvt_pk_bf16_f32 v{a + k}, v{a + 2 * k}, v{a + 2 * k + 1}")
            e(f"buffer_store_dwordx4 {vr(a)}, v{X0}, {sr(SO)}, s45 offen offset:{1024 * qt} {osf}")
        e(f"s_add_u32 s45, s45, 9216")
    e("s_setpc_b64 s[38:39]")


def loader_group(e):
    emit = mk_emit(e)
    SX, SW, SK, SV, SO = 4, 8, 12, 16, 20
    kvf, xf, wf = OPT["kvflag"], OPT["xflag"], OPT["wflag"]
    BUF = lambda c: 4 * c
    O8 = lambda T: 128 + 4 * T
    Q8 = lambda u: 160 + 4 * u
    S8 = 176
    KF = lambda u: 180 + 4 * u
    VF = lambda T: 196 + 2 * T
    NEGM, L8, TM, TM2 = 212, 216, 217, 218
    AK = lambda u: 220 + u
    AV = lambda T: 224 + T
    VXM = lambda i: 232 + i
    VX8 = 234
    VWQ = lambda i: 235 + i
    VKV = lambda i: 237 + (i & 1)
    LANE, FQ, FW, FD, WA = 239, 240, 241, 242, 243
    T0, T1, T2, T3 = 244, 245, 246, 247
    PL, DUMMY = 248, 252
    CF = 57
    late = []
    e(f"v_and_b32 v{LANE}, 63, v0")
    g4 = T0
    e(f"v_lshrrev_b32 v{g4}, 4, v{LANE}")
    e(f"v_and_b32 v{T1}, 2, v{g4}")
    e(f"v_and_b32 v{T2}, 3, v{LANE}")
    e(f"v_xor_b32 v{T1}, v{T1}, v{T2}")
    e(f"v_lshlrev_b32 v{T1}, 4, v{T1}")
    e(f"v_lshrrev_b32 v{T2}, 2, v{LANE}")
    e(f"v_lshl_add_u32 v{T1}, v{T2}, 11, v{T1}")
    e(f"s_lshl_b32 s38, s{W}, 16")
    e(f"v_add_u32 v{VXM(0)}, s38, v{T1}")
    e(f"v_add_u32 v{VXM(1)}, {32768 - 1024}, v{VXM(0)}")
    e(f"v_add_u32 v{VX8}, {128 * 2048}, v{T1}")
    e(f"v_and_b32 v{T1}, 15, v{LANE}")
    e(f"v_lshlrev_b32 v{T2}, 1, v{g4}")
    e(f"v_xor_b32 v{T1}, v{T1}, v{T2}")
    e(f"s_and_b32 s39, s{W}, 1")
    e(f"s_lshl_b32 s40, s39, 3")
    e(f"v_xor_b32 v{T2}, s40, v{T1}")
    e(f"v_lshlrev_b32 v{T2}, 4, v{T2}")
    e(f"v_lshl_add_u32 v{T3}, v{g4}, 13, v{T2}")
    e(f"v_add_u32 v{VWQ(0)}, s38, v{T3}")
    e(f"v_add_u32 v{VWQ(1)}, {32768 - 1024}, v{VWQ(0)}")
    e(f"s_lshl_b32 s41, s{W}, 12")
    e(f"v_lshlrev_b32 v{T1}, 4, v{T1}")
    e(f"v_lshl_add_u32 v{T1}, v{g4}, 8, v{T1}")
    e(f"v_add_u32 v{VKV(0)}, s41, v{T1}")
    e(f"v_xor_b32 v{VKV(1)}, 0x80, v{VKV(0)}")
    e(f"s_lshl_b32 s42, s{W}, 11")
    e("s_lshr_b32 s53, s26, 1")
    e("s_add_u32 s53, s53, s25")
    e("s_and_b32 s53, s53, 3")
    e.wait(lgkm=0)
    e("s_mul_i32 s44, s25, 294912")
    e(f"s_add_u32 s{SX}, s28, s44")
    e(f"s_addc_u32 s{SX + 1}, s29, 0")
    e(f"s_mov_b32 s{SX + 2}, 294912")
    e(f"s_mov_b32 s{SX + 3}, 0x20000")
    e("s_lshl_b32 s44, s26, 8")
    e(f"s_add_u32 s{SW}, s34, s44")
    e(f"s_addc_u32 s{SW + 1}, s35, 0")
    e(f"s_sub_u32 s{SW + 2}, 8388608, s44")
    e(f"s_mov_b32 s{SW + 3}, 0x20000")

    QLEAD = int(OPT["qlead"])

    def unit_of(P):
        if not QLEAD:
            return [f"s_mov_b32 s46, {P}"]
        if P == 0:
            return ["s_mov_b32 s46, s53"]
        tp = P - 1
        if tp < 12:
            return [f"s_cmp_eq_u32 s53, {tp & 3}", f"s_cselect_b32 s46, {tp + 4}, {tp}"]
        return [f"s_cmp_le_u32 s53, {tp - 12}", f"s_cselect_b32 s46, {tp + 1}, {tp}"]

    def gap(st, k):
        g = int(OPT["gap"])
        if st < 2 or g == 0 or (g == 4 and k == 0):
            return []
        return [lambda: e.raw(f"    global_load_dword v{DUMMY}, v{FD}, s[48:49]")]

    def issue_step(st):
        out = []
        P = st >> 1
        if st % 2 == 0:
            xs = XR + 18432 * (P % 3)
            out += unit_of(P)
            out += ["s_lshl_b32 s50, s46, 7", "s_add_u32 s51, s50, 64", "s_lshl_b32 s46, s46, 19"]

            def x8():
                e(f"s_cmp_eq_u32 s{W}, {P & 3}")
                e(f"s_cbranch_scc0 G1_x8s{st}")
                for hf in range(2):
                    e.raw(f"    s_mov_b32 m0, {xs + 9216 * hf + 8192}")
                    e.raw(f"    s_nop 0")
                    e.raw(f"    buffer_load_dwordx4 v{VX8}, {sr(SX)}, s{50 + hf} offen {xf} lds")
                e.label(f"G1_x8s{st}")
            out.append(x8)
            for hf in range(2):
                out.append(f"s_add_u32 m0, s42, {xs + 9216 * hf}")
                out.append((f"buffer_load_dwordx4 v{VXM(0)}, {sr(SX)}, s{50 + hf} offen {xf} lds", ("q", st)))
                out.append((f"buffer_load_dwordx4 v{VXM(1)}, {sr(SX)}, s{50 + hf} offen offset:1024 {xf} lds", ("q", st)))
                out += gap(st, hf)
        for hh in range(2):
            out.append(f"s_add_u32 m0, s42, {WQREG(st) + 8192 * hh}")
            out.append(f"s_add_u32 s45, s46, {262144 * (st & 1) + 256 * hh}")
            out.append((f"buffer_load_dwordx4 v{VWQ(0)}, {sr(SW)}, s45 offen {wf} lds", ("q", st)))
            out.append((f"buffer_load_dwordx4 v{VWQ(1)}, {sr(SW)}, s45 offen offset:1024 {wf} lds", ("q", st)))
            out += gap(st, hh)
        return out

    emit(issue_step(0))
    e("s_lshl_b32 s44, s27, 17")
    e(f"s_add_u32 s{SK}, s30, s44")
    e(f"s_addc_u32 s{SK + 1}, s31, 0")
    e(f"s_mov_b32 s{SK + 2}, 262144")
    e(f"s_mov_b32 s{SK + 3}, 0x20000")
    e(f"s_add_u32 s{SV}, s32, s44")
    e(f"s_addc_u32 s{SV + 1}, s33, 0")
    e(f"s_mov_b32 s{SV + 2}, 262144")
    e(f"s_mov_b32 s{SV + 3}, 0x20000")
    e(f"v_and_b32 v{FQ}, 3, v{LANE}")
    e(f"v_lshlrev_b32 v{FQ}, 2, v{FQ}")
    e(f"v_add_u32 v{FQ}, {FLG}, v{FQ}")
    e(f"s_lshl_b32 s44, s{W}, 2")
    e(f"v_mov_b32 v{FW}, {FLG}")
    e(f"v_add_u32 v{FW}, s44, v{FW}")
    e(f"s_add_u32 s43, s44, {FLG + F_FULL}")
    e("s_getpc_b64 s[54:55]")
    e.raw("G1_pc:")
    e("s_sub_u32 s54, s54, G1_pc - att_kernel")
    e("s_subb_u32 s55, s55, 0")
    e("s_add_u32 s48, s54, cnt_table - att_kernel")
    e("s_addc_u32 s49, s55, 0")
    e("s_lshr_b32 s44, s2, 3")
    e("s_lshl_b32 s44, s44, 2")
    e(f"s_add_u32 s44, s44, s{W}")
    e("s_and_b32 s44, s44, 63")
    e("s_min_u32 s44, s44, CODE_KB_P")
    e("s_lshl_b32 s44, s44, 10")
    e(f"v_lshl_add_u32 v{T1}, v{LANE}, 4, s44")
    e.raw(f"    global_load_dwordx4 {vr(DUMMY)}, v{T1}, s[54:55]")
    o_srd(e, SO)
    e(f"s_lshl_b32 s44, s{W}, 6")
    e(f"s_add_u32 s45, s41, {VS}")
    kv_addr_setup(e, LANE, AK, AV, (T0, T1, T2, T3), "s44", "s41", "s45")
    e(f"v_lshl_add_u32 v{WA}, v{LANE}, 4, s41")
    e("s_barrier")

    def publish(val):
        e(f"v_mov_b32 v{FD}, {4 * val}")
        e("s_mov_b32 m0, s43")
        e("s_mov_b64 exec, 1")
        e(f"global_load_lds_dword v{FD}, s[48:49]", ("f", val))
        e("s_mov_b64 exec, -1")

    trace_n = [0]

    def trace():
        if OPT["stamp"]:
            e("s_memrealtime s[94:95]")
            e("s_memtime s[90:91]")
            e.wait(lgkm=0)
            e(f"v_writelane_b32 v254, s94, {trace_n[0]}")
            e(f"v_writelane_b32 v255, s90, {trace_n[0]}")
            trace_n[0] += 1

    def need_free(nm, need):
        if need > 64:
            e(f"s_mov_b32 s58, {need}")
            need = "s58"
        blocking_poll4(e, nm, FQ, F_FREE, PL, need)
        trace()

    if OPT["abl_noload"]:
        e.wait(vm=0)
        e(f"v_mov_b32 v{FD}, 100")
        e(f"ds_write_b32 v{FW}, v{FD} offset:{F_FULL}")
        e("s_endpgm")

    tile_of = lambda n: (False, 0) if n == 0 else ((False, (n + 1) // 2) if n & 1 else (True, n // 2 - 1))
    NPF = int(OPT["npf"])
    allp = [(n, c) for n in range(5, 33) for c in range(4) if n != 31]
    nreg = 8 * NPF
    regp = [allp[(len(allp) * k + len(allp) // 2) // nreg] for k in range(nreg)] if nreg else []
    assert len(set(regp)) == nreg

    def piece_src(n, c):
        isv, j = tile_of(n)
        return (SV if isv else SK, 16384 * j)

    def piece_slot(n, c):
        isv, j = tile_of(n)
        return (VS if isv else KS) + 16384 * (j % 3)

    def pf_batch(bt, st):
        for k in range(8 * bt, 8 * bt + 8):
            p, c = regp[k]
            srd, off = piece_src(p, c)
            e.raw(f"    s_mov_b32 s52, {off}")
            e.raw(f"    buffer_load_dwordx4 {vr(BUF(k))}, v{VKV(c)}, {sr(srd)}, s52 offen offset:{1024 * (c & 3)} {kvf}")

    def fill(n):
        for c in range(4):
            if (n, c) in regp:
                off = piece_slot(n, c) + 1024 * c
                if off < 65536:
                    e(f"ds_write_b128 v{WA}, {vr(BUF(regp.index((n, c))))} offset:{off}")
                else:
                    e(f"ds_write_b128 v{T3}, {vr(BUF(regp.index((n, c))))} offset:{off - 49152}")
        srd, off = piece_src(n, 0)
        e(f"s_add_u32 m0, s41, {piece_slot(n, 0)}")
        e(f"s_mov_b32 s52, {off}")
        for c in range(4):
            if (n, c) not in regp:
                e(f"buffer_load_dwordx4 v{VKV(c)}, {sr(srd)}, s52 offen offset:{1024 * c} {kvf} lds", ("a", n))

    def landed(p):
        n = e.vm_needed_for_tags(lambda t: t[0] == "a" and t[1] <= p)
        if n is not None:
            e.wait(vm=n)

    stag = [int(x) for x in OPT["pfstag"].split(",")]
    pf0, pfd = int(OPT["pf0"]), int(OPT["pfd"])
    publish(1)
    emit(issue_step(1))
    publish(2)
    stamp(e, 1)
    for st in range(2, 32):
        if st >= 6 and st % 2 == 0:
            need_free(f"G1_fq{st}", st - 4)
        emit(issue_step(st))
        publish(st + 1)
        for bt in range(NPF):
            for r in range(4):
                if pf0 + pfd * bt + stag[r] == st:
                    assert st < 31
                    e(f"s_cmp_eq_u32 s53, {r}")
                    e(f"s_cbranch_scc0 G1_pf{bt}_{r}")
                    pf_batch(bt, st)
                    e.label(f"G1_pf{bt}_{r}")
    e(f"v_add_u32 v{T3}, 49152, v{WA}")
    stamp(e, 2)
    need_free("G1_fa0", 28)
    fill(0)
    fill(1)
    publish(34)
    need_free("G1_fa2", 30)
    fill(2)
    publish(35)
    fill(3)
    publish(36)
    need_free("G1_fa4", 32)
    fill(4)
    publish(37)
    e(f"s_mov_b32 s50, {f32bits(THR):#x}")
    e("s_mov_b32 s47, 0")

    def load_q8(img):
        e(f"s_sub_u32 s44, {img + 32768}, s41")
        e(f"v_add_u32 v{PL}, s44, v{WA}")
        for u in range(4):
            e(f"ds_read_b128 {vr(Q8(u))}, v{PL} offset:{1024 * u}")
        for r in range(4):
            e(f"v_mov_b32 v{NEGM + r}, 0")
        e("s_mov_b32 s51, 0xff800000")
        e.wait(lgkm=0)

    sub_states = {}

    def call(nm):
        sub_states.setdefault(nm, []).append(e.snapshot())
        e(f"s_call_b64 s[38:39], {nm}")
        e.st.hist = [[]]
        e.st.lgkm = []

    def qk8(j):
        landed(0 if j == 0 else 2 * j - 1)
        call(f"G1_qk{j % 3}")

    def pv8(j):
        landed(2 * j + 2)
        call(f"G1_pv{j % 3}")
        if j in (7, 15):
            call("G1_merge1")
        if j == 7:
            load_q8(QIB)

    assert all(k >= 10 or n < 19 for k, (n, c) in enumerate(regp))
    blocking_poll4(e, "G1_gb0", FQ, F_GB, PL, 1)
    load_q8(QIA)
    qk8(0)
    for n in range(5, 33):
        if n != 31:
            need_free(f"G1_fb{n}", 33 + (0 if n == 5 else n - 6))
            fill(n)
            e.wait(lgkm=0)
            publish(33 + n + (1 if n in (30, 32) else 0))
        if n == 32 and OPT["prewarm"]:
            e("s_load_dwordx2 s[54:55], s[0:1], 32")
            e("s_lshl_b32 s44, s2, 2")
            e(f"s_add_u32 s44, s44, s{W}")
            e("s_lshl_b32 s44, s44, 13")
            e(f"v_lshl_add_u32 v{T1}, v{LANE}, 7, s44")
            e.wait(lgkm=0)
            e(f"global_load_dword v{DUMMY}, v{T1}, s[54:55]")
        if n & 1:
            pv8((n - 5) // 2)
        else:
            qk8((n - 4) // 2)
        if n == 21:
            e("s_mov_b32 s46, 0")
            call("G1_merge2")
    pv8(14)
    qk8(15)
    pv8(15)
    e("s_mov_b32 s46, 36864")
    call("G1_merge2")
    e.wait(vm=0)
    trace()
    if OPT["stamp"]:
        e("s_lshl_b32 s58, s2, 2")
        e(f"s_add_u32 s58, s58, s{W}")
        e("s_lshl_b32 s58, s58, 9")
        e(f"s_add_u32 s58, s58, {STAMP_OFF + (2 << 20)}")
        e(f"v_lshl_add_u32 v{T0}, v{LANE}, 2, s58")
        e(f"global_store_dword v{T0}, v254, s[36:37]")
        e(f"global_store_dword v{T0}, v255, s[36:37] offset:256")
        sys.stderr.write("trace points: %d\n" % trace_n[0])
    stamp(e, 3)
    stamp_store(e, 4, 36, STAMP_OFF, ["s_lshl_b32 s58, s2, 2", f"s_add_u32 s58, s58, s{W}", "s_add_u32 s58, s58, 1024"])
    e("s_endpgm")
    for f in late:
        f()

    def sub_begin(nm):
        st = joined(e, sub_states[nm])
        st.lgkm = []
        st.vm = []
        e.restore(st)
        e.label(nm)

    def sub_end():
        e.wait(lgkm=0)
        e("s_nop 7")
        e("s_setpc_b64 s[38:39]")

    for sl in range(3):
        sub_begin(f"G1_qk{sl}")
        for u in range(4):
            e(f"ds_read_b128 {vr(KF(u))}, v{AK(u)} offset:{KS + 16384 * sl}")
        for u in range(4):
            e(f"{MF} {vr(S8)}, {vr(KF(u))}, {vr(Q8(u))}, {vr(NEGM) if u == 0 else vr(S8)}")
        if sl < 2:
            e("s_branch G1_qk_tail")
    e.label("G1_qk_tail")
    e("s_nop 7")
    e(f"v_max_f32 v{TM}, v{S8}, v{S8 + 1}")
    e(f"v_max3_f32 v{TM}, v{S8 + 2}, v{S8 + 3}, v{TM}")
    e(f"v_cmp_lt_f32 vcc, s50, v{TM}")
    e(f"s_or_b32 s55, vcc_lo, s51")
    e("s_or_b32 s55, s55, vcc_hi")
    e("s_cbranch_scc0 G1_qk_sm")
    lane_reduce(e, "v_max_f32", TM, TM2)
    e(f"v_max_f32 v{TM}, s51, v{TM}")
    e(f"v_sub_f32 v{NEGM}, v{NEGM}, v{TM}")
    for r in range(1, 4):
        e(f"v_mov_b32 v{NEGM + r}, v{NEGM}")
    for r in range(4):
        e(f"v_sub_f32 v{S8 + r}, v{S8 + r}, v{TM}")
    e("s_cmp_eq_u32 s51, 0")
    e("s_cbranch_scc1 G1_qk_resc")
    e(f"v_mov_b32 v{L8}, 0")
    for r in range(0, 32, 2):
        e(f"v_mov_b64 {vr(O8(0) + r, 2)}, 0")
    e("s_mov_b32 s51, 0")
    e("s_branch G1_qk_sm")
    e.label("G1_qk_resc")
    e(f"v_exp_f32 v{TM}, -v{TM}")
    e(f"v_mul_f32 v{L8}, v{L8}, v{TM}")
    for r in range(32):
        e(f"v_mul_f32 v{O8(0) + r}, v{O8(0) + r}, v{TM}")
    e.label("G1_qk_sm")
    for r in range(4):
        e(f"v_exp_f32 v{S8 + r}, v{S8 + r}")
    for r in range(4):
        e(f"v_add_f32 v{L8}, v{L8}, v{S8 + r}")
    e(f"v_cvt_pk_bf16_f32 v{S8}, v{S8}, v{S8 + 1}")
    e(f"v_cvt_pk_bf16_f32 v{S8 + 1}, v{S8 + 2}, v{S8 + 3}")
    e("s_nop 1")
    e("s_setpc_b64 s[38:39]")
    for sl in range(3):
        sub_begin(f"G1_pv{sl}")
        for T in range(8):
            e(f"ds_read_b64_tr_b16 {vr(VF(T), 2)}, v{AV(T)} offset:{16384 * sl}")
        for T in range(8):
            e(f"{MF16} {vr(O8(T))}, {vr(VF(T), 2)}, {vr(S8, 2)}, {vr(O8(T))}")
        sub_end()
    sub_begin("G1_merge1")
    X1, X2, X3 = T0, T1, T2
    lane_reduce(e, "v_add_f32", L8, TM)
    e(f"v_lshlrev_b32 v{X3}, 4, v{LANE}")
    for c in range(1, 4):
        e(f"s_xor_b32 s44, s{W}, {c}")
        e(f"s_mul_i32 s44, s44, 6144")
        e(f"s_add_u32 s44, s44, {MRG + 2048 * (c - 1)}")
        e(f"v_add_u32 v{X1}, s44, v{X3}")
        for k in range(2):
            e(f"ds_write_b128 v{X1}, {vr(O8(2 * c + k))} offset:{1024 * k}")
    e(f"s_lshl_b32 s44, s{W}, 9")
    e(f"s_add_u32 s44, s44, {MRG + 24576}")
    e(f"v_lshl_add_u32 v{X2}, v{LANE}, 3, s44")
    e(f"v_mov_b32 v{NEGM + 1}, v{L8}")
    e(f"ds_write_b64 v{X2}, {vr(NEGM, 2)}")
    e("s_add_u32 s47, s47, 1")
    e(f"v_mov_b32 v{FD}, s47")
    e(f"ds_write_b32 v{FW}, v{FD} offset:{F_GB1}")
    for r in range(8):
        e(f"v_mov_b32 v{r}, v{O8(0) + r}")
    sub_end()
    sub_begin("G1_merge2")
    e(f"v_lshlrev_b32 v{X3}, 4, v{LANE}")
    blocking_poll4(e, "G1_gb1", FQ, F_GB1, PL, "s47")
    ST = lambda c: 32 + 2 * c
    PO = lambda c, k: 8 * c + 4 * k
    for c in range(4):
        e(f"s_xor_b32 s44, s{W}, {c}")
        e(f"s_lshl_b32 s44, s44, 9")
        e(f"s_add_u32 s44, s44, {MRG + 24576}")
        e(f"v_lshl_add_u32 v{X2}, v{LANE}, 3, s44")
        e(f"ds_read_b64 {vr(ST(c), 2)}, v{X2}")
    e(f"s_mul_i32 s44, s{W}, 6144")
    e(f"s_add_u32 s44, s44, {MRG}")
    e(f"v_add_u32 v{X1}, s44, v{X3}")
    for c in range(1, 4):
        for k in range(2):
            e(f"ds_read_b128 {vr(PO(c, k))}, v{X1} offset:{2048 * (c - 1) + 1024 * k}")
    mn = TM
    e(f"v_min_f32 v{mn}, v{ST(0)}, v{ST(1)}")
    e(f"v_min3_f32 v{mn}, v{ST(2)}, v{ST(3)}, v{mn}")
    for c in range(4):
        e(f"v_sub_f32 v{ST(c)}, v{mn}, v{ST(c)}")
    for c in range(4):
        e(f"v_exp_f32 v{ST(c)}, v{ST(c)}")
    e(f"v_mul_f32 v{mn}, v{ST(0)}, v{ST(0) + 1}")
    for c in range(1, 4):
        e(f"v_fma_f32 v{mn}, v{ST(c)}, v{ST(c) + 1}, v{mn}")
    e(f"v_rcp_f32 v{mn}, v{mn}")
    for c in range(4):
        e(f"v_mul_f32 v{ST(c)}, v{ST(c)}, v{mn}")
    a = 0
    for r in range(8):
        e(f"v_mul_f32 v{a + r}, v{a + r}, v{ST(0)}")
    for c in range(1, 4):
        for r in range(8):
            e(f"v_fma_f32 v{a + r}, v{PO(c, 0) + r}, v{ST(c)}, v{a + r}")
    for k in range(4):
        e(f"v_cvt_pk_bf16_f32 v{a + k}, v{a + 2 * k}, v{a + 2 * k + 1}")
    e(f"s_mul_i32 s45, s{W}, 9216")
    e(f"s_add_u32 s45, s45, 8192")
    e(f"s_add_u32 s45, s45, s46")
    e(f"buffer_store_dwordx4 {vr(a)}, v{X3}, {sr(SO)}, s45 offen {OPT['ostore']}")
    sub_end()


def engine(e):
    stamp(e, 0)
    e("s_load_dwordx4 s[28:31], s[0:1], 0")
    e("s_load_dwordx4 s[32:35], s[0:1], 16")
    e("s_load_dwordx2 s[36:37], s[0:1], 56")
    e("v_lshrrev_b32 v1, 6, v0")
    e("s_and_b32 s25, s2, 1")
    e("v_readfirstlane_b32 s3, v1")
    e("s_lshl_b32 s25, s25, 3")
    e("s_bfe_u32 s26, s2, 0x30003")
    e("s_add_u32 s25, s25, s26")
    e("s_bfe_u32 s26, s2, 0x20001")
    e("s_lshl_b32 s26, s26, 2")
    e("s_lshr_b32 s27, s2, 6")
    e("s_add_u32 s26, s26, s27")
    e("s_lshl_b32 s26, s26, 1")
    e("s_lshl_b32 s27, s25, 5")
    e("s_add_u32 s27, s27, s26")
    e(f"s_and_b32 s{W}, s3, 3")
    e("s_cmp_lt_u32 s3, 4")
    e("s_cbranch_scc1 G0_start")
    st = e.snapshot()
    loader_group(e)
    e.restore(st)
    e.label("G0_start")
    compute_group(e)


def consumer(e, idreg="s2"):
    emit = mk_emit(e)
    SO, SW, SD = 4, 8, 12
    of, wf = OPT["oflag"], OPT["wflag"]
    ACC = lambda mt, t: 16 * mt + 4 * t
    FB = lambda p, mt: 144 + 36 * p + 4 * mt
    FA = lambda p, t: 216 + 16 * p + 4 * t
    AA = lambda t: 248 + t
    VB, VA, LANE, T0 = 252, 253, 254, 255
    stamp(e, 0)
    e("s_load_dwordx4 s[28:31], s[0:1], 32")
    e("s_load_dwordx2 s[36:37], s[0:1], 56")
    e(f"v_lshrrev_b32 v{T0}, 6, v0")
    e(f"v_and_b32 v{LANE}, 63, v0")
    e(f"v_readfirstlane_b32 s{W}, v{T0}")
    e(f"s_bfe_u32 s25, {idreg}, 0x20001")
    e("s_lshl_b32 s25, s25, 2")
    e(f"s_bfe_u32 s26, {idreg}, 0x20003")
    e("s_add_u32 s25, s25, s26")
    e(f"s_and_b32 s26, {idreg}, 1")
    e("s_lshl_b32 s26, s26, 3")
    e(f"s_bfe_u32 s27, {idreg}, 0x30005")
    e("s_add_u32 s26, s26, s27")
    e(f"s_mul_i32 s38, s{W}, 9216")
    e(f"v_lshl_add_u32 v{VB}, v{LANE}, 4, s38")
    e(f"v_lshrrev_b32 v{T0}, 4, v{LANE}")
    e(f"v_lshlrev_b32 v{T0}, 1, v{T0}")
    e(f"v_and_b32 v{VA}, 7, v{LANE}")
    e(f"v_xor_b32 v{VA}, v{VA}, v{T0}")
    e(f"v_lshlrev_b32 v{VA}, 4, v{VA}")
    e(f"v_lshrrev_b32 v{T0}, 3, v{LANE}")
    e(f"v_lshl_add_u32 v{VA}, v{T0}, 11, v{VA}")
    e(f"s_lshl_b32 s38, s{W}, 16")
    e(f"v_add_u32 v{VA}, s38, v{VA}")
    e(f"s_lshl_b32 s41, s{W}, 14")
    e(f"v_lshrrev_b32 v{T0}, 2, v{LANE}")
    e(f"v_and_b32 v{AA(1)}, 3, v{LANE}")
    e(f"v_lshlrev_b32 v{AA(1)}, 3, v{AA(1)}")
    e(f"v_lshl_add_u32 v{AA(0)}, v{T0}, 7, v{AA(1)}")
    e(f"v_bfe_u32 v{T0}, v{LANE}, 3, 2")
    e(f"v_xor_b32 v{T0}, s{W}, v{T0}")
    e(f"v_lshl_add_u32 v{AA(0)}, v{T0}, 5, v{AA(0)}")
    e(f"v_add_u32 v{AA(0)}, s41, v{AA(0)}")
    for t in range(1, 4):
        e(f"v_xor_b32 v{AA(t)}, {32 * t}, v{AA(0)}")
    e.wait(lgkm=0)
    e(f"s_mul_i32 s44, s25, {32 * 36864}")
    e(f"s_add_u32 s{SO}, s36, s44")
    e(f"s_addc_u32 s{SO + 1}, s37, 0")
    e(f"s_mov_b32 s{SO + 2}, {32 * 36864}")
    e(f"s_mov_b32 s{SO + 3}, 0x20000")
    e("s_lshl_b32 s44, s26, 7")
    e(f"s_add_u32 s{SW}, s28, s44")
    e(f"s_addc_u32 s{SW + 1}, s29, 0")
    e(f"s_sub_u32 s{SW + 2}, 8388608, s44")
    e(f"s_mov_b32 s{SW + 3}, 0x20000")
    e("s_mul_i32 s45, s25, 294912")
    e("s_add_u32 s44, s44, s45")
    e(f"s_add_u32 s{SD}, s30, s44")
    e(f"s_addc_u32 s{SD + 1}, s31, 0")
    e(f"s_sub_u32 s{SD + 2}, {16 * 294912}, s44")
    e(f"s_mov_b32 s{SD + 3}, 0x20000")
    e.auto_vm = False
    LEAD = int(OPT["lead"])

    def order(cnt, dst):
        if not LEAD:
            return [f"s_mov_b32 s{dst}, s{cnt}"]
        return [f"s_sub_u32 s{dst}, s{cnt}, 1",
                f"s_cmp_ge_i32 s{dst}, s54",
                f"s_addc_u32 s{dst}, s{dst}, 0",
                f"s_and_b32 s55, s{dst}, 3",
                f"s_cmp_eq_u32 s55, s53",
                f"s_cselect_b32 s55, 4, 0",
                f"s_add_u32 s{dst}, s{dst}, s55",
                f"s_cmp_eq_u32 s{cnt}, 0",
                f"s_cselect_b32 s{dst}, s53, s{dst}"]

    def dma_a(slot):
        out = [f"s_add_u32 m0, s41, {4096 * slot}"] + order(46, 48) + ["s_lshl_b32 s48, s48, 18"]
        for i in range(4):
            if i:
                out.append(f"s_add_u32 s48, s48, {16384 - 1024}")
            out.append(f"buffer_load_dwordx4 v{VA}, {sr(SW)}, s48 offen offset:{1024 * i} {wf} lds")
        out.append("s_add_u32 s46, s46, 1")
        return out

    def b_prep():
        return order(47, 49) + ["s_mul_i32 s49, s49, 36864", "s_add_u32 s50, s49, 4096", "s_add_u32 s51, s49, 8192", "s_add_u32 s47, s47, 1"]

    def b_load(p, mt):
        return f"buffer_load_dwordx4 {vr(FB(p, mt))}, v{VB}, {sr(SO)}, s{49 + mt // 4} offen offset:{1024 * (mt % 4)} {of}"

    def a_reads(p, slot):
        return [f"ds_read_b64_tr_b16 {vr(FA(p, t) + 2 * ee, 2)}, v{AA(t)} offset:{4096 * slot + 2048 * ee}"
                for t in range(4) for ee in range(2)]

    e("s_mov_b32 s46, 0")
    e("s_mov_b32 s47, 0")
    e("s_add_u32 s53, s25, s26")
    e("s_and_b32 s53, s53, 3")
    e("s_add_u32 s54, s53, 28")
    emit(dma_a(0) + dma_a(1) + dma_a(2) + b_prep() + [b_load(0, mt) for mt in range(9)])
    emit(dma_a(3) + b_prep() + [b_load(1, mt) for mt in range(9)])
    for mt in range(9):
        for t in range(4):
            for r in range(0, 4, 2):
                e(f"v_mov_b64 {vr(ACC(mt, t) + r, 2)}, 0")
    e.wait(vm=30)
    stamp(e, 1)
    emit(a_reads(0, 0))
    e("s_mov_b32 s52, 8")
    entry = e.snapshot()
    exits = []
    mark = len(e.lines)
    cnt0 = dict(e.count)
    for rounds in range(2):
        del e.lines[mark:]
        e.count = dict(cnt0)
        e.merge([entry] + exits)
        e.label("C_loop")
        for st in range(4):
            p = st & 1
            e.wait(lgkm=0)
            emit(dma_a(st) + b_prep())
            rd = a_reads(p ^ 1, (st + 1) % 4)
            for mt in range(9):
                e.wait(vm=25)
                m = [f"{MF} {vr(ACC(mt, t))}, {vr(FA(p, t))}, {vr(FB(p, mt))}, {vr(ACC(mt, t))}" for t in range(4)]
                fill = rd[2 * mt: 2 * mt + 2] if mt < 4 else []
                emit(interleave(m, fill))
                e(b_load(p, mt))
        e("s_sub_u32 s52, s52, 1")
        e("s_cmp_lg_u32 s52, 0")
        e("s_cbranch_scc1 C_loop")
        exits = [e.snapshot()]
    stamp(e, 2)
    e.wait(vm=0, lgkm=0)
    e.auto_vm = True
    e("s_barrier")
    WA, RA = VB, VA
    e(f"s_mul_i32 s44, s{W}, 18432")
    e(f"v_lshl_add_u32 v{WA}, v{LANE}, 4, s44")
    e(f"s_xor_b32 s45, s{W}, 2")
    e(f"s_mul_i32 s44, s45, 18432")
    e(f"v_lshl_add_u32 v{RA}, v{LANE}, 4, s44")
    for mt in range(9):
        for k in range(2):
            e(f"ds_write_b128 v{WA}, {vr(ACC(mt, 2 + k))} offset:{1024 * (2 * mt + k)}")
    e.wait(lgkm=0)
    e("s_barrier")
    for mt in range(9):
        for k in range(2):
            e(f"ds_read_b128 {vr(ACC(mt, 2 + k))}, v{RA} offset:{1024 * (2 * mt + k)}")
    for mt in range(9):
        for k in (1, 0):
            for r in range(4):
                e(f"v_add_f32 v{ACC(mt, k) + r}, v{ACC(mt, k) + r}, v{ACC(mt, 2 + k) + r}")
    e.wait(lgkm=0)
    for mt in range(9):
        e(f"ds_write_b128 v{RA}, {vr(ACC(mt, 1))} offset:{1024 * mt}")
    e(f"s_xor_b32 s45, s{W}, 3")
    e(f"s_mul_i32 s44, s45, 18432")
    e(f"v_lshl_add_u32 v{WA}, v{LANE}, 4, s44")
    e.wait(lgkm=0)
    e("s_barrier")
    for mt in range(9):
        e(f"ds_read_b128 {vr(ACC(mt, 1))}, v{WA} offset:{1024 * mt}")
    IMG = lambda mt: 9216 + 2048 * mt if mt < 4 else (27648 + 2048 * (mt - 4) if mt < 8 else 46080)
    X0, X1 = AA(0), AA(1)
    e(f"v_lshrrev_b32 v{X0}, 5, v{LANE}")
    e(f"s_lshl_b32 s44, s{W}, 1")
    e(f"v_add_u32 v{X0}, s44, v{X0}")
    e(f"v_and_b32 v{X1}, 7, v{LANE}")
    e(f"v_xor_b32 v{X0}, v{X0}, v{X1}")
    e(f"v_lshlrev_b32 v{X0}, 4, v{X0}")
    e(f"v_bfe_u32 v{X1}, v{LANE}, 4, 1")
    e(f"v_lshl_add_u32 v{X0}, v{X1}, 3, v{X0}")
    e(f"v_and_b32 v{X1}, 15, v{LANE}")
    e(f"v_lshl_add_u32 v{X0}, v{X1}, 7, v{X0}")
    for mt in range(9):
        a = ACC(mt, 0)
        for r in range(4):
            e(f"v_add_f32 v{a + r}, v{a + r}, v{ACC(mt, 1) + r}")
        e(f"v_cvt_pk_bf16_f32 v{a}, v{a}, v{a + 1}")
        e(f"v_cvt_pk_bf16_f32 v{a + 1}, v{a + 2}, v{a + 3}")
        e(f"ds_write_b64 v{X0}, {vr(a, 2)} offset:{IMG(mt)}")
    X2, X3 = AA(2), AA(3)
    e(f"v_lshrrev_b32 v{X1}, 3, v{LANE}")
    e(f"v_and_b32 v{X2}, 7, v{LANE}")
    e(f"v_xor_b32 v{X2}, v{X2}, v{X1}")
    e(f"v_lshlrev_b32 v{X2}, 4, v{X2}")
    e(f"v_lshl_add_u32 v{X2}, v{X1}, 11, v{X2}")
    e(f"s_lshr_b32 s44, s{W}, 1")
    e(f"s_mul_i32 s44, s44, 18432")
    e(f"s_and_b32 s45, s{W}, 1")
    e(f"s_lshl_b32 s45, s45, 12")
    e(f"s_add_u32 s44, s44, s45")
    e(f"v_lshl_add_u32 v{X3}, v{LANE}, 4, s44")
    e(f"s_lshl_b32 s45, s{W}, 10")
    e(f"v_lshl_add_u32 v{X1}, v{LANE}, 4, s45")
    e.wait(lgkm=0)
    e("s_barrier")
    for i in range(4):
        e(f"ds_read_b128 {vr(4 * i)}, v{X3} offset:{9216 + 1024 * i}")
    e(f"ds_read_b128 {vr(16)}, v{X1} offset:{IMG(8)}")
    e(f"s_lshl_b32 s44, s{W}, 16")
    for i in range(4):
        e(f"buffer_store_dwordx4 {vr(4 * i)}, v{X2}, {sr(SD)}, s44 offen")
        e(f"s_add_u32 s44, s44, 16384")
    e(f"s_cmp_ge_u32 s{W}, 2")
    e("s_cbranch_scc1 C_done")
    e(f"s_lshl_b32 s44, s{W}, 14")
    e(f"s_add_u32 s44, s44, {128 * 2048}")
    e(f"buffer_store_dwordx4 {vr(16)}, v{X2}, {sr(SD)}, s44 offen")
    e.label("C_done")
    if OPT["stamp"]:
        e.wait(vm=0, lgkm=0)
    stamp(e, 3)
    stamp_store(e, 4, 36, STAMP_OFF + (1 << 20), ["s_lshl_b32 s58, s2, 2", f"s_add_u32 s58, s58, s{W}"])
    e("s_endpgm")


def kd(name):
    return f""".section .rodata,"a"
.p2align 6
.amdhsa_kernel {name}
  .amdhsa_next_free_vgpr 256
  .amdhsa_next_free_sgpr 96
  .amdhsa_accum_offset 256
  .amdhsa_group_segment_fixed_size 0
  .amdhsa_kernarg_size 64
  .amdhsa_user_sgpr_count 2
  .amdhsa_user_sgpr_kernarg_segment_ptr 1
  .amdhsa_system_sgpr_workgroup_id_x 1
.end_amdhsa_kernel
"""


def main():
    out = HEADER
    out += "; @launch kernel=att_kernel grid=(256,1,1) block=(512,1,1) lds=163840\n"
    out += "; @launch kernel=oproj_kernel grid=(256,1,1) block=(256,1,1) lds=81920\n"
    out += '.amdgcn_target "amdgcn-amd-amdhsa--gfx950"\n.text\n'
    e = Emitter()
    e.raw(".globl att_kernel\n.p2align 8\n.type att_kernel,@function\natt_kernel:")
    e("s_cmp_ge_u32 s2, 256")
    e("s_cbranch_scc1 P_exit")
    engine(e)
    e.label("P_exit")
    e("s_endpgm")
    e.raw(".p2align 8\n.type cnt_table,@object\ncnt_table:")
    for k in range(96):
        e.raw(f".long {k}")
    e.raw(".size cnt_table, 384")
    e.label("P_end")
    e.raw(".set CODE_KB_P, (P_end - att_kernel) / 1024")
    sys.stderr.write("engine counts: %s\n" % e.count)
    out += e.text()
    e = Emitter()
    e.raw(".globl oproj_kernel\n.p2align 8\n.type oproj_kernel,@function\noproj_kernel:")
    e("s_cmp_ge_u32 s2, 256")
    e("s_cbranch_scc1 C_exit")
    consumer(e)
    e.label("C_exit")
    e("s_endpgm")
    sys.stderr.write("consumer counts: %s\n" % e.count)
    out += e.text()
    out += kd("att_kernel") + kd("oproj_kernel")
    open(sys.argv[1], "w").write(out)


main()
```

```python
import sys, struct, math
from asmlib import *

OPT = dict(stamp=False, kvflag="nt", xflag="", wflag="", oflag="sc1", ostore="sc0 sc1",
           lead="4", qlead="4", prewarm=True, pf0="3", pfd="6", pfstag="0,1,3,4", npf="4", abl_noload=False, abl_not8=False, gap="4", dbg=False, g0prio="2", g1prio="3", pwround="26", outflag="", trace=False, sleep="2", abl="", agap=False, trace0=False)
for a in sys.argv[2:]:
    k, v = a.split("=", 1)
    assert k in OPT, k
    OPT[k] = {"True": True, "False": False}.get(v, v)

HEADER = """; Kernarg layout for this problem (64 bytes, ptrs only, base s[0:1]):
"""


def f32bits(x):
    return struct.unpack("<I", struct.pack("<f", x))[0]


MF = "v_mfma_f32_16x16x32_bf16"
STAMP_OFF = 64 << 20
SPIN_MAX = 1 << 18


def stamp(e, idx):
    if OPT["stamp"] or OPT["dbg"]:
        e(f"s_memrealtime s[{60 + 2 * idx}:{61 + 2 * idx}]")
        e(f"s_memtime s[{76 + 2 * idx}:{77 + 2 * idx}]")
        if idx == 0:
            e("s_mov_b32 s92, 0")
        if idx == 2:
            e("s_mov_b32 s93, s92")
            e("s_mov_b32 s92, 0")


def stamp_store(e, n, ws_lo, base_off, rec):
    if OPT["dbg"]:
        lab = "DBG_skip%d" % len(rec)
        off = 0 if len(rec) == 2 else 64
        e("s_or_b32 s58, s2, s24")
        e("s_cmp_lg_u32 s58, 0")
        e(f"s_cbranch_scc1 {lab}")
        e(f"s_add_u32 s56, s{ws_lo}, {STAMP_OFF}")
        e(f"s_addc_u32 s57, s{ws_lo + 1}, 0")
        e.wait(lgkm=0)
        e("v_mov_b32 v0, 0")
        for i in range(6):
            e(f"v_mov_b32 v1, s{60 + 2 * i}")
            e(f"global_store_dword v0, v1, s[56:57] offset:{off + 4 * i}")
        e.label(lab)
    if not OPT["stamp"]:
        return
    e.wait(lgkm=0)
    e("v_mov_b32 v0, 0")
    for r in rec:
        e(r)
    e(f"s_lshl_b32 s58, s58, 6")
    e(f"s_add_u32 s58, s58, {base_off}")
    e(f"s_add_u32 s56, s{ws_lo}, s58")
    e(f"s_addc_u32 s57, s{ws_lo + 1}, 0")
    for i in range(n):
        e(f"v_mov_b32 v1, s{60 + 2 * i}")
        e(f"global_store_dword v0, v1, s[56:57] offset:{4 * i}")
    for i in range(n):
        e(f"v_mov_b32 v1, s{76 + 2 * i}")
        e(f"global_store_dword v0, v1, s[56:57] offset:{32 + 4 * i}")
    e(f"v_mov_b32 v1, s93")
    e(f"global_store_dword v0, v1, s[56:57] offset:24")
    e(f"v_mov_b32 v1, s92")
    e(f"global_store_dword v0, v1, s[56:57] offset:28")


def mk_emit(e):
    def emit(items):
        for it in items:
            if isinstance(it, tuple):
                e(it[0], it[1])
            elif callable(it):
                it()
            else:
                e(it)
    return emit


XR = 98304
WQREG = lambda st: 16384 * [(0, 1), (3, 2), (4, 5)][((st >> 1) - 13) % 3][st & 1]
KS, VS = 0, 49152
QIA, QIB = 89856, 126720
MRG = 98304
FLG = 163584
F_FULL, F_FREE, F_GB, F_GB1, F_DONE0, F_DONE1 = 0, 16, 32, 48, 64, 80
KNAME = "standalone__mha_block_cached__near_ridge_kernel"
W = 24
MF16 = "v_mfma_f32_16x16x16_bf16"
THR = 10.0


def blocking_poll4(e, name, addr, off, tmp, need, sleep=1):
    e(f"s_mov_b32 s59, {SPIN_MAX}")
    e.label(name)
    e(f"ds_read_b32 v{tmp}, v{addr} offset:{off}")
    e.wait(lgkm=0)
    e(f"v_cmp_lt_u32 s[56:57], v{tmp}, {need}")
    e("s_cmp_eq_u64 s[56:57], 0")
    e(f"s_cbranch_scc1 {name}_ok")
    e(f"s_sleep {sleep}")
    e("s_sub_u32 s59, s59, 1")
    e("s_cmp_lg_u32 s59, 0")
    e(f"s_cbranch_scc1 {name}")
    e.label(name + "_ok")
    if OPT["stamp"]:
        e(f"s_sub_u32 s59, {SPIN_MAX + 1}, s59")
        e("s_add_u32 s92, s92, s59")
        e("s_add_u32 s92, s92, 0x10000")


def kv_addr_setup(e, LANE, AK, AV, T, xor_sgpr, add_k, add_v):
    T0, T1, T2, T3 = T
    q, g = T0, T1
    e(f"v_and_b32 v{q}, 15, v{LANE}")
    e(f"v_lshrrev_b32 v{g}, 4, v{LANE}")
    e(f"v_and_b32 v{T2}, 7, v{q}")
    e(f"v_lshlrev_b32 v{T2}, 1, v{T2}")
    e(f"v_xor_b32 v{T2}, v{T2}, v{g}")
    e(f"v_lshlrev_b32 v{T2}, 4, v{T2}")
    e(f"v_lshl_add_u32 v{AK(0)}, v{q}, 8, v{T2}")
    if add_k is not None:
        e(f"v_add_u32 v{AK(0)}, {add_k}, v{AK(0)}")
    for u in range(1, 4):
        e(f"v_xor_b32 v{AK(u)}, {64 * u}, v{AK(0)}")
    e(f"v_and_b32 v{T3}, 3, v{LANE}")
    e(f"v_lshlrev_b32 v{T3}, 3, v{T3}")
    e(f"v_lshrrev_b32 v{T2}, 2, v{LANE}")
    e(f"v_lshl_add_u32 v{AV(0)}, v{T2}, 8, v{T3}")
    e(f"v_and_b32 v{T2}, 7, v{T2}")
    e(f"v_lshl_add_u32 v{AV(0)}, v{T2}, 5, v{AV(0)}")
    if xor_sgpr is not None:
        e(f"v_xor_b32 v{AV(0)}, {xor_sgpr}, v{AV(0)}")
    e(f"v_add_u32 v{AV(0)}, {add_v}, v{AV(0)}")
    for Tt in range(1, 8):
        e(f"v_xor_b32 v{AV(Tt)}, {32 * Tt}, v{AV(0)}")


def lane_reduce(e, op, x, t):
    e(f"v_mov_b32 v{t}, v{x}")
    e(f"v_permlane32_swap_b32 v{t}, v{x}")
    e(f"{op} v{x}, v{x}, v{t}")
    e(f"v_mov_b32 v{t}, v{x}")
    e(f"v_permlane16_swap_b32 v{t}, v{x}")
    e(f"{op} v{x}, v{x}, v{t}")


def o_srd(e, SO):
    e("s_mul_i32 s44, s27, 36864")
    e(f"s_add_u32 s{SO}, s36, s44")
    e(f"s_addc_u32 s{SO + 1}, s37, 0")
    e(f"s_mov_b32 s{SO + 2}, {2 * 36864}")
    e(f"s_mov_b32 s{SO + 3}, 0x20000")


def signal(e, name, FQ, PL, rnd):
    blocking_poll4(e, name + "a", FQ, F_DONE0, PL, rnd + 1)
    blocking_poll4(e, name + "b", FQ, F_DONE1, PL, rnd + 1)
    e("s_load_dwordx2 s[56:57], s[0:1], 48")
    e("s_and_b32 s58, s25, 1")
    e("s_lshl_b32 s58, s58, 6")
    e("s_add_u32 s58, s58, s25")
    e("s_and_b32 s58, s58, 0xfe")
    e("s_lshl_b32 s58, s58, 1")
    e(f"v_mov_b32 v{PL}, s58")
    e(f"v_mov_b32 v{PL + 1}, 1")
    e.wait(lgkm=0)
    e("s_mov_b64 exec, 1")
    e.raw(f"    global_atomic_add v{PL}, v{PL + 1}, s[56:57] offset:{64 * rnd} sc1")
    e("s_mov_b64 exec, -1")


def joined(e, states):
    st = states[0].copy()
    for s in states[1:]:
        st.hist += [list(h) for h in s.hist]
    return st


def compute_group(e):
    emit = mk_emit(e)
    SO = 20
    O = lambda qt, T: 32 * qt + 4 * T
    Q = lambda qt, u: 64 + 16 * qt + 4 * u
    S = lambda par, kt, qt: 96 + 32 * par + 16 * qt + 4 * kt
    F = lambda i: 160 + 4 * (i % 16)
    NEGM = lambda qt: 224 + 4 * qt
    L = lambda qt: 232 + qt
    TMP = lambda qt: 234 + qt
    FD = 237
    AK = lambda u: 238 + u
    AV = lambda T: 242 + T
    FA_, FQ, PL = 250, 251, 252
    ACC = lambda t, qt: 16 * qt + 4 * t
    FA = lambda p, t: 144 + 16 * p + 4 * t
    NB = 8
    FB = lambda k: 176 + 4 * (k % NB)
    AA = lambda t: 208 + t
    AH = lambda t: 212 + t
    AB, LANE = 216, 217
    T0, T1, T2, T3 = 218, 219, 220, 221
    late = []

    e(f"s_setprio {OPT['g0prio']}")
    e(f"v_and_b32 v{LANE}, 63, v0")
    e(f"v_mov_b32 v{T0}, 0")
    e(f"v_lshlrev_b32 v{T1}, 2, v{LANE}")
    e(f"v_add_u32 v{T1}, {FLG}, v{T1}")
    e(f"ds_write_b32 v{T1}, v{T0}")
    e(f"s_lshl_b32 s44, s{W}, 2")
    e(f"s_add_u32 s44, s44, {FLG}")
    e(f"v_mov_b32 v{FA_}, s44")
    e(f"v_and_b32 v{FQ}, 0xfffffe0c, v{T1}")
    e(f"v_or_b32 v{FQ}, {FLG & 0x1f0}, v{FQ}")
    e.wait(lgkm=0)
    e("s_barrier")
    o_srd(e, SO)
    kv_addr_setup(e, LANE, AK, AV, (T0, T1, T2, T3), None, None, VS)
    q, g, cq = T0, T1, T3
    e(f"v_lshrrev_b32 v{T2}, 2, v{q}")
    e(f"v_and_b32 v{T2}, 2, v{T2}")
    e(f"v_xor_b32 v{T2}, v{T2}, v{g}")
    e(f"v_lshlrev_b32 v{T2}, 4, v{T2}")
    e(f"v_lshl_add_u32 v{T2}, v{q}, 6, v{T2}")
    e(f"v_add_u32 v{AB}, {XR}, v{T2}")
    rp = T2
    e(f"v_bfe_u32 v{rp}, v{LANE}, 2, 2")
    e(f"v_lshl_add_u32 v{q}, v{g}, 3, v{rp}")
    e(f"v_lshl_add_u32 v{q}, v{q}, 8, v{cq}")
    e(f"v_lshl_add_u32 v{q}, v{rp}, 5, v{q}")
    e(f"v_and_b32 v{g}, 1, v{g}")
    e(f"v_lshl_add_u32 v{q}, v{g}, 7, v{q}")
    e(f"s_and_b32 s48, s{W}, 1")
    e(f"s_lshl_b32 s48, s48, 7")
    e(f"v_xor_b32 v{q}, s48, v{q}")
    e(f"s_lshr_b32 s49, s{W}, 1")
    e(f"s_lshl_b32 s44, s49, 13")
    e(f"v_add_u32 v{AA(0)}, s44, v{q}")
    for t in range(1, 4):
        e(f"v_xor_b32 v{AA(t)}, {32 * t}, v{AA(0)}")
    for t in range(4):
        e(f"v_add_u32 v{AH(t)}, 49152, v{AA(t)}")

    def a_reads(st):
        p, base = st & 1, WQREG(st)
        out = []
        for t in range(4):
            for ee in range(2):
                if base < 65536:
                    out.append(f"ds_read_b64_tr_b16 {vr(FA(p, t) + 2 * ee, 2)}, v{AA(t)} offset:{base + 1024 * ee}")
                else:
                    out.append(f"ds_read_b64_tr_b16 {vr(FA(p, t) + 2 * ee, 2)}, v{AH(t)} offset:{base - 49152 + 1024 * ee}")
        return out

    def b_read(k):
        st, qt = k // 9, k % 9
        return f"ds_read_b128 {vr(FB(k))}, v{AB} offset:{18432 * ((st >> 1) % 3) + 9216 * (st & 1) + 1024 * qt}"

    def check_items(nm, need, sink, off=F_FULL, pre=None):
        def br():
            e("s_cmp_eq_u64 s[56:57], 0")
            e(f"s_cbranch_scc0 {nm}")
            snap = e.snapshot()
            e.label(nm + "_ret")

            def slow():
                e.restore(snap)
                e.label(nm)
                if pre:
                    e(pre)
                blocking_poll4(e, nm + "_p", FQ, off, PL, need)
                e(f"s_branch {nm}_ret")
            sink.append(slow)
        return [f"ds_read_b32 v{PL}, v{FQ} offset:{off}", f"v_cmp_lt_u32 s[56:57], v{PL}, {need}", br]

    DB = 6
    blocking_poll4(e, "G0_first", FQ, F_FULL, PL, 1)
    stamp(e, 1)
    emit(a_reads(0) + [b_read(k) for k in range(DB)])
    e(f"s_mov_b32 s50, {f32bits(math.log2(math.e) / math.sqrt(128.0)):#x}")
    QW = 222
    e(f"v_and_b32 v{T1}, 15, v{LANE}")
    e(f"v_lshlrev_b32 v{QW}, 4, v{T1}")
    e(f"v_lshrrev_b32 v{T1}, 5, v{LANE}")
    e(f"v_lshl_add_u32 v{QW}, v{T1}, 8, v{QW}")
    e(f"v_bfe_u32 v{T1}, v{LANE}, 4, 1")
    e(f"v_lshl_add_u32 v{QW}, v{T1}, 3, v{QW}")
    e(f"s_mul_i32 s44, s49, {QIB - QIA}")
    e(f"s_lshl_b32 s45, s48, 4")
    e(f"s_add_u32 s44, s44, s45")
    e(f"s_add_u32 s44, s44, {QIA}")
    e(f"v_add_u32 v{QW}, s44, v{QW}")

    def qconv(qt):
        out = []
        for t in range(4):
            a = ACC(t, qt)
            out += [f"v_mul_f32 v{a + r}, s50, v{a + r}" for r in range(4)]
            out += [f"v_cvt_pk_bf16_f32 v{a}, v{a}, v{a + 1}", f"v_cvt_pk_bf16_f32 v{a + 1}, v{a + 2}, v{a + 3}"]
        return out

    conv = []
    for st in range(32):
        p = st & 1
        ar = a_reads(st + 1) if st < 31 else []
        chk = check_items(f"G0_qs{st + 1}", st + 2, late) if st < 31 else check_items("G0_qfree", 32, late, F_FREE)
        for qt in range(9):
            k = 9 * st + qt
            m = []
            for t in range(4):
                c = "0" if st == 0 else vr(ACC(t, qt))
                m.append(f"{MF} {vr(ACC(t, qt))}, {vr(FA(p, t))}, {vr(FB(k))}, {c}")
            fill = []
            nk = k + DB
            c0 = 0 if st < 31 else 5
            if qt == c0:
                fill.append(chk[0])
            if qt == c0 + 3:
                fill.append(chk[2])
            if nk < 288:
                fill.append(b_read(nk))
            if qt == 1 and st & 1:
                fill.append(f"v_mov_b32 v{FD}, {st + 1}")
            if qt == 2 and st & 1:
                fill.append(f"ds_write_b32 v{FA_}, v{FD} offset:{F_FREE}")
            if qt == c0 + 2:
                fill.append(chk[1])
            if 3 <= qt < 7:
                fill += ar[2 * (qt - 3): 2 * (qt - 3) + 2]
            if st == 31 and qt >= 2:
                conv += qconv(qt - 2)
                fill += conv[:10]
                del conv[:10]
            emit(weave(m, [x for x in fill if kind_of(x) == "v"], [x for x in fill if kind_of(x) == "d"],
                       at={0: [x for x in fill if kind_of(x) == "s"]}))
    stamp(e, 2)
    conv += qconv(7) + qconv(8)
    done = 9 - (len(conv) + 23) // 24
    wr = lambda qt: [f"ds_write_b64 v{QW}, {vr(ACC(t, qt), 2)} offset:{4096 * qt + 512 * t}" for t in range(4)]
    for qt in range(done):
        emit(wr(qt))
    for qt in range(done, 9):
        n = len(conv) - 24 * (8 - qt)
        emit(conv[:n])
        del conv[:n]
        emit(wr(qt))
    e(f"v_mov_b32 v{FD}, 1")
    e(f"ds_write_b32 v{FA_}, v{FD} offset:{F_GB}")
    blocking_poll4(e, "G0_gb0", FQ, F_GB, PL, 1)

    def load_q(img):
        e(f"s_lshl_b32 s44, s{W}, 13")
        e(f"s_add_u32 s44, s44, {img}")
        e(f"v_mbcnt_lo_u32_b32 v{PL}, -1, 0")
        e(f"v_mbcnt_hi_u32_b32 v{PL}, -1, v{PL}")
        e(f"v_lshl_add_u32 v{PL}, v{PL}, 4, s44")
        for qt in range(2):
            for u in range(4):
                e(f"ds_read_b128 {vr(Q(qt, u))}, v{PL} offset:{4096 * qt + 1024 * u}")
        for qt in range(2):
            for r in range(4):
                e(f"v_mov_b32 v{NEGM(qt) + r}, 0")
        e.wait(lgkm=0)

    load_q(QIA)
    e(f"s_mov_b32 s50, {f32bits(THR):#x}")
    blocking_poll4(e, "G0_k0", FQ, F_FULL, PL, 34)
    stamp(e, 3)

    def k_read(sl, kt, u, f):
        return [f"ds_read_b128 {vr(F(f))}, v{AK(u)} offset:{KS + 16384 * sl + 4096 * kt}"]

    def v_read(sl, s, T, f):
        return [f"ds_read_b64_tr_b16 {vr(F(f) + 2 * ee, 2)}, v{AV(T)} offset:{16384 * sl + 4096 * (2 * s + ee)}" for ee in range(2)]

    def qk(par, kt, u, f):
        return [f"{MF} {vr(S(par, kt, qt))}, {vr(F(f))}, {vr(Q(qt, u))}, {vr(NEGM(qt)) if u == 0 else vr(S(par, kt, qt))}"
                for qt in range(2)]

    def maxes(par, kts):
        out = []
        for kt in kts:
            for h in range(2):
                for qt in range(2):
                    s = S(par, kt, qt) + 2 * h
                    if kt == 0 and h == 0:
                        out.append(f"v_max_f32 v{TMP(qt)}, v{s}, v{s + 1}")
                    else:
                        out.append(f"v_max3_f32 v{TMP(qt)}, v{s}, v{s + 1}, v{TMP(qt)}")
        return out

    def softmax(par, s):
        out = []
        for qt in range(2):
            a, b = S(par, 2 * s, qt), S(par, 2 * s + 1, qt)
            regs = [a, a + 1, a + 2, a + 3, b, b + 1, b + 2, b + 3]
            ex = [f"v_exp_f32 v{r}, v{r}" for r in regs]
            ad = [f"v_add_f32 v{L(qt)}, v{L(qt)}, v{r}" for r in regs]
            cv = [f"v_cvt_pk_bf16_f32 v{a + k}, v{regs[2 * k]}, v{regs[2 * k + 1]}" for k in range(4)]
            out += [ex[0], ex[1], ex[2], ad[0], ex[3], ad[1], cv[0], ex[4], ad[2], ex[5], ad[3], cv[1],
                    ex[6], ad[4], ex[7], ad[5], cv[2], ad[6], ad[7], cv[3]]
        return out

    def group_wait(f):
        def w():
            regs = set(f"v{r}" for i in range(4) for r in range(F(f + i), F(f + i) + 4))
            lg = None
            for i, rs in enumerate(e.st.lgkm):
                if rs & regs:
                    lg = len(e.st.lgkm) - 1 - i
            if lg is not None:
                e.wait(lgkm=lg)
        return w

    for f in range(16):
        emit(k_read(0, f // 4, f % 4, f))
    e(f"v_mov_b32 v{FD}, 33")
    e(f"ds_write_b32 v{FA_}, v{FD} offset:{F_FREE}")
    for f in range(16):
        if f % 4 == 0:
            group_wait(f)()
        emit(qk(0, f // 4, f % 4, f))
        if f >= 8:
            emit(k_read(1, (f - 8) // 4, f % 4, f - 8))
    emit(maxes(0, range(4)))
    first_states = [e.snapshot()]
    e("s_call_b64 s[38:39], G0_first_path")
    e("s_mov_b32 s53, 0")
    e("s_mov_b32 s42, 35")
    e("s_mov_b32 s43, 36")
    e.wait(lgkm=4)
    entry = e.snapshot()
    loop_late = []
    slow_states = {0: [], 1: []}
    epi_states = []

    def iteration(v):
        name = f"G0_v{v}"
        cur, nxt = v & 1, (v & 1) ^ 1
        ks, vs, ks2 = (v + 1) % 3, v % 3, (v + 2) % 3
        sm0, sm1 = softmax(cur, 0), softmax(cur, 1)
        if OPT["trace0"]:
            e("s_mov_b32 m0, s53")
            e("s_memrealtime s[94:95]")
            e("s_memtime s[90:91]")
        rel = f"ds_write_b32 v{FA_}, v{FD} offset:{F_FREE}"
        chv = check_items(name + "_xv", "s42", loop_late, pre=rel)
        chk = check_items(name + "_xk", "s43", loop_late, pre=rel)
        tail = maxes(nxt, range(4)) + [f"v_max_f32 v{TMP(2)}, v{TMP(0)}, v{TMP(1)}", f"v_cmp_lt_f32 vcc, s50, v{TMP(2)}"]
        sal = ["s_add_u32 s42, s42, 2", "s_add_u32 s43, s43, 2", "s_add_u32 s53, s53, 1"]
        inc = f"v_add_u32 v{FD}, 1, v{FD}"
        rel = f"ds_write_b32 v{FA_}, v{FD} offset:{F_FREE}"
        sm = sm0 + sm1
        c1, c2 = 31, 56
        valu = [sm[:c1] + [inc, chv[1]], sm[c1:c2], sm[c2:] + [inc, chk[1]], tail]
        for seg in range(4):
            m, rd = [], []
            for i in range(8):
                f = 8 * seg + i
                if seg < 2:
                    m += qk(nxt, 2 * seg + i // 4, i % 4, f)
                else:
                    m += [f"{MF} {vr(O(qt, i))}, {vr(F(f))}, {vr(S(cur, 2 * (seg - 2), qt))}, {vr(O(qt, i))}" for qt in range(2)]
                if seg == 0:
                    rd += k_read(ks, 2 + i // 4, i % 4, f + 8)
                elif seg < 3:
                    rd += v_read(vs, seg - 1, i, f + 8)
                else:
                    rd += k_read(ks2, i // 4, i % 4, f + 8)
            at = {7: [group_wait(8 * seg + 4)], 15: [group_wait(8 * seg + 8)]}
            if seg in (0, 2):
                at[6] = [(chv if seg == 0 else chk)[0]]
                emit(weave(m, valu[seg], rd, at=at))
            elif seg == 1:
                at[0] = [chv[2], rel]
                emit(weave(m, valu[seg], rd, at=at))
            else:
                at[0] = [chk[2], rel]
                emit(weave(m, valu[seg], rd, sal, lo=1, hi=14, at=at))
        if OPT["trace0"]:
            e.raw("    v_writelane_b32 v254, s94, m0")
            e.raw("    v_writelane_b32 v255, s90, m0")
        if v in (1, 3):
            e(f"s_cmp_eq_u32 s53, {8 if v == 1 else 16}")
            e(f"s_cbranch_scc1 {name}_end")
            snap = e.snapshot()

            def headend(v=v, snap=snap, name=name):
                e.restore(snap)
                e.label(name + "_end")
                epi_states.append(e.snapshot())
                e("s_call_b64 s[38:39], G0_epi")
                if v == 1:
                    stamp(e, 4)
                    first_states.append(e.snapshot())
                    e("s_call_b64 s[38:39], G0_first_path")
                    e(f"s_branch {name}_ret")
                else:
                    e("s_branch G0_done")
            loop_late.append(headend)
        e(f"s_cbranch_vccnz {name}_g")
        snap = e.snapshot()
        slow_states[nxt].append(snap)
        e.label(name + "_ret")

        def tramp(name=name, snap=snap, nxt=nxt):
            e.restore(snap)
            e.label(name + "_g")
            e(f"s_call_b64 s[38:39], G0_slow{nxt}")
            e(f"s_branch {name}_ret")
        loop_late.append(tramp)
        if v == 2:
            e("s_cmp_eq_u32 s53, 9")
            e(f"s_cbranch_scc1 {name}_d")
            snap3 = e.snapshot()
            e.label(name + "_dret")

            def done_a(name=name, snap3=snap3):
                e.restore(snap3)
                e.label(name + "_d")
                e(f"v_mov_b32 v{PL + 1}, 1")
                e.wait(vm=0)
                e(f"ds_write_b32 v{FA_}, v{PL + 1} offset:{F_DONE0}")
                e(f"s_branch {name}_dret")
            loop_late.append(done_a)
        if v == 0:
            e("s_cmp_eq_u32 s53, 7")
            e(f"s_cbranch_scc1 {name}_q")
            snap2 = e.snapshot()
            e.label(name + "_qret")

            def newq(name=name, snap2=snap2):
                e.restore(snap2)
                e.label(name + "_q")
                load_q(QIB)
                e("s_nop 1")
                e(f"s_branch {name}_qret")
            loop_late.append(newq)

    exits = []
    mark = len(e.lines)
    cnt0 = dict(e.count)
    for rounds in range(2):
        del e.lines[mark:]
        e.count = dict(cnt0)
        loop_late.clear()
        slow_states[0].clear()
        slow_states[1].clear()
        e.merge([entry] + exits)
        e.label("G0_loop")
        for v in range(6):
            iteration(v)
        e("s_branch G0_loop")
        exits = [e.snapshot()]
    e.label("G0_done")
    e(f"v_mov_b32 v{PL + 1}, 2")
    e.wait(vm=0, lgkm=0)
    e(f"ds_write_b32 v{FA_}, v{PL + 1} offset:{F_DONE0}")
    stamp(e, 5)
    e(f"s_cmp_lg_u32 s{W}, 0")
    e("s_cbranch_scc1 G0_exit")
    signal(e, "G0_sig", FQ, PL, 1)
    e.label("G0_exit")
    if OPT["trace0"]:
        e("s_lshl_b32 s58, s2, 2")
        e(f"s_add_u32 s58, s58, s{W}")
        e("s_lshl_b32 s58, s58, 9")
        e(f"s_add_u32 s58, s58, {STAMP_OFF + (2 << 20)}")
        e(f"v_mbcnt_lo_u32_b32 v2, -1, 0")
        e(f"v_mbcnt_hi_u32_b32 v2, -1, v2")
        e(f"v_lshl_add_u32 v2, v2, 2, s58")
        e(f"global_store_dword v2, v254, s[36:37]")
        e(f"global_store_dword v2, v255, s[36:37] offset:256")
    stamp_store(e, 6, 36, STAMP_OFF, ["s_lshl_b32 s58, s2, 2", f"s_add_u32 s58, s58, s{W}"])
    e("s_endpgm")
    for f in late + list(loop_late):
        f()

    def shift(par, first):
        for qt in range(2):
            t = TMP(qt)
            lane_reduce(e, "v_max_f32", t, NEGM(qt) + 1)
            if not first:
                e(f"v_max_f32 v{t}, 0, v{t}")
            e(f"v_sub_f32 v{NEGM(qt)}, v{NEGM(qt)}, v{t}")
            for r in range(1, 4):
                e(f"v_mov_b32 v{NEGM(qt) + r}, v{NEGM(qt)}")
            for kt in range(4):
                for r in range(4):
                    e(f"v_sub_f32 v{S(par, kt, qt) + r}, v{S(par, kt, qt) + r}, v{t}")

    e.restore(joined(e, first_states))
    e.label("G0_first_path")
    e("s_nop 7")
    shift(0, True)
    for qt in range(2):
        e(f"v_mov_b32 v{L(qt)}, 0")
        for r in range(0, 32, 2):
            e(f"v_mov_b64 {vr(O(qt, 0) + r, 2)}, 0")
    e("s_nop 1")
    e("s_setpc_b64 s[38:39]")
    for par in range(2):
        e.restore(joined(e, slow_states[par]))
        e.label(f"G0_slow{par}")
        shift(par, False)
        for qt in range(2):
            t = TMP(qt)
            e(f"v_exp_f32 v{t}, -v{t}")
            e(f"v_mul_f32 v{L(qt)}, v{L(qt)}, v{t}")
            for r in range(32):
                e(f"v_mul_f32 v{O(qt, 0) + r}, v{O(qt, 0) + r}, v{t}")
        e("s_nop 1")
        e("s_setpc_b64 s[38:39]")
    e.restore(joined(e, epi_states))
    e.label("G0_epi")
    X0 = PL
    e(f"v_mbcnt_lo_u32_b32 v{X0}, -1, 0")
    e(f"v_mbcnt_hi_u32_b32 v{X0}, -1, v{X0}")
    for qt in range(2):
        lane_reduce(e, "v_add_f32", L(qt), PL + 1)
    e(f"s_lshl_b32 s44, s{W}, 11")
    e(f"v_lshl_add_u32 v{X0}, v{X0}, 4, s44")
    e("s_lshr_b32 s45, s53, 4")
    e("s_mul_i32 s45, s45, 36864")
    osf = OPT["ostore"]
    for qt in range(2):
        e(f"v_rcp_f32 v{L(qt)}, v{L(qt)}")
    for u in range(4):
        for qt in range(2):
            a = O(qt, 2 * u)
            for r in range(8):
                e(f"v_mul_f32 v{a + r}, v{a + r}, v{L(qt)}")
            for k in range(4):
                e(f"v_cvt_pk_bf16_f32 v{a + k}, v{a + 2 * k}, v{a + 2 * k + 1}")
            e(f"buffer_store_dwordx4 {vr(a)}, v{X0}, {sr(SO)}, s45 offen offset:{1024 * qt} {osf}")
        e(f"s_add_u32 s45, s45, 9216")
    e("s_setpc_b64 s[38:39]")


def loader_group(e):
    emit = mk_emit(e)
    SX, SW, SK, SV, SO = 4, 8, 12, 16, 20
    kvf, xf, wf = OPT["kvflag"], OPT["xflag"], OPT["wflag"]
    BUF = lambda c: 4 * c
    O8 = lambda T: 128 + 4 * T
    Q8 = lambda u: 160 + 4 * u
    S8 = 176
    KF = lambda u: 180 + 4 * u
    VF = lambda T: 196 + 2 * T
    NEGM, L8, TM, TM2 = 212, 216, 217, 218
    AK = lambda u: 220 + u
    AV = lambda T: 224 + T
    VXM = lambda i: 232 + i
    VX8 = 234
    VWQ = lambda i: 235 + i
    VKV = lambda i: 237 + (i & 1)
    LANE, FQ, FW, FD, WA = 239, 240, 241, 242, 243
    T0, T1, T2, T3 = 244, 245, 246, 247
    PL, DUMMY = 248, 219
    late = []
    e(f"v_and_b32 v{LANE}, 63, v0")
    g4 = T0
    e(f"v_lshrrev_b32 v{g4}, 4, v{LANE}")
    e(f"v_and_b32 v{T1}, 2, v{g4}")
    e(f"v_and_b32 v{T2}, 3, v{LANE}")
    e(f"v_xor_b32 v{T1}, v{T1}, v{T2}")
    e(f"v_lshlrev_b32 v{T1}, 4, v{T1}")
    e(f"v_lshrrev_b32 v{T2}, 2, v{LANE}")
    e(f"v_lshl_add_u32 v{T1}, v{T2}, 11, v{T1}")
    e(f"s_lshl_b32 s38, s{W}, 16")
    e(f"v_add_u32 v{VXM(0)}, s38, v{T1}")
    e(f"v_add_u32 v{VXM(1)}, {32768 - 1024}, v{VXM(0)}")
    e(f"v_add_u32 v{VX8}, {128 * 2048}, v{T1}")
    e(f"v_and_b32 v{T1}, 15, v{LANE}")
    e(f"v_lshlrev_b32 v{T2}, 1, v{g4}")
    e(f"v_xor_b32 v{T1}, v{T1}, v{T2}")
    e(f"s_and_b32 s39, s{W}, 1")
    e(f"s_lshl_b32 s40, s39, 3")
    e(f"v_xor_b32 v{T2}, s40, v{T1}")
    e(f"v_lshlrev_b32 v{T2}, 4, v{T2}")
    e(f"v_lshl_add_u32 v{T3}, v{g4}, 13, v{T2}")
    e(f"v_add_u32 v{VWQ(0)}, s38, v{T3}")
    e(f"v_add_u32 v{VWQ(1)}, {32768 - 1024}, v{VWQ(0)}")
    e(f"s_lshl_b32 s41, s{W}, 12")
    e(f"v_lshlrev_b32 v{T1}, 4, v{T1}")
    e(f"v_lshl_add_u32 v{T1}, v{g4}, 8, v{T1}")
    e(f"v_add_u32 v{VKV(0)}, s41, v{T1}")
    e(f"v_xor_b32 v{VKV(1)}, 0x80, v{VKV(0)}")
    e(f"s_lshl_b32 s42, s{W}, 11")
    e("s_lshr_b32 s53, s26, 1")
    e("s_add_u32 s53, s53, s25")
    e("s_and_b32 s53, s53, 3")
    e.wait(lgkm=0)
    e("s_mul_i32 s44, s25, 294912")
    e(f"s_add_u32 s{SX}, s28, s44")
    e(f"s_addc_u32 s{SX + 1}, s29, 0")
    e(f"s_mov_b32 s{SX + 2}, 294912")
    e(f"s_mov_b32 s{SX + 3}, 0x20000")
    e("s_lshl_b32 s44, s26, 8")
    e(f"s_add_u32 s{SW}, s34, s44")
    e(f"s_addc_u32 s{SW + 1}, s35, 0")
    e(f"s_sub_u32 s{SW + 2}, 8388608, s44")
    e(f"s_mov_b32 s{SW + 3}, 0x20000")

    QLEAD = int(OPT["qlead"])

    def unit_of(P):
        if not QLEAD:
            return [f"s_mov_b32 s46, {P}"]
        if P == 0:
            return ["s_mov_b32 s46, s53"]
        tp = P - 1
        if tp < 12:
            return [f"s_cmp_eq_u32 s53, {tp & 3}", f"s_cselect_b32 s46, {tp + 4}, {tp}"]
        return [f"s_cmp_le_u32 s53, {tp - 12}", f"s_cselect_b32 s46, {tp + 1}, {tp}"]

    def gap(st, k):
        g = int(OPT["gap"])
        if st < 2 or g == 0 or (g == 4 and k == 0):
            return []
        return [lambda: e.raw(f"    global_load_dword v{DUMMY}, v{FD}, s[48:49]")]

    def issue_step(st):
        out = []
        P = st >> 1
        if st % 2 == 0:
            xs = XR + 18432 * (P % 3)
            out += unit_of(P)
            out += ["s_lshl_b32 s50, s46, 7", "s_add_u32 s51, s50, 64", "s_lshl_b32 s46, s46, 19"]

            def x8():
                e(f"s_cmp_eq_u32 s{W}, {P & 3}")
                e(f"s_cbranch_scc0 G1_x8s{st}")
                for hf in range(2):
                    e.raw(f"    s_mov_b32 m0, {xs + 9216 * hf + 8192}")
                    e.raw(f"    s_nop 0")
                    e.raw(f"    buffer_load_dwordx4 v{VX8}, {sr(SX)}, s{50 + hf} offen {xf} lds")
                e.label(f"G1_x8s{st}")
            out.append(x8)
            for hf in range(2):
                out.append(f"s_add_u32 m0, s42, {xs + 9216 * hf}")
                out.append((f"buffer_load_dwordx4 v{VXM(0)}, {sr(SX)}, s{50 + hf} offen {xf} lds", ("q", st)))
                out.append((f"buffer_load_dwordx4 v{VXM(1)}, {sr(SX)}, s{50 + hf} offen offset:1024 {xf} lds", ("q", st)))
                out += gap(st, hf)
        for hh in range(2):
            out.append(f"s_add_u32 m0, s42, {WQREG(st) + 8192 * hh}")
            out.append(f"s_add_u32 s45, s46, {262144 * (st & 1) + 256 * hh}")
            out.append((f"buffer_load_dwordx4 v{VWQ(0)}, {sr(SW)}, s45 offen {wf} lds", ("q", st)))
            out.append((f"buffer_load_dwordx4 v{VWQ(1)}, {sr(SW)}, s45 offen offset:1024 {wf} lds", ("q", st)))
            out += gap(st, hh)
        return out

    emit(issue_step(0))
    e("s_lshl_b32 s44, s27, 17")
    e(f"s_add_u32 s{SK}, s30, s44")
    e(f"s_addc_u32 s{SK + 1}, s31, 0")
    e(f"s_mov_b32 s{SK + 2}, 262144")
    e(f"s_mov_b32 s{SK + 3}, 0x20000")
    e(f"s_add_u32 s{SV}, s32, s44")
    e(f"s_addc_u32 s{SV + 1}, s33, 0")
    e(f"s_mov_b32 s{SV + 2}, 262144")
    e(f"s_mov_b32 s{SV + 3}, 0x20000")
    e(f"v_and_b32 v{FQ}, 3, v{LANE}")
    e(f"v_lshlrev_b32 v{FQ}, 2, v{FQ}")
    e(f"v_add_u32 v{FQ}, {FLG}, v{FQ}")
    e(f"s_lshl_b32 s44, s{W}, 2")
    e(f"v_mov_b32 v{FW}, {FLG}")
    e(f"v_add_u32 v{FW}, s44, v{FW}")
    e(f"s_add_u32 s43, s44, {FLG + F_FULL}")
    e("s_getpc_b64 s[54:55]")
    e.raw("G1_pc:")
    e(f"s_sub_u32 s54, s54, G1_pc - {KNAME}")
    e("s_subb_u32 s55, s55, 0")
    e(f"s_add_u32 s48, s54, cnt_table - {KNAME}")
    e("s_addc_u32 s49, s55, 0")
    e("s_lshr_b32 s44, s2, 3")
    e("s_lshl_b32 s44, s44, 2")
    e(f"s_add_u32 s44, s44, s{W}")
    e("s_min_u32 s44, s44, CODE_KB_P")
    e("s_lshl_b32 s44, s44, 10")
    e(f"v_lshl_add_u32 v{T1}, v{LANE}, 4, s44")
    e.raw(f"    global_load_dwordx4 {vr(KF(0))}, v{T1}, s[54:55]")
    o_srd(e, SO)
    e(f"s_lshl_b32 s44, s{W}, 6")
    e(f"s_add_u32 s45, s41, {VS}")
    kv_addr_setup(e, LANE, AK, AV, (T0, T1, T2, T3), "s44", "s41", "s45")
    e(f"v_lshl_add_u32 v{WA}, v{LANE}, 4, s41")
    e("s_barrier")

    def publish(val):
        e(f"v_mov_b32 v{FD}, {4 * val}")
        e("s_mov_b32 m0, s43")
        e("s_mov_b64 exec, 1")
        e(f"global_load_lds_dword v{FD}, s[48:49]", ("f", val))
        e("s_mov_b64 exec, -1")

    trace_n = [0]

    def trace():
        if OPT["trace"]:
            e("s_memrealtime s[94:95]")
            e("s_memtime s[90:91]")
            e.wait(lgkm=0)
            e(f"v_writelane_b32 v254, s94, {trace_n[0]}")
            e(f"v_writelane_b32 v255, s90, {trace_n[0]}")
            trace_n[0] += 1

    def need_free(nm, need):
        if need > 64:
            e(f"s_mov_b32 s58, {need}")
            need = "s58"
        blocking_poll4(e, nm, FQ, F_FREE, PL, need)
        trace()

    if OPT["abl_noload"]:
        e.wait(vm=0)
        e(f"v_mov_b32 v{FD}, 100")
        e(f"ds_write_b32 v{FW}, v{FD} offset:{F_FULL}")
        e("s_endpgm")

    tile_of = lambda n: (False, 0) if n == 0 else ((False, (n + 1) // 2) if n & 1 else (True, n // 2 - 1))
    NPF = int(OPT["npf"])
    allp = [(n, c) for n in range(5, 33) for c in range(4) if n != 31]
    nreg = 8 * NPF
    regp = [allp[(len(allp) * k + len(allp) // 2) // nreg] for k in range(nreg)] if nreg else []
    assert len(set(regp)) == nreg

    def piece_src(n, c):
        isv, j = tile_of(n)
        return (SV if isv else SK, 16384 * j)

    def piece_slot(n, c):
        isv, j = tile_of(n)
        return (VS if isv else KS) + 16384 * (j % 3)

    def pf_batch(bt, st):
        for k in range(8 * bt, 8 * bt + 8):
            p, c = regp[k]
            srd, off = piece_src(p, c)
            e.raw(f"    s_mov_b32 s52, {off}")
            e.raw(f"    buffer_load_dwordx4 {vr(BUF(k))}, v{VKV(c)}, {sr(srd)}, s52 offen offset:{1024 * (c & 3)} {kvf}")

    def fill(n):
        for c in range(4):
            if (n, c) in regp and "nowr" not in OPT["abl"]:
                off = piece_slot(n, c) + 1024 * c
                if off < 65536:
                    e(f"ds_write_b128 v{WA}, {vr(BUF(regp.index((n, c))))} offset:{off}")
                else:
                    e(f"ds_write_b128 v{T3}, {vr(BUF(regp.index((n, c))))} offset:{off - 49152}")
        srd, off = piece_src(n, 0)
        e(f"s_add_u32 m0, s41, {piece_slot(n, 0)}")
        e(f"s_mov_b32 s52, {off}")
        for c in range(4):
            if (n, c) not in regp and not ("nodma" in OPT["abl"] and n > 6):
                e(f"buffer_load_dwordx4 v{VKV(c)}, {sr(srd)}, s52 offen offset:{1024 * c} {kvf} lds", ("a", n))
                if OPT["agap"]:
                    e(f"global_load_dword v{DUMMY}, v{FD}, s[48:49]".replace(f"v{DUMMY},", f"v{DUMMY},"), ("g", n))
                    e.st.vm[-1] = (set(), ("g", n))

    def landed(p):
        n = e.vm_needed_for_tags(lambda t: t[0] == "a" and t[1] <= p)
        if n is not None:
            e.wait(vm=n)

    stag = [int(x) for x in OPT["pfstag"].split(",")]
    pf0, pfd = int(OPT["pf0"]), int(OPT["pfd"])
    publish(1)
    emit(issue_step(1))
    publish(2)
    stamp(e, 1)
    for st in range(2, 32):
        if st >= 6 and st % 2 == 0:
            need_free(f"G1_fq{st}", st - 4)
        emit(issue_step(st))
        publish(st + 1)
        for bt in range(NPF):
            for r in range(4):
                if pf0 + pfd * bt + stag[r] == st:
                    assert st < 31
                    e(f"s_cmp_eq_u32 s53, {r}")
                    e(f"s_cbranch_scc0 G1_pf{bt}_{r}")
                    pf_batch(bt, st)
                    e.label(f"G1_pf{bt}_{r}")
    e(f"v_add_u32 v{T3}, 49152, v{WA}")
    stamp(e, 2)
    need_free("G1_fa0", 28)
    fill(0)
    fill(1)
    publish(34)
    need_free("G1_fa2", 30)
    fill(2)
    publish(35)
    fill(3)
    publish(36)
    need_free("G1_fa4", 32)
    fill(4)
    publish(37)
    e(f"s_mov_b32 s50, {f32bits(THR):#x}")

    def load_q8(img):
        e(f"s_sub_u32 s44, {img + 32768}, s41")
        e(f"v_add_u32 v{PL}, s44, v{WA}")
        for u in range(4):
            e(f"ds_read_b128 {vr(Q8(u))}, v{PL} offset:{1024 * u}")
        for r in range(4):
            e(f"v_mov_b32 v{NEGM + r}, 0")
        e.wait(lgkm=0)

    slow_states = []

    def qk8_reads(j):
        landed(0 if j == 0 else 2 * j - 1)
        for u in range(4):
            e(f"ds_read_b128 {vr(KF(u))}, v{AK(u)} offset:{KS + 16384 * (j % 3)}")
        return 4

    def qk8_math(j):
        for u in range(4):
            e(f"{MF} {vr(S8)}, {vr(KF(u))}, {vr(Q8(u))}, {vr(NEGM) if u == 0 else vr(S8)}")
        e(f"v_max_f32 v{TM}, v{S8}, v{S8 + 1}")
        e(f"v_max3_f32 v{TM}, v{S8 + 2}, v{S8 + 3}, v{TM}")
        if j % 8 == 0:
            lane_reduce(e, "v_max_f32", TM, TM2)
            for r in range(4):
                e(f"v_sub_f32 v{NEGM + r}, 0, v{TM}")
                e(f"v_sub_f32 v{S8 + r}, v{S8 + r}, v{TM}")
            e(f"v_mov_b32 v{L8}, 0")
        else:
            e(f"v_cmp_lt_f32 vcc, s50, v{TM}")
            e("s_nop 1")
            e(f"s_cbranch_vccnz G1_g{j}")
            snap = e.snapshot()
            slow_states.append(snap)
            e.label(f"G1_g{j}_ret")

            def tramp():
                e.restore(snap)
                e.label(f"G1_g{j}")
                e("s_call_b64 s[38:39], G1_slow")
                e(f"s_branch G1_g{j}_ret")
            late.append(tramp)
        for r in range(4):
            e(f"v_exp_f32 v{S8 + r}, v{S8 + r}")
        for r in range(4):
            e(f"v_add_f32 v{L8}, v{L8}, v{S8 + r}")
        e(f"v_cvt_pk_bf16_f32 v{S8}, v{S8}, v{S8 + 1}")
        e(f"v_cvt_pk_bf16_f32 v{S8 + 1}, v{S8 + 2}, v{S8 + 3}")

    def pv8_reads(j):
        landed(2 * j + 2)
        for T in range(8):
            e(f"ds_read_b64_tr_b16 {vr(VF(T), 2)}, v{AV(T)} offset:{16384 * (j % 3)}")
        return 8

    def pv8_math(j):
        for T in range(8):
            e(f"{MF16} {vr(O8(T))}, {vr(VF(T), 2)}, {vr(S8, 2)}, {'0' if j % 8 == 0 else vr(O8(T))}")

    X1, X2, X3 = T0, T1, T2

    def merge1(hd):
        lane_reduce(e, "v_add_f32", L8, TM)
        e(f"v_lshlrev_b32 v{X3}, 4, v{LANE}")
        for c in range(1, 4):
            e(f"s_xor_b32 s44, s{W}, {c}")
            e(f"s_mul_i32 s44, s44, 6144")
            e(f"s_add_u32 s44, s44, {MRG + 2048 * (c - 1)}")
            e(f"v_add_u32 v{X1}, s44, v{X3}")
            for k in range(2):
                e(f"ds_write_b128 v{X1}, {vr(O8(2 * c + k))} offset:{1024 * k}")
        e(f"s_lshl_b32 s44, s{W}, 9")
        e(f"s_add_u32 s44, s44, {MRG + 24576}")
        e(f"v_lshl_add_u32 v{X2}, v{LANE}, 3, s44")
        e(f"v_mov_b32 v{NEGM + 1}, v{L8}")
        e(f"v_mov_b32 v{TM2}, {hd + 1}")
        e(f"ds_write_b64 v{X2}, {vr(NEGM, 2)}")
        e(f"ds_write_b32 v{FW}, v{TM2} offset:{F_GB1}")
        for r in range(8):
            e(f"v_mov_b32 v{r}, v{O8(0) + r}")
        e.wait(lgkm=0)

    def merge2(hd):
        ST = lambda c: 32 + 2 * c
        PO = lambda c, k: 8 * c + 4 * k
        e(f"v_lshlrev_b32 v{X3}, 4, v{LANE}")
        blocking_poll4(e, f"G1_gb1{hd}", FQ, F_GB1, PL + 1, hd + 1)
        for c in range(4):
            e(f"s_xor_b32 s44, s{W}, {c}")
            e(f"s_lshl_b32 s44, s44, 9")
            e(f"s_add_u32 s44, s44, {MRG + 24576}")
            e(f"v_lshl_add_u32 v{X2}, v{LANE}, 3, s44")
            e(f"ds_read_b64 {vr(ST(c), 2)}, v{X2}")
        e(f"s_mul_i32 s44, s{W}, 6144")
        e(f"s_add_u32 s44, s44, {MRG}")
        e(f"v_add_u32 v{X1}, s44, v{X3}")
        for c in range(1, 4):
            for k in range(2):
                e(f"ds_read_b128 {vr(PO(c, k))}, v{X1} offset:{2048 * (c - 1) + 1024 * k}")
        mn = TM
        e(f"v_min_f32 v{mn}, v{ST(0)}, v{ST(1)}")
        e(f"v_min3_f32 v{mn}, v{ST(2)}, v{ST(3)}, v{mn}")
        for c in range(4):
            e(f"v_sub_f32 v{ST(c)}, v{mn}, v{ST(c)}")
        for c in range(4):
            e(f"v_exp_f32 v{ST(c)}, v{ST(c)}")
        e(f"v_mul_f32 v{mn}, v{ST(0)}, v{ST(0) + 1}")
        for c in range(1, 4):
            e(f"v_fma_f32 v{mn}, v{ST(c)}, v{ST(c) + 1}, v{mn}")
        e(f"v_rcp_f32 v{mn}, v{mn}")
        for c in range(4):
            e(f"v_mul_f32 v{ST(c)}, v{ST(c)}, v{mn}")
        for r in range(8):
            e(f"v_mul_f32 v{r}, v{r}, v{ST(0)}")
        for c in range(1, 4):
            for r in range(8):
                e(f"v_fma_f32 v{r}, v{PO(c, 0) + r}, v{ST(c)}, v{r}")
        for k in range(4):
            e(f"v_cvt_pk_bf16_f32 v{k}, v{2 * k}, v{2 * k + 1}")
        e(f"s_mul_i32 s45, s{W}, 9216")
        e(f"s_add_u32 s45, s45, {8192 + 36864 * hd}")
        e(f"buffer_store_dwordx4 {vr(0)}, v{X3}, {sr(SO)}, s45 offen {OPT['ostore']}", ("st", hd))

    def fast_free(nm, need):
        e(f"v_cmp_lt_u32 s[56:57], v{PL}, {need}")
        e("s_cmp_eq_u64 s[56:57], 0")
        e(f"s_cbranch_scc0 {nm}")
        snap = e.snapshot()
        e.label(nm + "_ret")

        def slow():
            e.restore(snap)
            e.label(nm)
            e("s_setprio 0")
            blocking_poll4(e, nm + "_p", FQ, F_FREE, PL, need, sleep=int(OPT["sleep"]))
            e(f"s_setprio {OPT['g1prio']}")
            e(f"s_branch {nm}_ret")
        late.append(slow)
        trace()

    CO, CW, CD, CG = 4, 8, 12, 16
    of = OPT["oflag"]
    acc_regs = list(range(0, 40, 4)) + list(range(112, 216, 4))
    ACC = lambda mt, t: acc_regs[4 * mt + t]
    FB = lambda p, mt: 40 + 36 * p + 4 * mt
    FA = lambda p, t: 216 + 16 * p + 4 * t
    AA = lambda t: 248 + t
    VB, VA, PG, PH = 252, 253, 254, 255
    ASLOT = lambda s: KS + 16384 * ((s + 1) % 3)

    def c_setup():
        e("s_load_dwordx4 s[28:31], s[0:1], 32")
        e("s_load_dwordx2 s[32:33], s[0:1], 48")
        e("s_bfe_u32 s34, s2, 0x20001")
        e("s_lshl_b32 s34, s34, 2")
        e("s_bfe_u32 s35, s2, 0x20003")
        e("s_add_u32 s34, s34, s35")
        e("s_and_b32 s35, s2, 1")
        e("s_lshl_b32 s35, s35, 3")
        e("s_bfe_u32 s44, s2, 0x30005")
        e("s_add_u32 s35, s35, s44")
        e("s_add_u32 s53, s34, s35")
        e("s_and_b32 s53, s53, 3")
        e(f"s_mul_i32 s44, s{W}, 9216")
        e(f"v_lshl_add_u32 v{VB}, v{LANE}, 4, s44")
        e(f"v_lshrrev_b32 v{T0}, 4, v{LANE}")
        e(f"v_lshlrev_b32 v{T0}, 1, v{T0}")
        e(f"v_and_b32 v{VA}, 7, v{LANE}")
        e(f"v_xor_b32 v{VA}, v{VA}, v{T0}")
        e(f"v_lshlrev_b32 v{VA}, 4, v{VA}")
        e(f"v_lshrrev_b32 v{T0}, 3, v{LANE}")
        e(f"v_lshl_add_u32 v{VA}, v{T0}, 11, v{VA}")
        e(f"s_lshl_b32 s44, s{W}, 16")
        e(f"v_add_u32 v{VA}, s44, v{VA}")
        e.wait(lgkm=0)
        e(f"s_mul_i32 s44, s34, {32 * 36864}")
        e(f"s_add_u32 s{CO}, s36, s44")
        e(f"s_addc_u32 s{CO + 1}, s37, 0")
        e(f"s_mov_b32 s{CO + 2}, {32 * 36864}")
        e(f"s_mov_b32 s{CO + 3}, 0x20000")
        e("s_lshl_b32 s44, s35, 7")
        e(f"s_add_u32 s{CW}, s28, s44")
        e(f"s_addc_u32 s{CW + 1}, s29, 0")
        e(f"s_sub_u32 s{CW + 2}, 8388608, s44")
        e(f"s_mov_b32 s{CW + 3}, 0x20000")
        e("s_mul_i32 s45, s34, 294912")
        e("s_add_u32 s44, s44, s45")
        e(f"s_add_u32 s{CD}, s30, s44")
        e(f"s_addc_u32 s{CD + 1}, s31, 0")
        e(f"s_sub_u32 s{CD + 2}, {16 * 294912}, s44")
        e(f"s_mov_b32 s{CD + 3}, 0x20000")
        e(f"s_mov_b32 s{CG}, s32")
        e(f"s_mov_b32 s{CG + 1}, s33")
        e(f"s_mov_b32 s{CG + 2}, 256")
        e(f"s_mov_b32 s{CG + 3}, 0x20000")
        e("s_and_b32 s40, s34, 1")
        e("s_lshl_b32 s40, s40, 6")
        e("s_add_u32 s40, s40, s34")
        e("s_and_b32 s40, s40, 0xfe")
        e("s_lshl_b32 s40, s40, 1")

    def head_of(pos, dst):
        P, rnd = pos % 16, pos // 16
        if not int(OPT["lead"]):
            return [f"s_mov_b32 s{dst}, {2 * P + rnd}"]
        if P == 0:
            return [f"s_lshl_b32 s{dst}, s53, 1", f"s_add_u32 s{dst}, s{dst}, {rnd}"]
        tp = P - 1
        if tp < 12:
            return [f"s_cmp_eq_u32 s53, {tp & 3}", f"s_cselect_b32 s{dst}, {2 * (tp + 4) + rnd}, {2 * tp + rnd}"]
        return [f"s_cmp_le_u32 s53, {tp - 12}", f"s_cselect_b32 s{dst}, {2 * (tp + 1) + rnd}, {2 * tp + rnd}"]

    def dma_a(pos):
        out = [f"s_add_u32 m0, s41, {ASLOT(pos)}"] + head_of(pos, 46) + ["s_lshl_b32 s46, s46, 18"]
        for i in range(4):
            if i:
                out.append(f"s_add_u32 s46, s46, {16384 - 1024}")
            out.append((f"buffer_load_dwordx4 v{VA}, {sr(CW)}, s46 offen offset:{1024 * i} {wf} lds", ("w", pos)))
        return out

    def b_prep(pos):
        return head_of(pos, 54) + ["s_mul_i32 s54, s54, 36864", "s_add_u32 s55, s54, 4096", "s_add_u32 s47, s54, 8192"]

    def b_load(pos, mt):
        return f"buffer_load_dwordx4 {vr(FB(pos & 1, mt))}, v{VB}, {sr(CO)}, s{(54, 55, 47)[mt // 4]} offen offset:{1024 * (mt % 4)} {of}"

    def a_reads(pos):
        return [f"ds_read_b64_tr_b16 {vr(FA(pos & 1, t) + 2 * ee, 2)}, v{AA(t)} offset:{ASLOT(pos) + 2048 * ee}"
                for t in range(4) for ee in range(2)]

    def gflag_issue(rnd):
        e(f"buffer_load_dword v{PG}, off, {sr(CG)}, s40 offset:{64 * rnd} sc1")

    def gflag_check(rnd):
        nm = f"G1_gf{rnd}"
        e(f"v_cmp_gt_u32 vcc, 16, v{PG}")
        e("s_nop 1")
        e(f"s_cbranch_vccnz {nm}")
        snap = e.snapshot()
        e.label(nm + "_ret")

        def slow():
            e.restore(snap)
            e.label(nm)
            e(f"s_mov_b32 s59, {1 << 16}")
            e.label(nm + "_l")
            e("s_sleep 32")
            gflag_issue(rnd)
            e.wait(vm=0)
            e(f"v_cmp_gt_u32 vcc, 16, v{PG}")
            e("s_nop 1")
            e(f"s_cbranch_vccz {nm}_ret")
            e("s_sub_u32 s59, s59, 1")
            e("s_cmp_lg_u32 s59, 0")
            e(f"s_cbranch_scc1 {nm}_l")
            e(f"s_branch {nm}_ret")
        late.append(slow)

    assert all(k >= 10 or n < 19 for k, (n, c) in enumerate(regp))
    e(f"s_setprio {OPT['g1prio']}")
    blocking_poll4(e, "G1_gb0", FQ, F_GB, PL, 1)
    load_q8(QIA)
    qk8_reads(0)
    e(f"ds_read_b32 v{PL}, v{FQ} offset:{F_FREE}")
    qk8_math(0)
    for n in range(5, 33):
        if n != 31:
            fast_free(f"G1_fb{n}", 33 + (0 if n == 5 else n - 6))
            fill(n)
        j = (n - 5) // 2 if n & 1 else (n - 4) // 2
        skip8 = "not8" in OPT["abl"] and j % 8 not in (0, 7)
        nr = 0 if skip8 else (pv8_reads(j) if n & 1 else qk8_reads(j))
        e(f"ds_read_b32 v{PL}, v{FQ} offset:{F_FREE}")
        if n != 31:
            e.wait(lgkm=nr + 1)
            publish(33 + n + (1 if n in (30, 32) else 0))
        if n == int(OPT["pwround"]) and OPT["prewarm"]:
            e("s_load_dwordx2 s[54:55], s[0:1], 32")
            e("s_lshl_b32 s44, s2, 2")
            e(f"s_add_u32 s44, s44, s{W}")
            e("s_lshl_b32 s44, s44, 13")
            e(f"v_lshl_add_u32 v{T1}, v{LANE}, 7, s44")
            e.wait(lgkm=0)
            e(f"global_load_dword v{DUMMY}, v{T1}, s[54:55]")
        if skip8:
            pass
        elif n & 1:
            pv8_math(j)
        else:
            qk8_math(j)
        if n == 19:
            merge1(0)
            load_q8(QIB)
            e(f"ds_read_b32 v{PL}, v{FQ} offset:{F_FREE}")
        if n == 21:
            merge2(0)
        if n == 24:
            k = e.vm_needed_for_tags(lambda t: t[0] == "st")
            if k is not None:
                e.wait(vm=k)
            e(f"v_mov_b32 v{TM2}, 1")
            e(f"ds_write_b32 v{FW}, v{TM2} offset:{F_DONE1}")
        if n == 26:
            e(f"s_cmp_lg_u32 s{W}, 0")
            e("s_cbranch_scc1 G1_nosig")
            st0 = e.snapshot()
            signal(e, "G1_sig", FQ, PL + 2, 0)
            st1 = e.snapshot()
            st1.lgkm = st0.lgkm
            e.merge([st0, st1])
            e.label("G1_nosig")
    if OPT["trace"]:
        e("s_lshl_b32 s58, s2, 2")
        e(f"s_add_u32 s58, s58, s{W}")
        e("s_lshl_b32 s58, s58, 9")
        e(f"s_add_u32 s58, s58, {STAMP_OFF + (2 << 20)}")
        e(f"v_lshl_add_u32 v{T0}, v{LANE}, 2, s58")
        e(f"global_store_dword v{T0}, v254, s[36:37]")
        e(f"global_store_dword v{T0}, v255, s[36:37] offset:256")
        e("s_nop 4")
        sys.stderr.write("trace points: %d\n" % trace_n[0])
    c_setup()
    gflag_issue(0)
    pv8_reads(14)
    pv8_math(14)
    qk8_reads(15)
    qk8_math(15)
    blocking_poll4(e, "G1_fc0", FQ, F_FREE, PL, 60)
    emit(dma_a(0) + dma_a(1))
    gflag_check(0)
    emit(b_prep(0) + [b_load(0, mt) for mt in range(9)])
    pv8_reads(15)
    pv8_math(15)
    merge1(1)
    blocking_poll4(e, "G1_fc1", FQ, F_FREE, PL, 62)
    emit(dma_a(2))
    emit(b_prep(1) + [b_load(1, mt) for mt in range(9)])
    merge2(1)
    stamp(e, 3)
    e(f"v_lshrrev_b32 v{T0}, 2, v{LANE}")
    e(f"v_and_b32 v{AA(1)}, 3, v{LANE}")
    e(f"v_lshlrev_b32 v{AA(1)}, 3, v{AA(1)}")
    e(f"v_lshl_add_u32 v{AA(0)}, v{T0}, 7, v{AA(1)}")
    e(f"v_bfe_u32 v{T0}, v{LANE}, 3, 2")
    e(f"v_xor_b32 v{T0}, s{W}, v{T0}")
    e(f"v_lshl_add_u32 v{AA(0)}, v{T0}, 5, v{AA(0)}")
    e(f"v_add_u32 v{AA(0)}, s41, v{AA(0)}")
    for t in range(1, 4):
        e(f"v_xor_b32 v{AA(t)}, {32 * t}, v{AA(0)}")
    e(f"v_mov_b32 v{PH}, v{FW}")

    def w_landed(pos):
        k = e.vm_needed_for_tags(lambda t: t[0] == "w" and t[1] <= pos)
        if k is not None:
            e.wait(vm=k)

    w_landed(0)
    emit(a_reads(0))
    RED = 49152
    for pos in range(32):
        p = pos & 1
        e.wait(lgkm=0)
        if pos + 3 < 32:
            emit(dma_a(pos + 3))
        if pos == 12:
            gflag_issue(1)
        if pos == 14:
            gflag_check(1)
        if pos + 2 < 32:
            emit(b_prep(pos + 2))
        if pos == 3:
            assert e.vm_needed_for_tags(lambda t: t[0] == "st") is None
            e(f"v_mov_b32 v{PG}, 2")
            e(f"ds_write_b32 v{PH}, v{PG} offset:{F_DONE1}")
        if pos == 31:
            e("s_barrier")
            e(f"v_mbcnt_lo_u32_b32 v{PG}, -1, 0")
            e(f"v_mbcnt_hi_u32_b32 v{PG}, -1, v{PG}")
            for c in range(1, 4):
                e(f"s_xor_b32 s44, s{W}, {c}")
                e(f"s_mul_i32 s44, s44, 27648")
                e(f"s_add_u32 s44, s44, {RED + 9216 * (c - 1)}")
                e(f"v_lshl_add_u32 v{AA(c)}, v{PG}, 4, s44")
        rd = a_reads(pos + 1) if pos < 31 else []
        for mt in range(9):
            m = [f"{MF} {vr(ACC(mt, t))}, {vr(FA(p, t))}, {vr(FB(p, mt))}, {'0' if pos == 0 else vr(ACC(mt, t))}" for t in range(4)]
            if mt == 1 and rd:
                w_landed(pos + 1)
            fill_ = rd[2 * (mt - 1): 2 * mt] if 1 <= mt < 5 else []
            if pos == 31 and mt >= 2:
                fill_ = [f"ds_write_b128 v{AA(c)}, {vr(ACC(mt - 2, c))} offset:{1024 * (mt - 2)}" for c in range(1, 4)]
            emit(interleave(m, fill_))
            if pos + 2 < 32:
                e(b_load(pos + 2, mt))
    stamp(e, 4)
    for mt in (7, 8):
        for c in range(1, 4):
            e(f"ds_write_b128 v{AA(c)}, {vr(ACC(mt, c))} offset:{1024 * mt}")
    LN = PG
    e(f"s_mul_i32 s44, s{W}, 27648")
    e(f"s_add_u32 s44, s44, {RED}")
    e(f"v_lshl_add_u32 v{AA(0)}, v{LN}, 4, s44")
    X0, X1, X2, X3 = 40, 41, 42, 43
    e(f"v_lshrrev_b32 v{X0}, 5, v{LN}")
    e(f"s_lshl_b32 s44, s{W}, 1")
    e(f"v_add_u32 v{X0}, s44, v{X0}")
    e(f"v_and_b32 v{X1}, 7, v{LN}")
    e(f"v_xor_b32 v{X0}, v{X0}, v{X1}")
    e(f"v_lshlrev_b32 v{X0}, 4, v{X0}")
    e(f"v_bfe_u32 v{X1}, v{LN}, 4, 1")
    e(f"v_lshl_add_u32 v{X0}, v{X1}, 3, v{X0}")
    e(f"v_and_b32 v{X1}, 15, v{LN}")
    e(f"v_lshl_add_u32 v{X0}, v{X1}, 7, v{X0}")
    e(f"v_lshrrev_b32 v{X1}, 3, v{LN}")
    e(f"v_and_b32 v{X2}, 7, v{LN}")
    e(f"v_xor_b32 v{X2}, v{X2}, v{X1}")
    e(f"v_lshlrev_b32 v{X2}, 4, v{X2}")
    e(f"v_lshl_add_u32 v{X2}, v{X1}, 11, v{X2}")
    e(f"v_lshl_add_u32 v{X3}, v{LN}, 4, s41")
    e(f"s_lshl_b32 s45, s{W}, 10")
    e(f"v_lshl_add_u32 v{X1}, v{LN}, 4, s45")
    e.wait(lgkm=0)
    e("s_barrier")
    for mt in range(9):
        for c in range(1, 4):
            e(f"ds_read_b128 {vr(ACC(mt, c))}, v{AA(0)} offset:{9216 * (c - 1) + 1024 * mt}")
    for mt in range(9):
        a = ACC(mt, 0)
        for r in range(4):
            e(f"v_add_f32 v{a + r}, v{a + r}, v{ACC(mt, 1) + r}")
            e(f"v_add_f32 v{ACC(mt, 2) + r}, v{ACC(mt, 2) + r}, v{ACC(mt, 3) + r}")
        for r in range(4):
            e(f"v_add_f32 v{a + r}, v{a + r}, v{ACC(mt, 2) + r}")
        e(f"v_cvt_pk_bf16_f32 v{a}, v{a}, v{a + 1}")
        e(f"v_cvt_pk_bf16_f32 v{a + 1}, v{a + 2}, v{a + 3}")
        e(f"ds_write_b64 v{X0}, {vr(a, 2)} offset:{2048 * mt}")
    e.wait(lgkm=0)
    e("s_barrier")
    for i in range(4):
        e(f"ds_read_b128 {vr(44 + 4 * i)}, v{X3} offset:{1024 * i}")
    e(f"ds_read_b128 {vr(60)}, v{X1} offset:16384")
    e(f"s_lshl_b32 s44, s{W}, 16")
    outf = OPT["outflag"]
    for i in range(4):
        e(f"buffer_store_dwordx4 {vr(44 + 4 * i)}, v{X2}, {sr(CD)}, s44 offen {outf}")
        e(f"s_add_u32 s44, s44, 16384")
    e(f"s_cmp_ge_u32 s{W}, 2")
    e("s_cbranch_scc1 G1_done")
    e(f"s_lshl_b32 s44, s{W}, 14")
    e(f"s_add_u32 s44, s44, {128 * 2048}")
    e(f"buffer_store_dwordx4 {vr(60)}, v{X2}, {sr(CD)}, s44 offen {outf}")
    e.label("G1_done")
    if OPT["stamp"] or OPT["dbg"]:
        e.wait(vm=0, lgkm=0)
    stamp(e, 5)
    stamp_store(e, 6, 36, STAMP_OFF, ["s_lshl_b32 s58, s2, 2", f"s_add_u32 s58, s58, s{W}", "s_add_u32 s58, s58, 1024"])
    e("s_endpgm")
    for f in late:
        f()
    e.restore(joined(e, slow_states))
    e.st.lgkm = []
    e.label("G1_slow")
    lane_reduce(e, "v_max_f32", TM, TM2)
    e(f"v_max_f32 v{TM}, 0, v{TM}")
    for r in range(4):
        e(f"v_sub_f32 v{NEGM + r}, v{NEGM + r}, v{TM}")
        e(f"v_sub_f32 v{S8 + r}, v{S8 + r}, v{TM}")
    e(f"v_exp_f32 v{TM}, -v{TM}")
    e(f"v_mul_f32 v{L8}, v{L8}, v{TM}")
    for r in range(32):
        e(f"v_mul_f32 v{O8(0) + r}, v{O8(0) + r}, v{TM}")
    e("s_nop 1")
    e("s_setpc_b64 s[38:39]")


def engine(e):
    stamp(e, 0)
    e("s_load_dwordx4 s[28:31], s[0:1], 0")
    e("s_load_dwordx4 s[32:35], s[0:1], 16")
    e("s_load_dwordx2 s[36:37], s[0:1], 56")
    e("v_lshrrev_b32 v1, 6, v0")
    e("s_and_b32 s25, s2, 1")
    e("v_readfirstlane_b32 s3, v1")
    e("s_lshl_b32 s25, s25, 3")
    e("s_bfe_u32 s26, s2, 0x30003")
    e("s_add_u32 s25, s25, s26")
    e("s_bfe_u32 s26, s2, 0x20001")
    e("s_lshl_b32 s26, s26, 2")
    e("s_lshr_b32 s27, s2, 6")
    e("s_add_u32 s26, s26, s27")
    e("s_lshl_b32 s26, s26, 1")
    e("s_lshl_b32 s27, s25, 5")
    e("s_add_u32 s27, s27, s26")
    e(f"s_and_b32 s{W}, s3, 3")
    e("s_cmp_lt_u32 s3, 4")
    e("s_cbranch_scc1 G0_start")
    st = e.snapshot()
    loader_group(e)
    e.restore(st)
    e.label("G0_start")
    compute_group(e)


def kd(name):
    return f""".section .rodata,"a"
.p2align 6
.amdhsa_kernel {name}
  .amdhsa_next_free_vgpr 256
  .amdhsa_next_free_sgpr 96
  .amdhsa_accum_offset 256
  .amdhsa_group_segment_fixed_size 0
  .amdhsa_kernarg_size 64
  .amdhsa_user_sgpr_count 2
  .amdhsa_user_sgpr_kernarg_segment_ptr 1
  .amdhsa_system_sgpr_workgroup_id_x 1
.end_amdhsa_kernel
"""


def main():
    out = HEADER
    out += "; @launch grid=(256,1,1) block=(512,1,1) lds=163840\n"
    out += '.amdgcn_target "amdgcn-amd-amdhsa--gfx950"\n.text\n'
    e = Emitter()
    e.raw(f".globl {KNAME}\n.p2align 8\n.type {KNAME},@function\n{KNAME}:")
    e("s_cmp_lt_u32 s2, 256")
    e("s_cbranch_scc1 P_go")
    e("s_endpgm")
    e.label("P_go")
    engine(e)
    e.raw(".p2align 8\n.type cnt_table,@object\ncnt_table:")
    for k in range(96):
        e.raw(f".long {k}")
    e.raw(".size cnt_table, 384")
    e.label("P_end")
    e.raw(f".set CODE_KB_P, (P_end - {KNAME}) / 1024 - 1")
    sys.stderr.write("engine counts: %s\n" % e.count)
    out += e.text()
    out += kd(KNAME)
    open(sys.argv[1], "w").write(out)


main()
```

```python
import sys, struct, math
from asmlib import *

OPT = dict(stamp=False, kvflag="nt", xflag="", wflag="", oflag="sc1", ostore="sc1",
           lead="4", qlead="4", prewarm=False, pf0="3", pfd="6", pfstag="0,1,3,4", npf="4", abl_noload=False, abl_not8=False, gap="4", dbg=False, g0prio="2", g1prio="0", pwround="26", outflag="sc0 sc1", trace=False, sleep="2", abl="", agap=False, trace0=False, otrace="", qnop="0", msum=True, mprio="p", n1="4", oprio="1,0", ptrace=False, xprio="3", rprio="0", aspread=False, g0chk="3")
for a in sys.argv[2:]:
    k, v = a.split("=", 1)
    assert k in OPT, k
    OPT[k] = {"True": True, "False": False}.get(v, v)

HEADER = """; Kernarg layout for this problem (64 bytes, ptrs only, base s[0:1]):
"""


def f32bits(x):
    return struct.unpack("<I", struct.pack("<f", x))[0]


MF = "v_mfma_f32_16x16x32_bf16"
STAMP_OFF = 64 << 20
SPIN_MAX = 1 << 18


def stamp(e, idx):
    if OPT["stamp"] or OPT["dbg"]:
        e(f"s_memrealtime s[{60 + 2 * idx}:{61 + 2 * idx}]")
        e(f"s_memtime s[{76 + 2 * idx}:{77 + 2 * idx}]")
        if idx == 0:
            e("s_mov_b32 s92, 0")
        if idx == 2:
            e("s_mov_b32 s93, s92")
            e("s_mov_b32 s92, 0")


PT = [0]


def pt(e, reset=False):
    if reset:
        PT[0] = 0
    if OPT["ptrace"]:
        e(f"s_memtime s[{58 + 2 + 2 * PT[0]}:{58 + 3 + 2 * PT[0]}]")
        PT[0] += 1
        assert PT[0] <= 21


def pt_store(e, grp):
    if not OPT["ptrace"]:
        return
    e.wait(lgkm=0)
    for k in range(PT[0]):
        e(f"v_writelane_b32 v3, s{60 + 2 * k}, {k}")
    e("s_lshl_b32 s58, s2, 2")
    e(f"s_add_u32 s58, s58, s24")
    e("s_lshl_b32 s58, s58, 9")
    e(f"s_add_u32 s58, s58, {STAMP_OFF + (2 << 20) + 256 * grp}")
    e(f"v_mbcnt_lo_u32_b32 v2, -1, 0")
    e(f"v_mbcnt_hi_u32_b32 v2, -1, v2")
    e(f"v_lshl_add_u32 v2, v2, 2, s58")
    e(f"global_store_dword v2, v3, s[36:37]")


def stamp_store(e, n, ws_lo, base_off, rec):
    if OPT["dbg"]:
        lab = "DBG_skip%d" % len(rec)
        off = 0 if len(rec) == 2 else 64
        e("s_or_b32 s58, s2, s24")
        e("s_cmp_lg_u32 s58, 0")
        e(f"s_cbranch_scc1 {lab}")
        e(f"s_add_u32 s56, s{ws_lo}, {STAMP_OFF}")
        e(f"s_addc_u32 s57, s{ws_lo + 1}, 0")
        e.wait(lgkm=0)
        e("v_mov_b32 v0, 0")
        for i in range(6):
            e(f"v_mov_b32 v1, s{60 + 2 * i}")
            e(f"global_store_dword v0, v1, s[56:57] offset:{off + 4 * i}")
        e.label(lab)
    if not OPT["stamp"]:
        return
    e.wait(lgkm=0)
    e("v_mov_b32 v0, 0")
    for r in rec:
        e(r)
    e(f"s_lshl_b32 s58, s58, 6")
    e(f"s_add_u32 s58, s58, {base_off}")
    e(f"s_add_u32 s56, s{ws_lo}, s58")
    e(f"s_addc_u32 s57, s{ws_lo + 1}, 0")
    for i in range(n):
        e(f"v_mov_b32 v1, s{60 + 2 * i}")
        e(f"global_store_dword v0, v1, s[56:57] offset:{4 * i}")
    for i in range(n):
        e(f"v_mov_b32 v1, s{76 + 2 * i}")
        e(f"global_store_dword v0, v1, s[56:57] offset:{32 + 4 * i}")
    e(f"v_mov_b32 v1, s93")
    e(f"global_store_dword v0, v1, s[56:57] offset:24")
    e(f"v_mov_b32 v1, s92")
    e(f"global_store_dword v0, v1, s[56:57] offset:28")


def mk_emit(e):
    def emit(items):
        for it in items:
            if isinstance(it, tuple):
                e(it[0], it[1])
            elif callable(it):
                it()
            else:
                e(it)
    return emit


XR = 98304
WQREG = lambda st: 16384 * [(0, 1), (3, 2), (4, 5)][((st >> 1) - 13) % 3][st & 1]
KS, VS = 0, 49152
QIA, QIB = 89856, 126720
MRG = 98304
FLG = 163584
F_FULL, F_FREE, F_GB, F_GB1, F_DONE0, F_DONE1, F_FULLB, F_FREEB, F_XRDY = 0, 16, 32, 48, 64, 80, 96, 112, 128
AR0, AR1, IMG = 98048, 130816, 110592
MBOX = 32 << 20
FLAGS = 48 << 20
PAREA = 73728
N1 = int(OPT["n1"])
NM1 = 8 + N1
NPOS = NM1 + 16 - 2 * N1
KNAME = "standalone__mha_block_cached__near_ridge_kernel"
W = 24
MF16 = "v_mfma_f32_16x16x16_bf16"
THR = 10.0


def blocking_poll4(e, name, addr, off, tmp, need, sleep=1):
    e(f"s_mov_b32 s59, {SPIN_MAX}")
    e.label(name)
    e(f"ds_read_b32 v{tmp}, v{addr} offset:{off}")
    e.wait(lgkm=0)
    e(f"v_cmp_lt_u32 s[56:57], v{tmp}, {need}")
    e("s_cmp_eq_u64 s[56:57], 0")
    e(f"s_cbranch_scc1 {name}_ok")
    e(f"s_sleep {sleep}")
    e("s_sub_u32 s59, s59, 1")
    e("s_cmp_lg_u32 s59, 0")
    e(f"s_cbranch_scc1 {name}")
    e.label(name + "_ok")
    if OPT["stamp"]:
        e(f"s_sub_u32 s59, {SPIN_MAX + 1}, s59")
        e("s_add_u32 s92, s92, s59")
        e("s_add_u32 s92, s92, 0x10000")


def kv_addr_setup(e, LANE, AK, AV, T, xor_sgpr, add_k, add_v):
    T0, T1, T2, T3 = T
    q, g = T0, T1
    e(f"v_and_b32 v{q}, 15, v{LANE}")
    e(f"v_lshrrev_b32 v{g}, 4, v{LANE}")
    e(f"v_and_b32 v{T2}, 7, v{q}")
    e(f"v_lshlrev_b32 v{T2}, 1, v{T2}")
    e(f"v_xor_b32 v{T2}, v{T2}, v{g}")
    e(f"v_lshlrev_b32 v{T2}, 4, v{T2}")
    e(f"v_lshl_add_u32 v{AK(0)}, v{q}, 8, v{T2}")
    if add_k is not None:
        e(f"v_add_u32 v{AK(0)}, {add_k}, v{AK(0)}")
    for u in range(1, 4):
        e(f"v_xor_b32 v{AK(u)}, {64 * u}, v{AK(0)}")
    e(f"v_and_b32 v{T3}, 3, v{LANE}")
    e(f"v_lshlrev_b32 v{T3}, 3, v{T3}")
    e(f"v_lshrrev_b32 v{T2}, 2, v{LANE}")
    e(f"v_lshl_add_u32 v{AV(0)}, v{T2}, 8, v{T3}")
    e(f"v_and_b32 v{T2}, 7, v{T2}")
    e(f"v_lshl_add_u32 v{AV(0)}, v{T2}, 5, v{AV(0)}")
    if xor_sgpr is not None:
        e(f"v_xor_b32 v{AV(0)}, {xor_sgpr}, v{AV(0)}")
    e(f"v_add_u32 v{AV(0)}, {add_v}, v{AV(0)}")
    for Tt in range(1, 8):
        e(f"v_xor_b32 v{AV(Tt)}, {32 * Tt}, v{AV(0)}")


def lane_reduce(e, op, x, t):
    e(f"v_mov_b32 v{t}, v{x}")
    e(f"v_permlane32_swap_b32 v{t}, v{x}")
    e(f"{op} v{x}, v{x}, v{t}")
    e(f"v_mov_b32 v{t}, v{x}")
    e(f"v_permlane16_swap_b32 v{t}, v{x}")
    e(f"{op} v{x}, v{x}, v{t}")


def o_srd(e, SO):
    e("s_mul_i32 s44, s27, 36864")
    e(f"s_add_u32 s{SO}, s36, s44")
    e(f"s_addc_u32 s{SO + 1}, s37, 0")
    e(f"s_mov_b32 s{SO + 2}, {2 * 36864}")
    e(f"s_mov_b32 s{SO + 3}, 0x20000")


def signal(e, name, FQ, PL, rnd):
    blocking_poll4(e, name + "a", FQ, F_DONE0, PL, rnd + 1)
    blocking_poll4(e, name + "b", FQ, F_DONE1, PL, rnd + 1)
    if rnd == 1:
        e("s_lshl_b32 s58, s27, 6")
        e("s_lshl_b32 s59, s25, 11")
        e("s_add_u32 s58, s58, s59")
        e(f"s_add_u32 s58, s58, {FLAGS}")
        e(f"v_mov_b32 v{PL}, s58")
        e(f"v_mov_b32 v{PL + 1}, 1")
        e("s_mov_b64 exec, 1")
        e.raw(f"    global_store_dword v{PL}, v{PL + 1}, s[36:37] sc1")
        e("s_mov_b64 exec, -1")
        return
    e("s_load_dwordx2 s[56:57], s[0:1], 48")
    e("s_and_b32 s58, s25, 1")
    e("s_lshl_b32 s58, s58, 6")
    e("s_add_u32 s58, s58, s25")
    e("s_and_b32 s58, s58, 0xfe")
    e("s_lshl_b32 s58, s58, 1")
    e(f"v_mov_b32 v{PL}, s58")
    e(f"v_mov_b32 v{PL + 1}, 1")
    e.wait(lgkm=0)
    e("s_mov_b64 exec, 1")
    e.raw(f"    global_atomic_add v{PL}, v{PL + 1}, s[56:57] sc1")
    e("s_mov_b64 exec, -1")


def out_tile_ids(e, send):
    e("s_bfe_u32 s34, s2, 0x20001")
    e("s_lshl_b32 s34, s34, 2")
    e("s_bfe_u32 s35, s2, 0x20003")
    e("s_add_u32 s34, s34, s35")
    e("s_bfe_u32 s35, s2, 0x30005")
    e("s_add_u32 s53, s34, s35")
    e("s_and_b32 s53, s53, 3")
    e("s_and_b32 s52, s2, 1")
    e("s_lshl_b32 s35, s35, 1")
    e("s_add_u32 s35, s35, s52")
    if send:
        e("s_xor_b32 s35, s35, 1")
    e("s_lshl_b32 s52, s52, 1")
    e("s_and_b32 s40, s34, 1")
    e("s_lshl_b32 s40, s40, 6")
    e("s_add_u32 s40, s40, s34")
    e("s_and_b32 s40, s40, 0xfe")
    e("s_lshl_b32 s40, s40, 1")


def wo_voffset(e, VA, LANE, T0):
    e(f"v_lshrrev_b32 v{T0}, 4, v{LANE}")
    e(f"v_lshlrev_b32 v{T0}, 1, v{T0}")
    e(f"v_and_b32 v{VA}, 7, v{LANE}")
    e(f"v_xor_b32 v{VA}, v{VA}, v{T0}")
    e(f"v_lshlrev_b32 v{VA}, 4, v{VA}")
    e(f"v_lshrrev_b32 v{T0}, 3, v{LANE}")
    e(f"v_lshl_add_u32 v{VA}, v{T0}, 11, v{VA}")
    e(f"s_lshl_b32 s44, s{W}, 16")
    e(f"v_add_u32 v{VA}, s44, v{VA}")


def wo_dbg_srds(e, CW, CG):
    e("s_lshl_b32 s44, s35, 7")
    e(f"s_add_u32 s{CW}, s28, s44")
    e(f"s_addc_u32 s{CW + 1}, s29, 0")
    e(f"s_sub_u32 s{CW + 2}, 8388608, s44")
    e(f"s_mov_b32 s{CW + 3}, 0x20000")
    e(f"s_mov_b32 s{CG}, s32")
    e(f"s_mov_b32 s{CG + 1}, s33")
    e(f"s_mov_b32 s{CG + 2}, 256")
    e(f"s_mov_b32 s{CG + 3}, 0x20000")


def head_of(pos, dst):
    if pos < 8:
        P, n, c1, c0, kp = pos, 8, 4, 0, True
    elif pos < NM1:
        P, n, c1, c0, kp = pos - 8, N1, 4, 1, True
    else:
        P, n, c1, c0, kp = pos - NM1, 16 - 2 * N1, 2, 4 * N1 + 1, False
    hd = lambda a: c1 * a + c0
    nl = n - n % 4
    if not int(OPT["lead"]) or P >= nl:
        out = [f"s_mov_b32 s{dst}, {hd(P)}"]
    elif P == 0:
        out = [f"s_mul_i32 s{dst}, s53, {c1}", f"s_add_u32 s{dst}, s{dst}, {c0}"]
    elif P - 1 < nl - 4:
        out = [f"s_cmp_eq_u32 s53, {(P - 1) & 3}", f"s_cselect_b32 s{dst}, {hd(P + 3)}, {hd(P - 1)}"]
    else:
        out = [f"s_cmp_le_u32 s53, {P - 1 - (nl - 4)}", f"s_cselect_b32 s{dst}, {hd(P)}, {hd(P - 1)}"]
    return out + ([f"s_add_u32 s{dst}, s{dst}, s52"] if kp else [])


def wo_read_addr(e, AA, LANE, T0, base_sgpr):
    e(f"v_lshrrev_b32 v{T0}, 2, v{LANE}")
    e(f"v_and_b32 v{AA(1)}, 3, v{LANE}")
    e(f"v_lshlrev_b32 v{AA(1)}, 3, v{AA(1)}")
    e(f"v_lshl_add_u32 v{AA(0)}, v{T0}, 7, v{AA(1)}")
    e(f"v_bfe_u32 v{T0}, v{LANE}, 3, 2")
    e(f"v_xor_b32 v{T0}, s{W}, v{T0}")
    e(f"v_lshl_add_u32 v{AA(0)}, v{T0}, 5, v{AA(0)}")
    e(f"v_add_u32 v{AA(0)}, {base_sgpr}, v{AA(0)}")
    for t in range(1, 4):
        e(f"v_xor_b32 v{AA(t)}, {32 * t}, v{AA(0)}")


def word_check(e, late, nm, addr, off, tmp, need):
    def br():
        e(f"s_cbranch_vccnz {nm}")
        snap = e.snapshot()
        e.label(nm + "_ret")

        def slow():
            e.restore(snap)
            e.label(nm)
            blocking_poll4(e, nm + "_p", addr, off, tmp, need)
            e(f"s_branch {nm}_ret")
        late.append(slow)
    return [f"ds_read_b32 v{tmp}, v{addr} offset:{off}", f"v_cmp_gt_u32 vcc, {need}, v{tmp}", br]


def red_write_addr(e, AA, LN):
    for c in range(1, 4):
        e(f"s_xor_b32 s44, s{W}, {c}")
        e(f"s_mul_i32 s44, s44, 27648")
        e(f"s_add_u32 s44, s44, {9216 * (c - 1)}")
        e(f"v_lshl_add_u32 v{AA(c)}, v{LN}, 4, s44")
    e(f"s_mul_i32 s44, s{W}, 27648")
    e(f"v_lshl_add_u32 v{AA(0)}, v{LN}, 4, s44")


def wo_dma(pos, m0line, VA, CW):
    out = [m0line] + head_of(pos, 46) + ["s_lshl_b32 s46, s46, 18"]
    for i in range(4):
        if i:
            out.append(f"s_add_u32 s46, s46, {16384 - 1024}")
        out.append((f"buffer_load_dwordx4 v{VA}, {sr(CW)}, s46 offen offset:{1024 * i} {OPT['wflag']} lds", ("w", pos)))
    return out


def flag_wait(e, nm, PA, PG, sleep):
    e(f"s_mov_b32 s59, {1 << 16}")
    e.label(nm)
    e(f"global_load_dword v{PG}, v{PA}, s[36:37] sc1")
    e.wait(vm=0)
    e(f"v_cmp_eq_u32 vcc, 0, v{PG}")
    e("s_nop 1")
    e(f"s_cbranch_vccz {nm}_ok")
    e(f"s_sleep {sleep}")
    e("s_sub_u32 s59, s59, 1")
    e("s_cmp_lg_u32 s59, 0")
    e(f"s_cbranch_scc1 {nm}")
    e.label(nm + "_ok")


def joined(e, states):
    st = states[0].copy()
    for s in states[1:]:
        st.hist += [list(h) for h in s.hist]
    return st


def compute_group(e):
    emit = mk_emit(e)
    SO = 20
    O = lambda qt, T: 32 * qt + 4 * T
    Q = lambda qt, u: 64 + 16 * qt + 4 * u
    S = lambda par, kt, qt: 96 + 32 * par + 16 * qt + 4 * kt
    NF = 13
    F = lambda i: 160 + 4 * (i % NF)
    ONES = 212
    LS = lambda qt: 216 + 4 * qt
    NEGM = lambda qt: 224 + 4 * qt
    RL = lambda qt: 232 + qt
    TMP = lambda qt: 234 + qt
    FD = 237
    AK = lambda u: 238 + u
    AV = lambda T: 242 + T
    FA_, FQ, PL = 250, 251, 252
    ACC = lambda t, qt: 16 * qt + 4 * t
    FA = lambda p, t: 144 + 16 * p + 4 * t
    NB = 8
    FB = lambda k: 176 + 4 * (k % NB)
    AA = lambda t: 208 + t
    AH = lambda t: 212 + t
    AB, LANE = 216, 217
    T0, T1, T2, T3 = 218, 219, 220, 221
    late = []

    e(f"s_setprio {OPT['g0prio']}")
    e(f"v_and_b32 v{LANE}, 63, v0")
    e(f"v_mov_b32 v{T0}, 0")
    e(f"v_lshlrev_b32 v{T1}, 2, v{LANE}")
    e(f"v_add_u32 v{T1}, {FLG}, v{T1}")
    e(f"ds_write_b32 v{T1}, v{T0}")
    e(f"s_lshl_b32 s44, s{W}, 2")
    e(f"s_add_u32 s44, s44, {FLG}")
    e(f"v_mov_b32 v{FA_}, s44")
    e(f"v_and_b32 v{FQ}, 0xfffffe0c, v{T1}")
    e(f"v_or_b32 v{FQ}, {FLG & 0x1f0}, v{FQ}")
    e.wait(lgkm=0)
    e("s_barrier")
    o_srd(e, SO)
    kv_addr_setup(e, LANE, AK, AV, (T0, T1, T2, T3), None, None, VS)
    q, g, cq = T0, T1, T3
    e(f"v_lshrrev_b32 v{T2}, 2, v{q}")
    e(f"v_and_b32 v{T2}, 2, v{T2}")
    e(f"v_xor_b32 v{T2}, v{T2}, v{g}")
    e(f"v_lshlrev_b32 v{T2}, 4, v{T2}")
    e(f"v_lshl_add_u32 v{T2}, v{q}, 6, v{T2}")
    e(f"v_add_u32 v{AB}, {XR}, v{T2}")
    rp = T2
    e(f"v_bfe_u32 v{rp}, v{LANE}, 2, 2")
    e(f"v_lshl_add_u32 v{q}, v{g}, 3, v{rp}")
    e(f"v_lshl_add_u32 v{q}, v{q}, 8, v{cq}")
    e(f"v_lshl_add_u32 v{q}, v{rp}, 5, v{q}")
    e(f"v_and_b32 v{g}, 1, v{g}")
    e(f"v_lshl_add_u32 v{q}, v{g}, 7, v{q}")
    e(f"s_and_b32 s48, s{W}, 1")
    e(f"s_lshl_b32 s48, s48, 7")
    e(f"v_xor_b32 v{q}, s48, v{q}")
    e(f"s_lshr_b32 s49, s{W}, 1")
    e(f"s_lshl_b32 s44, s49, 13")
    e(f"v_add_u32 v{AA(0)}, s44, v{q}")
    for t in range(1, 4):
        e(f"v_xor_b32 v{AA(t)}, {32 * t}, v{AA(0)}")
    for t in range(4):
        e(f"v_add_u32 v{AH(t)}, 49152, v{AA(t)}")

    def a_reads(st):
        p, base = st & 1, WQREG(st)
        out = []
        for t in range(4):
            for ee in range(2):
                if base < 65536:
                    out.append(f"ds_read_b64_tr_b16 {vr(FA(p, t) + 2 * ee, 2)}, v{AA(t)} offset:{base + 1024 * ee}")
                else:
                    out.append(f"ds_read_b64_tr_b16 {vr(FA(p, t) + 2 * ee, 2)}, v{AH(t)} offset:{base - 49152 + 1024 * ee}")
        return out

    def b_read(k):
        st, qt = k // 9, k % 9
        return f"ds_read_b128 {vr(FB(k))}, v{AB} offset:{18432 * ((st >> 1) % 3) + 9216 * (st & 1) + 1024 * qt}"

    def check_items(nm, need, sink, off=F_FULL, pre=None):
        def br():
            e("s_cmp_eq_u64 s[56:57], 0")
            e(f"s_cbranch_scc0 {nm}")
            snap = e.snapshot()
            e.label(nm + "_ret")

            def slow():
                e.restore(snap)
                e.label(nm)
                if pre:
                    e(pre)
                blocking_poll4(e, nm + "_p", FQ, off, PL, need)
                e(f"s_branch {nm}_ret")
            sink.append(slow)
        return [f"ds_read_b32 v{PL}, v{FQ} offset:{off}", f"v_cmp_lt_u32 s[56:57], v{PL}, {need}", br]

    DB = 6
    blocking_poll4(e, "G0_first", FQ, F_FULL, PL, 1)
    stamp(e, 1)
    emit(a_reads(0) + [b_read(k) for k in range(DB)])
    e(f"s_mov_b32 s50, {f32bits(math.log2(math.e) / math.sqrt(128.0)):#x}")
    QW = 222
    e(f"v_and_b32 v{T1}, 15, v{LANE}")
    e(f"v_lshlrev_b32 v{QW}, 4, v{T1}")
    e(f"v_lshrrev_b32 v{T1}, 5, v{LANE}")
    e(f"v_lshl_add_u32 v{QW}, v{T1}, 8, v{QW}")
    e(f"v_bfe_u32 v{T1}, v{LANE}, 4, 1")
    e(f"v_lshl_add_u32 v{QW}, v{T1}, 3, v{QW}")
    e(f"s_mul_i32 s44, s49, {QIB - QIA}")
    e(f"s_lshl_b32 s45, s48, 4")
    e(f"s_add_u32 s44, s44, s45")
    e(f"s_add_u32 s44, s44, {QIA}")
    e(f"v_add_u32 v{QW}, s44, v{QW}")

    def qconv(qt):
        out = []
        for t in range(4):
            a = ACC(t, qt)
            out += [f"v_mul_f32 v{a + r}, s50, v{a + r}" for r in range(4)]
            out += [f"v_cvt_pk_bf16_f32 v{a}, v{a}, v{a + 1}", f"v_cvt_pk_bf16_f32 v{a + 1}, v{a + 2}, v{a + 3}"]
        return out

    conv = []
    for st in range(32):
        p = st & 1
        ar = a_reads(st + 1) if st < 31 else []
        chk = check_items(f"G0_qs{st + 1}", st + 2, late) if st < 31 else check_items("G0_qfree", 32, late, F_FREE)
        for qt in range(9):
            k = 9 * st + qt
            m = []
            for t in range(4):
                c = "0" if st == 0 else vr(ACC(t, qt))
                m.append(f"{MF} {vr(ACC(t, qt))}, {vr(FA(p, t))}, {vr(FB(k))}, {c}")
            fill = []
            nk = k + DB
            c0 = 0 if st < 31 else 5
            if qt == c0:
                fill.append(chk[0])
            if qt == c0 + 3:
                fill.append(chk[2])
            if nk < 288:
                fill.append(b_read(nk))
            if qt == 1 and st & 1:
                fill.append(f"v_mov_b32 v{FD}, {st + 1}")
            if qt == 2 and st & 1:
                fill.append(f"ds_write_b32 v{FA_}, v{FD} offset:{F_FREE}")
            if qt == c0 + 2:
                fill.append(chk[1])
            if 3 <= qt < 7:
                fill += ar[2 * (qt - 3): 2 * (qt - 3) + 2]
            if st == 31 and qt >= 2:
                conv += qconv(qt - 2)
                fill += conv[:10]
                del conv[:10]
            emit(weave(m, [x for x in fill if kind_of(x) == "v"], [x for x in fill if kind_of(x) == "d"],
                       at={0: [x for x in fill if kind_of(x) == "s"]}))
            if int(OPT["qnop"]):
                e(f"s_nop {OPT['qnop']}")
    stamp(e, 2)
    conv += qconv(7) + qconv(8)
    done = 9 - (len(conv) + 23) // 24
    wr = lambda qt: [f"ds_write_b64 v{QW}, {vr(ACC(t, qt), 2)} offset:{4096 * qt + 512 * t}" for t in range(4)]
    for qt in range(done):
        emit(wr(qt))
    for qt in range(done, 9):
        n = len(conv) - 24 * (8 - qt)
        emit(conv[:n])
        del conv[:n]
        emit(wr(qt))
    e(f"v_mov_b32 v{FD}, 1")
    e(f"ds_write_b32 v{FA_}, v{FD} offset:{F_GB}")
    blocking_poll4(e, "G0_gb0", FQ, F_GB, PL, 1)

    MS = OPT["msum"]
    QA, SA = 253, 254
    e(f"s_lshl_b32 s44, s{W}, 13")
    e(f"s_add_u32 s44, s44, {QIA}")
    e(f"v_lshl_add_u32 v{QA}, v{LANE}, 4, s44")
    e(f"s_lshl_b32 s44, s{W}, 11")
    e(f"v_lshl_add_u32 v{SA}, v{LANE}, 4, s44")
    q_reads = lambda hd: [f"ds_read_b128 {vr(Q(qt, u))}, v{QA} offset:{(QIB - QIA) * hd + 4096 * qt + 1024 * u}"
                          for u in range(4) for qt in range(2)]
    emit(q_reads(0))
    e(f"s_mov_b32 s50, {f32bits(THR):#x}")
    e("s_mov_b32 s42, 65")
    for r in range(4):
        e(f"v_mov_b32 v{ONES + r}, 0x3f803f80")
    blocking_poll4(e, "G0_k0", FQ, F_FULL, PL, 34)
    stamp(e, 3)
    L = lambda j, qt: LS(qt) if MS else LS(qt) + j // 8

    def k_read(j, kt, u, f):
        return [f"ds_read_b128 {vr(F(f))}, v{AK(u)} offset:{KS + 16384 * (j % 3) + 4096 * kt} ; f{f}"]

    def v_read(j, s, T, f):
        return [f"ds_read_b64_tr_b16 {vr(F(f) + 2 * ee, 2)}, v{AV(T)} offset:{16384 * (j % 3) + 4096 * (2 * s + ee)} ; f{f}" for ee in range(2)]

    def qk(j, kt, u, f):
        par = j & 1
        c0 = lambda qt: "0" if j % 8 == 0 else vr(NEGM(qt))
        return [f"{MF} {vr(S(par, kt, qt))}, {vr(F(f))}, {vr(Q(qt, u))}, {c0(qt) if u == 0 else vr(S(par, kt, qt))} ; f{f}"
                for qt in range(2)]

    def pv(j, s, T, f):
        c = lambda r: "0" if j % 8 == 0 and s == 0 else vr(r)
        out = [f"{MF} {vr(O(qt, T))}, {vr(F(f))}, {vr(S(j & 1, 2 * s, qt))}, {c(O(qt, T))} ; f{f}" for qt in range(2)]
        if MS and T in (3, 5):
            qt = T // 4
            out.append(f"{MF} {vr(LS(qt))}, {vr(ONES)}, {vr(S(j & 1, 2 * s, qt))}, {c(LS(qt))}")
        return out

    def maxes(j):
        out = []
        for kt in range(4):
            for h in range(2):
                for qt in range(2):
                    s = S(j & 1, kt, qt) + 2 * h
                    if kt == 0 and h == 0:
                        out.append(f"v_max_f32 v{TMP(qt)}, v{s}, v{s + 1}")
                    else:
                        out.append(f"v_max3_f32 v{TMP(qt)}, v{s}, v{s + 1}, v{TMP(qt)}")
        return out

    def softmax(j, s):
        out = []
        for qt in range(2):
            a, b = S(j & 1, 2 * s, qt), S(j & 1, 2 * s + 1, qt)
            regs = [a, a + 1, a + 2, a + 3, b, b + 1, b + 2, b + 3]
            ex = [f"v_exp_f32 v{r}, v{r}" for r in regs]
            cv = [f"v_cvt_pk_bf16_f32 v{a + k}, v{regs[2 * k]}, v{regs[2 * k + 1]}" for k in range(4)]
            if MS:
                out += [ex[0], ex[1], ex[2], cv[0], ex[3], ex[4], cv[1], ex[5], ex[6], cv[2], ex[7]]
                out += [cv[3]] if qt else []
                if qt:
                    out.insert(12, last_cv)
                last_cv = cv[3]
                continue
            l = L(j, qt)
            ad = [f"v_add_f32 v{l}, v{l}, v{r}" for r in regs]
            if j % 8 == 0 and s == 0:
                ad[0] = f"v_mov_b32 v{l}, v{regs[0]}"
            out += [ex[0], ex[1], ex[2], ad[0], ex[3], ad[1], cv[0], ex[4], ad[2], ex[5], ad[3], cv[1],
                    ex[6], ad[4], ex[7], ad[5], cv[2], ad[6], ad[7], cv[3]]
        return out

    def reduce2(op, xs, ts):
        out = []
        for sw in ("v_permlane32_swap_b32", "v_permlane16_swap_b32"):
            out += [f"v_mov_b32 v{t}, v{x}" for x, t in zip(xs, ts)]
            out += [f"{sw} v{t}, v{x}" for x, t in zip(xs, ts)]
            out += [f"{op} v{x}, v{x}, v{t}" for x, t in zip(xs, ts)]
        return out

    def first(j):
        out = reduce2("v_max_f32", [TMP(0), TMP(1)], [NEGM(0), NEGM(1)])
        for qt in range(2):
            out += [f"v_sub_f32 v{NEGM(qt) + r}, 0, v{TMP(qt)}" for r in range(4)]
        for kt in range(4):
            for qt in range(2):
                out += [f"v_sub_f32 v{S(j & 1, kt, qt) + r}, v{S(j & 1, kt, qt) + r}, v{TMP(qt)}" for r in range(4)]
        return out

    def epilogue(hd):
        j = 8 * hd
        out = []
        if not MS:
            out += reduce2("v_add_f32", [L(j, 0), L(j, 1)], [RL(0), RL(1)])
        out += [f"v_rcp_f32 v{RL(qt)}, v{L(j, qt)}" for qt in range(2)]
        for u in range(4):
            for qt in range(2):
                a = O(qt, 2 * u)
                out += [f"v_mul_f32 v{a + r}, v{a + r}, v{RL(qt)}" for r in range(8)]
                out += [f"v_cvt_pk_bf16_f32 v{a + k}, v{a + 2 * k}, v{a + 2 * k + 1}" for k in range(4)]
                out.append(f"s_mov_b32 s45, {36864 * hd + 9216 * u}")
                out.append(f"buffer_store_dwordx4 {vr(a)}, v{SA}, {sr(SO)}, s45 offen offset:{1024 * qt} {OPT['ostore']}")
        return out

    def group_wait(f):
        def w():
            regs = set(f"v{r}" for i in range(4) for r in range(F(f + i), F(f + i) + 4))
            lg = None
            for i, rs in enumerate(e.st.lgkm):
                if rs & regs:
                    lg = len(e.st.lgkm) - 1 - i
            if lg is not None:
                e.wait(lgkm=lg)
        return w

    segs = [("k", 0, 0), ("k", 0, 1)]
    for j in range(16):
        if j < 15:
            segs += [("k", j + 1, 0), ("k", j + 1, 1)]
        segs += [("v", j, 0), ("v", j, 1)]
    sidx = lambda kind, j: (0 if j == 0 else 2 * j - 1) if kind == "k" else 2 * j + 2

    def seg_reads(n):
        kind, j, h = segs[n]
        out = []
        for i in range(8):
            out += k_read(j, 2 * h + i // 4, i % 4, 8 * n + i) if kind == "k" else v_read(j, h, i, 8 * n + i)
        return out

    def split_cost(items, frac):
        tot = sum(cost_of(x) for x in items)
        acc = 0
        for i, x in enumerate(items):
            if acc >= tot * frac:
                return items[:i], items[i:]
            acc += cost_of(x)
        return items, []

    slow_states = {0: [], 1: []}
    emit(seg_reads(0))
    group_wait(0)()
    rel = f"ds_write_b32 v{FA_}, v{FD} offset:{F_FREE}"
    pending_br = None
    for n, (kind, j, h) in enumerate(segs):
        it = j - 1 if kind == "k" else j
        if OPT["trace0"] and it >= 0 and (kind, h) == (("k", 0) if it < 15 else ("v", 0)):
            if it > 0:
                e.raw(f"    v_writelane_b32 v255, s90, {it - 1}")
            e("s_memtime s[90:91]")
        m = []
        gapof = []
        for i in range(8):
            gapof.append(len(m))
            m += qk(j, 2 * h + i // 4, i % 4, 8 * n + i) if kind == "k" else pv(j, h, i, 8 * n + i)
        rd = seg_reads(n + 1) if n + 1 < len(segs) else []
        at = {gapof[4] - 1: [group_wait(8 * n + 4)]}
        if n + 1 < len(segs):
            at[len(m) - 1] = [group_wait(8 * n + 8)]
        valu, pre = [], []
        if it >= 0:
            if kind == "k":
                body = softmax(it, 0)
                a1, rest1 = split_cost(softmax(it, 1), 0.30 if MS else 0.40)
                if it == 8:
                    body = epilogue(0) + body
                    a1, rest1 = [], softmax(it, 1)
                x0, x1 = split_cost(body + a1, 0.56)
                valu = x0 if h == 0 else x1
            elif h == 0:
                if it == 15:
                    pre = softmax(it, 0)
                    rest1 = softmax(it, 1)
                valu = list(rest1)
                if it == 7:
                    valu += maxes(8)
            else:
                if it == 7:
                    valu = first(8)
                elif it < 15:
                    valu = maxes(it + 1) + [f"v_max_f32 v{TMP(2)}, v{TMP(0)}, v{TMP(1)}", f"v_cmp_lt_f32 vcc, s50, v{TMP(2)}"]
                if it == 6:
                    rd = interleave(rd, q_reads(1))
        if h == 0 and n + 2 < len(segs):
            k2, j2, _ = segs[n + 2]
            need = 33 + sidx(k2, j2)
            valu = valu + [f"v_mov_b32 v{FD}, {33 + sidx(kind, j)}"]
            if need > 34:
                chk = check_items(f"G0_x{n}", need if need <= 64 else "s42", late, pre=rel)
                at[gapof[3]] = [chk[0]]
                valu = valu + [chk[1]]
                pending_br = [chk[2], rel]
            else:
                pending_br = [rel]
        elif h == 1 and pending_br:
            at[0] = pending_br
            pending_br = None
        if it == 10 and kind == "k" and h == 1:
            at[2] = [f"v_mov_b32 v{TMP(2)}, 1"]
            at[4] = [lambda: e.wait(vm=0), f"ds_write_b32 v{FA_}, v{TMP(2)} offset:{F_DONE0}"]
        emit(pre)
        guard = kind == "v" and h == 1 and it < 15 and it != 7
        emit(weave(m, valu, rd, at=at, hi=len(m) - (2 if guard else 0)))
        if it == -1 and h == 1:
            emit(maxes(0) + first(0))
        if guard:
            nm = f"G0_g{it}"
            e(f"s_cbranch_vccnz {nm}")
            snap = e.snapshot()
            slow_states[(it + 1) & 1].append(snap)
            e.label(nm + "_ret")

            def tramp(nm=nm, snap=snap, it=it):
                e.restore(snap)
                e.label(nm)
                e(f"s_call_b64 s[38:39], G0_slow{(it + 1) & 1}{it // 8 if not MS else 0}")
                e(f"s_branch {nm}_ret")
            late.append(tramp)
        if it == 7 and kind == "v" and h == 1:
            stamp(e, 4)
    pt(e, True)
    e(f"v_mov_b32 v{PL + 1}, 2")
    e(f"ds_write_b32 v{FA_}, v{PL + 1} offset:{F_GB}")
    emit(epilogue(1))
    CW, CG, CM = 8, 16, 12
    ACC = lambda mt, t: 16 * mt + 4 * t
    FB = lambda p, mt: 144 + 36 * p + 4 * mt
    FA = lambda p, t: 216 + 16 * p + 4 * t
    AA = lambda t: 248 + t
    VA, PH, BR, PG = 252, 253, 254, 255
    LN, FQ2 = 64, 65
    e("s_load_dwordx4 s[28:31], s[0:1], 32")
    e("s_load_dwordx2 s[32:33], s[0:1], 48")
    out_tile_ids(e, True)
    e(f"v_mbcnt_lo_u32_b32 v{LN}, -1, 0")
    e(f"v_mbcnt_hi_u32_b32 v{LN}, -1, v{LN}")
    e(f"v_mov_b32 v{FQ2}, v{FQ}")
    e(f"v_mov_b32 v{PH}, v{FA_}")
    wo_voffset(e, VA, LN, 66)
    e(f"s_lshl_b32 s41, s{W}, 12")
    e(f"s_add_u32 s41, s41, {AR0}")
    wo_read_addr(e, AA, LN, 66, "s41")
    e(f"s_mul_i32 s44, s{W}, 9216")
    e(f"v_lshl_add_u32 v{BR}, v{LN}, 4, s44")
    e.wait(lgkm=0)
    wo_dbg_srds(e, CW, CG)
    e(f"s_mul_i32 s44, s2, 36864")
    e(f"s_add_u32 s44, s44, {MBOX}")
    e(f"s_add_u32 s{CM}, s36, s44")
    e(f"s_addc_u32 s{CM + 1}, s37, 0")
    e(f"s_mov_b32 s{CM + 2}, 36864")
    e(f"s_mov_b32 s{CM + 3}, 0x20000")
    blocking_poll4(e, "G0_l0", FQ2, F_GB, PG, 2)
    blocking_poll4(e, "G0_l1", FQ2, F_GB1, PG, 3)
    dma_a = lambda pos: wo_dma(pos, f"s_add_u32 m0, s41, {16384 * (pos & 1)}", VA, CW)
    a_reads = lambda pos: [f"ds_read_b64_tr_b16 {vr(FA(pos & 1, t) + 2 * ee, 2)}, v{AA(t)} offset:{16384 * (pos & 1) + 2048 * ee}"
                           for t in range(4) for ee in range(2)]
    b_reads = lambda pos: [f"ds_read_b128 {vr(FB(pos & 1, mt))}, v{BR} offset:{36864 * (pos & 1) + 1024 * mt}" for mt in range(9)]
    free_b = lambda pos: [f"v_mov_b32 v{PG}, {pos + 1}", f"ds_write_b32 v{PH}, v{PG} offset:{F_FREEB}"]
    pt(e)
    emit(dma_a(0) + dma_a(1))
    e(f"v_mov_b32 v{PG}, 2")
    e.wait(vm=8)
    e(f"ds_write_b32 v{PH}, v{PG} offset:{F_DONE0}")
    stamp(e, 5)
    e(f"s_setprio {OPT['oprio'].split(',')[1]}")
    blocking_poll4(e, "G0_b0", PH, F_FULLB, PG, 1)
    e.wait(vm=4)
    emit(a_reads(0) + b_reads(0) + free_b(0))
    def split_dma(items):
        out, cur = [], []
        for it in items:
            cur.append(it)
            if isinstance(it, tuple):
                out.append(cur)
                cur = []
        return out

    def gbar(k):
        e(f"v_mov_b32 v{PG}, {k}")
        e(f"ds_write_b32 v{PH}, v{PG} offset:{F_GB}")
        blocking_poll4(e, f"G0_gb{k}", FQ2, F_GB, PG, k)

    c0 = int(OPT["g0chk"])
    for pos in range(NM1):
        p = pos & 1
        pt(e)
        e.wait(lgkm=0)
        dm = split_dma(dma_a(pos + 2)) if pos + 2 < NM1 else []
        if not OPT["aspread"]:
            for d in dm:
                emit(d)
            dm = []
        nxt = pos + 1 < NM1
        if not nxt:
            e(f"s_setprio {OPT['xprio']}")
            LN, FQ2 = FA(p ^ 1, 0), FA(p ^ 1, 0) + 1
            e(f"v_mbcnt_lo_u32_b32 v{LN}, -1, 0")
            e(f"v_mbcnt_hi_u32_b32 v{LN}, -1, v{LN}")
            e(f"v_and_b32 v{FQ2}, 3, v{LN}")
            e(f"v_lshlrev_b32 v{FQ2}, 2, v{FQ2}")
            e(f"v_add_u32 v{FQ2}, {FLG}, v{FQ2}")
            red_write_addr(e, AA, LN)
            gbar(3)
        chk = word_check(e, late, f"G0_b{pos + 1}", PH, F_FULLB, PG, pos + 2) if nxt else []
        ar, br = (a_reads(pos + 1), b_reads(pos + 1)) if nxt else ([], [])
        for mt in range(9):
            m = [f"{MF} {vr(ACC(mt, t))}, {vr(FA(p, t))}, {vr(FB(p, mt))}, {'0' if pos == 0 else vr(ACC(mt, t))}" for t in range(4)]
            fl = []
            if nxt:
                a0 = 1 if c0 >= 3 else c0 + 6
                if mt == a0:
                    k = e.vm_needed_for_tags(lambda t: t[0] == "w" and t[1] <= pos + 1)
                    if k is not None:
                        e.wait(vm=k)
                if a0 <= mt < a0 + 2:
                    fl = ar[4 * (mt - a0): 4 * (mt - a0 + 1)]
                if mt == c0:
                    fl = chk[:1]
                if mt == c0 + 1:
                    fl = ["s_nop 0", chk[1], "s_nop 0", chk[2]]
                if c0 + 2 <= mt < c0 + 5:
                    fl = br[3 * (mt - c0 - 2): 3 * (mt - c0 - 1)]
                if mt == c0 + 5:
                    fl = free_b(pos + 1)
            elif mt >= 2:
                fl = [f"ds_write_b128 v{AA(c)}, {vr(ACC(mt - 2, c))} offset:{1024 * (mt - 2)}" for c in range(1, 4)]
            emit(interleave(m, fl))
            if dm and mt % 2 == 0:
                emit(dm.pop(0))
    pt(e)
    e(f"s_setprio {OPT['rprio']}")
    for mt in (7, 8):
        for c in range(1, 4):
            e(f"ds_write_b128 v{AA(c)}, {vr(ACC(mt, c))} offset:{1024 * mt}")
    gbar(4)
    pt(e)
    for mt in range(9):
        for c in range(1, 4):
            e(f"ds_read_b128 {vr(ACC(mt, c))}, v{AA(0)} offset:{9216 * (c - 1) + 1024 * mt}")
    e(f"v_mov_b32 v{PG}, 5")
    e(f"ds_write_b32 v{PH}, v{PG} offset:{F_GB}")
    e(f"s_setprio {OPT['xprio']}")
    e("s_mov_b32 s55, 4096")
    for mt in range(9):
        a = ACC(mt, 0)
        for r in range(4):
            e(f"v_add_f32 v{a + r}, v{a + r}, v{ACC(mt, 1) + r}")
            e(f"v_add_f32 v{ACC(mt, 2) + r}, v{ACC(mt, 2) + r}, v{ACC(mt, 3) + r}")
        for r in range(4):
            e(f"v_add_f32 v{a + r}, v{a + r}, v{ACC(mt, 2) + r}")
        d = FB(0, mt // 2) + 2 * (mt & 1)
        e(f"v_cvt_pk_bf16_f32 v{d}, v{a}, v{a + 1}")
        e(f"v_cvt_pk_bf16_f32 v{d + 1}, v{a + 2}, v{a + 3}")
        if mt & 1:
            e(f"buffer_store_dwordx4 {vr(FB(0, mt // 2))}, v{BR}, {sr(CM)}, 0 offen offset:{1024 * (mt // 2)} sc1")
        elif mt == 8:
            e(f"buffer_store_dwordx4 {vr(FB(0, 4))}, v{BR}, {sr(CM)}, s55 offen sc1")
    pt(e)
    e.wait(vm=0)
    pt(e)
    e("s_lshl_b32 s44, s34, 12")
    e("s_lshl_b32 s45, s35, 7")
    e("s_add_u32 s44, s44, s45")
    e(f"s_lshl_b32 s45, s{W}, 2")
    e("s_add_u32 s44, s44, s45")
    e(f"s_add_u32 s44, s44, {FLAGS + 2048}")
    e(f"v_mov_b32 v0, s44")
    e(f"v_mov_b32 v1, 1")
    e(f"v_xor_b32 v2, 0x80, v0")
    e("s_mov_b64 exec, 1")
    e(f"global_store_dword v0, v1, s[36:37] sc1")
    e("s_mov_b64 exec, -1")
    flag_wait(e, "G0_gw", 2, PG, 4)
    e(f"v_mov_b32 v{PG}, 1")
    e(f"ds_write_b32 v{PH}, v{PG} offset:{F_XRDY}")
    e.label("G0_exit")
    pt(e)
    pt_store(e, 0)
    if OPT["trace0"]:
        e.raw(f"    v_writelane_b32 v255, s90, 15")
        e("s_lshl_b32 s58, s2, 2")
        e(f"s_add_u32 s58, s58, s{W}")
        e("s_lshl_b32 s58, s58, 9")
        e(f"s_add_u32 s58, s58, {STAMP_OFF + (2 << 20)}")
        e(f"v_mbcnt_lo_u32_b32 v2, -1, 0")
        e(f"v_mbcnt_hi_u32_b32 v2, -1, v2")
        e(f"v_lshl_add_u32 v2, v2, 2, s58")
        e(f"global_store_dword v2, v255, s[36:37]")
        e(f"global_store_dword v2, v255, s[36:37] offset:256")
    stamp_store(e, 6, 36, STAMP_OFF, ["s_lshl_b32 s58, s2, 2", f"s_add_u32 s58, s58, s{W}"])
    e("s_endpgm")
    for f in late:
        f()
    for par in range(2):
        for hd in range(1 if MS else 2):
            st = joined(e, slow_states[par])
            st.lgkm, st.vm = [], []
            e.restore(st)
            e.label(f"G0_slow{par}{hd}")
            emit(reduce2("v_max_f32", [TMP(0), TMP(1)], [RL(0), RL(1)]))
            for qt in range(2):
                t = TMP(qt)
                e(f"v_max_f32 v{t}, 0, v{t}")
                for r in range(4):
                    e(f"v_sub_f32 v{NEGM(qt) + r}, v{NEGM(qt) + r}, v{t}")
                for kt in range(4):
                    for r in range(4):
                        e(f"v_sub_f32 v{S(par, kt, qt) + r}, v{S(par, kt, qt) + r}, v{t}")
                e(f"v_exp_f32 v{t}, -v{t}")
                for r in range(4 if MS else 1):
                    e(f"v_mul_f32 v{L(8 * hd, qt) + r}, v{L(8 * hd, qt) + r}, v{t}")
                for r in range(32):
                    e(f"v_mul_f32 v{O(qt, 0) + r}, v{O(qt, 0) + r}, v{t}")
            e("s_nop 1")
            e("s_setpc_b64 s[38:39]")


def loader_group(e):
    emit = mk_emit(e)
    SX, SW, SK, SV, SO = 4, 8, 12, 16, 20
    kvf, xf, wf = OPT["kvflag"], OPT["xflag"], OPT["wflag"]
    BUF = lambda c: 4 * c
    O8 = lambda T: 128 + 4 * T
    Q8 = lambda u: 160 + 4 * u
    S8 = 176
    KF = lambda u: 180 + 4 * u
    VF = lambda T: 196 + 2 * T
    NEGM, L8, TM, TM2 = 212, 216, 217, 218
    AK = lambda u: 220 + u
    AV = lambda T: 224 + T
    VXM = lambda i: 232 + i
    VX8 = 234
    VWQ = lambda i: 235 + i
    VKV = lambda i: 237 + (i & 1)
    LANE, FQ, FW, FD, WA = 239, 240, 241, 242, 243
    T0, T1, T2, T3 = 244, 245, 246, 247
    PL, DUMMY = 248, 219
    late = []
    e(f"v_and_b32 v{LANE}, 63, v0")
    g4 = T0
    e(f"v_lshrrev_b32 v{g4}, 4, v{LANE}")
    e(f"v_and_b32 v{T1}, 2, v{g4}")
    e(f"v_and_b32 v{T2}, 3, v{LANE}")
    e(f"v_xor_b32 v{T1}, v{T1}, v{T2}")
    e(f"v_lshlrev_b32 v{T1}, 4, v{T1}")
    e(f"v_lshrrev_b32 v{T2}, 2, v{LANE}")
    e(f"v_lshl_add_u32 v{T1}, v{T2}, 11, v{T1}")
    e(f"s_lshl_b32 s38, s{W}, 16")
    e(f"v_add_u32 v{VXM(0)}, s38, v{T1}")
    e(f"v_add_u32 v{VXM(1)}, {32768 - 1024}, v{VXM(0)}")
    e(f"v_add_u32 v{VX8}, {128 * 2048}, v{T1}")
    e(f"v_and_b32 v{T1}, 15, v{LANE}")
    e(f"v_lshlrev_b32 v{T2}, 1, v{g4}")
    e(f"v_xor_b32 v{T1}, v{T1}, v{T2}")
    e(f"s_and_b32 s39, s{W}, 1")
    e(f"s_lshl_b32 s40, s39, 3")
    e(f"v_xor_b32 v{T2}, s40, v{T1}")
    e(f"v_lshlrev_b32 v{T2}, 4, v{T2}")
    e(f"v_lshl_add_u32 v{T3}, v{g4}, 13, v{T2}")
    e(f"v_add_u32 v{VWQ(0)}, s38, v{T3}")
    e(f"v_add_u32 v{VWQ(1)}, {32768 - 1024}, v{VWQ(0)}")
    e(f"s_lshl_b32 s41, s{W}, 12")
    e(f"v_lshlrev_b32 v{T1}, 4, v{T1}")
    e(f"v_lshl_add_u32 v{T1}, v{g4}, 8, v{T1}")
    e(f"v_add_u32 v{VKV(0)}, s41, v{T1}")
    e(f"v_xor_b32 v{VKV(1)}, 0x80, v{VKV(0)}")
    e(f"s_lshl_b32 s42, s{W}, 11")
    e("s_lshr_b32 s53, s26, 1")
    e("s_add_u32 s53, s53, s25")
    e("s_and_b32 s53, s53, 3")
    e.wait(lgkm=0)
    e("s_mul_i32 s44, s25, 294912")
    e(f"s_add_u32 s{SX}, s28, s44")
    e(f"s_addc_u32 s{SX + 1}, s29, 0")
    e(f"s_mov_b32 s{SX + 2}, 294912")
    e(f"s_mov_b32 s{SX + 3}, 0x20000")
    e("s_lshl_b32 s44, s26, 8")
    e(f"s_add_u32 s{SW}, s34, s44")
    e(f"s_addc_u32 s{SW + 1}, s35, 0")
    e(f"s_sub_u32 s{SW + 2}, 8388608, s44")
    e(f"s_mov_b32 s{SW + 3}, 0x20000")

    QLEAD = int(OPT["qlead"])

    def unit_of(P):
        if not QLEAD:
            return [f"s_mov_b32 s46, {P}"]
        if P == 0:
            return ["s_mov_b32 s46, s53"]
        tp = P - 1
        if tp < 12:
            return [f"s_cmp_eq_u32 s53, {tp & 3}", f"s_cselect_b32 s46, {tp + 4}, {tp}"]
        return [f"s_cmp_le_u32 s53, {tp - 12}", f"s_cselect_b32 s46, {tp + 1}, {tp}"]

    def gap(st, k):
        g = int(OPT["gap"])
        if st < 2 or g == 0 or (g == 4 and k == 0):
            return []
        return [lambda: e.raw(f"    global_load_dword v{DUMMY}, v{FD}, s[48:49]")]

    def issue_step(st):
        out = []
        P = st >> 1
        if st % 2 == 0:
            xs = XR + 18432 * (P % 3)
            out += unit_of(P)
            out += ["s_lshl_b32 s50, s46, 7", "s_add_u32 s51, s50, 64", "s_lshl_b32 s46, s46, 19"]

            def x8():
                e(f"s_cmp_eq_u32 s{W}, {P & 3}")
                e(f"s_cbranch_scc0 G1_x8s{st}")
                for hf in range(2):
                    e.raw(f"    s_mov_b32 m0, {xs + 9216 * hf + 8192}")
                    e.raw(f"    s_nop 0")
                    e.raw(f"    buffer_load_dwordx4 v{VX8}, {sr(SX)}, s{50 + hf} offen {xf} lds")
                e.label(f"G1_x8s{st}")
            out.append(x8)
            for hf in range(2):
                out.append(f"s_add_u32 m0, s42, {xs + 9216 * hf}")
                out.append((f"buffer_load_dwordx4 v{VXM(0)}, {sr(SX)}, s{50 + hf} offen {xf} lds", ("q", st)))
                out.append((f"buffer_load_dwordx4 v{VXM(1)}, {sr(SX)}, s{50 + hf} offen offset:1024 {xf} lds", ("q", st)))
                out += gap(st, hf)
        for hh in range(2):
            out.append(f"s_add_u32 m0, s42, {WQREG(st) + 8192 * hh}")
            out.append(f"s_add_u32 s45, s46, {262144 * (st & 1) + 256 * hh}")
            out.append((f"buffer_load_dwordx4 v{VWQ(0)}, {sr(SW)}, s45 offen {wf} lds", ("q", st)))
            out.append((f"buffer_load_dwordx4 v{VWQ(1)}, {sr(SW)}, s45 offen offset:1024 {wf} lds", ("q", st)))
            out += gap(st, hh)
        return out

    emit(issue_step(0))
    e("s_lshl_b32 s44, s27, 17")
    e(f"s_add_u32 s{SK}, s30, s44")
    e(f"s_addc_u32 s{SK + 1}, s31, 0")
    e(f"s_mov_b32 s{SK + 2}, 262144")
    e(f"s_mov_b32 s{SK + 3}, 0x20000")
    e(f"s_add_u32 s{SV}, s32, s44")
    e(f"s_addc_u32 s{SV + 1}, s33, 0")
    e(f"s_mov_b32 s{SV + 2}, 262144")
    e(f"s_mov_b32 s{SV + 3}, 0x20000")
    e(f"v_and_b32 v{FQ}, 3, v{LANE}")
    e(f"v_lshlrev_b32 v{FQ}, 2, v{FQ}")
    e(f"v_add_u32 v{FQ}, {FLG}, v{FQ}")
    e(f"s_lshl_b32 s44, s{W}, 2")
    e(f"v_mov_b32 v{FW}, {FLG}")
    e(f"v_add_u32 v{FW}, s44, v{FW}")
    e(f"s_add_u32 s43, s44, {FLG + F_FULL}")
    e("s_getpc_b64 s[54:55]")
    e.raw("G1_pc:")
    e(f"s_sub_u32 s54, s54, G1_pc - {KNAME}")
    e("s_subb_u32 s55, s55, 0")
    e(f"s_add_u32 s48, s54, cnt_table - {KNAME}")
    e("s_addc_u32 s49, s55, 0")
    e("s_lshr_b32 s44, s2, 3")
    e("s_lshl_b32 s44, s44, 2")
    e(f"s_add_u32 s44, s44, s{W}")
    e("s_min_u32 s44, s44, CODE_KB_P")
    e("s_lshl_b32 s44, s44, 10")
    e(f"v_lshl_add_u32 v{T1}, v{LANE}, 4, s44")
    e.raw(f"    global_load_dwordx4 {vr(KF(0))}, v{T1}, s[54:55]")
    o_srd(e, SO)
    e("s_lshl_b32 s44, s27, 6")
    e("s_lshl_b32 s45, s25, 11")
    e("s_add_u32 s44, s44, s45")
    e(f"s_add_u32 s44, s44, {FLAGS}")
    e(f"v_lshlrev_b32 v{T1}, 11, v{LANE}")
    e(f"v_add_u32 v{T1}, s44, v{T1}")
    for r in range(4):
        e(f"v_mov_b32 v{PL + r}, 0")
    e(f"s_cmp_lg_u32 s{W}, 0")
    e("s_cbranch_scc1 G1_noclr")
    e("s_mov_b64 exec, 3")
    e.raw(f"    global_store_dwordx4 v{T1}, {vr(PL)}, s[36:37] sc1")
    e("s_mov_b64 exec, -1")
    e.label("G1_noclr")
    e(f"s_lshl_b32 s44, s{W}, 6")
    e(f"s_add_u32 s45, s41, {VS}")
    kv_addr_setup(e, LANE, AK, AV, (T0, T1, T2, T3), "s44", "s41", "s45")
    e(f"v_lshl_add_u32 v{WA}, v{LANE}, 4, s41")
    e("s_barrier")

    def publish(val):
        e(f"v_mov_b32 v{FD}, {4 * val}")
        e("s_mov_b32 m0, s43")
        e("s_mov_b64 exec, 1")
        e(f"global_load_lds_dword v{FD}, s[48:49]", ("f", val))
        e("s_mov_b64 exec, -1")

    trace_n = [0]

    def trace():
        if OPT["trace"]:
            e("s_memrealtime s[94:95]")
            e("s_memtime s[90:91]")
            e.wait(lgkm=0)
            e(f"v_writelane_b32 v254, s94, {trace_n[0]}")
            e(f"v_writelane_b32 v255, s90, {trace_n[0]}")
            trace_n[0] += 1

    def need_free(nm, need):
        if need > 64:
            e(f"s_mov_b32 s58, {need}")
            need = "s58"
        blocking_poll4(e, nm, FQ, F_FREE, PL, need)
        trace()

    if OPT["abl_noload"]:
        e.wait(vm=0)
        e(f"v_mov_b32 v{FD}, 100")
        e(f"ds_write_b32 v{FW}, v{FD} offset:{F_FULL}")
        e("s_endpgm")

    tile_of = lambda n: (False, 0) if n == 0 else ((False, (n + 1) // 2) if n & 1 else (True, n // 2 - 1))
    NPF = int(OPT["npf"])
    allp = [(n, c) for n in range(5, 33) for c in range(4) if n != 31]
    nreg = 8 * NPF
    regp = [allp[(len(allp) * k + len(allp) // 2) // nreg] for k in range(nreg)] if nreg else []
    assert len(set(regp)) == nreg

    def piece_src(n, c):
        isv, j = tile_of(n)
        return (SV if isv else SK, 16384 * j)

    def piece_slot(n, c):
        isv, j = tile_of(n)
        return (VS if isv else KS) + 16384 * (j % 3)

    def pf_batch(bt, st):
        for k in range(8 * bt, 8 * bt + 8):
            p, c = regp[k]
            srd, off = piece_src(p, c)
            e.raw(f"    s_mov_b32 s52, {off}")
            e.raw(f"    buffer_load_dwordx4 {vr(BUF(k))}, v{VKV(c)}, {sr(srd)}, s52 offen offset:{1024 * (c & 3)} {kvf}")

    def fill(n):
        for c in range(4):
            if (n, c) in regp and "nowr" not in OPT["abl"]:
                off = piece_slot(n, c) + 1024 * c
                if off < 65536:
                    e(f"ds_write_b128 v{WA}, {vr(BUF(regp.index((n, c))))} offset:{off}")
                else:
                    e(f"ds_write_b128 v{T3}, {vr(BUF(regp.index((n, c))))} offset:{off - 49152}")
        srd, off = piece_src(n, 0)
        e(f"s_add_u32 m0, s41, {piece_slot(n, 0)}")
        e(f"s_mov_b32 s52, {off}")
        for c in range(4):
            if (n, c) not in regp and not ("nodma" in OPT["abl"] and n > 6):
                e(f"buffer_load_dwordx4 v{VKV(c)}, {sr(srd)}, s52 offen offset:{1024 * c} {kvf} lds", ("a", n))
                if OPT["agap"]:
                    e(f"global_load_dword v{DUMMY}, v{FD}, s[48:49]".replace(f"v{DUMMY},", f"v{DUMMY},"), ("g", n))
                    e.st.vm[-1] = (set(), ("g", n))

    def landed(p):
        n = e.vm_needed_for_tags(lambda t: t[0] == "a" and t[1] <= p)
        if n is not None:
            e.wait(vm=n)

    stag = [int(x) for x in OPT["pfstag"].split(",")]
    pf0, pfd = int(OPT["pf0"]), int(OPT["pfd"])
    publish(1)
    emit(issue_step(1))
    publish(2)
    stamp(e, 1)
    for st in range(2, 32):
        if st >= 6 and st % 2 == 0:
            need_free(f"G1_fq{st}", st - 4)
        emit(issue_step(st))
        publish(st + 1)
        for bt in range(NPF):
            for r in range(4):
                if pf0 + pfd * bt + stag[r] == st:
                    assert st < 31
                    e(f"s_cmp_eq_u32 s53, {r}")
                    e(f"s_cbranch_scc0 G1_pf{bt}_{r}")
                    pf_batch(bt, st)
                    e.label(f"G1_pf{bt}_{r}")
    e(f"v_add_u32 v{T3}, 49152, v{WA}")
    stamp(e, 2)
    need_free("G1_fa0", 28)
    fill(0)
    fill(1)
    publish(34)
    need_free("G1_fa2", 30)
    fill(2)
    publish(35)
    fill(3)
    publish(36)
    need_free("G1_fa4", 32)
    fill(4)
    publish(37)
    e(f"s_mov_b32 s50, {f32bits(THR):#x}")

    def load_q8(img):
        e(f"s_sub_u32 s44, {img + 32768}, s41")
        e(f"v_add_u32 v{PL}, s44, v{WA}")
        for u in range(4):
            e(f"ds_read_b128 {vr(Q8(u))}, v{PL} offset:{1024 * u}")
        for r in range(4):
            e(f"v_mov_b32 v{NEGM + r}, 0")
        e.wait(lgkm=0)

    slow_states = []

    def qk8_reads(j):
        landed(0 if j == 0 else 2 * j - 1)
        for u in range(4):
            e(f"ds_read_b128 {vr(KF(u))}, v{AK(u)} offset:{KS + 16384 * (j % 3)}")
        return 4

    def hi(tag):
        if tag in OPT["mprio"]:
            e.wait(lgkm=0)
            e("s_setprio 3")

    def lo(tag):
        if tag in OPT["mprio"]:
            e(f"s_setprio {OPT['g1prio']}")

    def qk8_math(j):
        hi("q")
        for u in range(4):
            e(f"{MF} {vr(S8)}, {vr(KF(u))}, {vr(Q8(u))}, {vr(NEGM) if u == 0 else vr(S8)}")
        lo("q")
        e(f"v_max_f32 v{TM}, v{S8}, v{S8 + 1}")
        e(f"v_max3_f32 v{TM}, v{S8 + 2}, v{S8 + 3}, v{TM}")
        if j % 8 == 0:
            lane_reduce(e, "v_max_f32", TM, TM2)
            for r in range(4):
                e(f"v_sub_f32 v{NEGM + r}, 0, v{TM}")
                e(f"v_sub_f32 v{S8 + r}, v{S8 + r}, v{TM}")
            e(f"v_mov_b32 v{L8}, 0")
        else:
            e(f"v_cmp_lt_f32 vcc, s50, v{TM}")
            e("s_nop 1")
            e(f"s_cbranch_vccnz G1_g{j}")
            snap = e.snapshot()
            slow_states.append(snap)
            e.label(f"G1_g{j}_ret")

            def tramp():
                e.restore(snap)
                e.label(f"G1_g{j}")
                e("s_call_b64 s[38:39], G1_slow")
                e(f"s_branch G1_g{j}_ret")
            late.append(tramp)
        for r in range(4):
            e(f"v_exp_f32 v{S8 + r}, v{S8 + r}")
        for r in range(4):
            e(f"v_add_f32 v{L8}, v{L8}, v{S8 + r}")
        e(f"v_cvt_pk_bf16_f32 v{S8}, v{S8}, v{S8 + 1}")
        e(f"v_cvt_pk_bf16_f32 v{S8 + 1}, v{S8 + 2}, v{S8 + 3}")

    def pv8_reads(j):
        landed(2 * j + 2)
        for T in range(8):
            e(f"ds_read_b64_tr_b16 {vr(VF(T), 2)}, v{AV(T)} offset:{16384 * (j % 3)}")
        return 8

    def pv8_math(j):
        hi("p")
        for T in range(8):
            e(f"{MF16} {vr(O8(T))}, {vr(VF(T), 2)}, {vr(S8, 2)}, {'0' if j % 8 == 0 else vr(O8(T))}")
        lo("p")

    X1, X2, X3 = T0, T1, T2

    def merge1(hd):
        lane_reduce(e, "v_add_f32", L8, TM)
        e(f"v_lshlrev_b32 v{X3}, 4, v{LANE}")
        for c in range(1, 4):
            e(f"s_xor_b32 s44, s{W}, {c}")
            e(f"s_mul_i32 s44, s44, 6144")
            e(f"s_add_u32 s44, s44, {MRG + 2048 * (c - 1)}")
            e(f"v_add_u32 v{X1}, s44, v{X3}")
            for k in range(2):
                e(f"ds_write_b128 v{X1}, {vr(O8(2 * c + k))} offset:{1024 * k}")
        e(f"s_lshl_b32 s44, s{W}, 9")
        e(f"s_add_u32 s44, s44, {MRG + 24576}")
        e(f"v_lshl_add_u32 v{X2}, v{LANE}, 3, s44")
        e(f"v_mov_b32 v{NEGM + 1}, v{L8}")
        e(f"v_mov_b32 v{TM2}, {hd + 1}")
        e(f"ds_write_b64 v{X2}, {vr(NEGM, 2)}")
        e(f"ds_write_b32 v{FW}, v{TM2} offset:{F_GB1}")
        for r in range(8):
            e(f"v_mov_b32 v{r}, v{O8(0) + r}")
        e.wait(lgkm=0)

    def merge2(hd):
        ST = lambda c: 32 + 2 * c
        PO = lambda c, k: 8 * c + 4 * k
        e(f"v_lshlrev_b32 v{X3}, 4, v{LANE}")
        blocking_poll4(e, f"G1_gb1{hd}", FQ, F_GB1, PL + 1, hd + 1)
        for c in range(4):
            e(f"s_xor_b32 s44, s{W}, {c}")
            e(f"s_lshl_b32 s44, s44, 9")
            e(f"s_add_u32 s44, s44, {MRG + 24576}")
            e(f"v_lshl_add_u32 v{X2}, v{LANE}, 3, s44")
            e(f"ds_read_b64 {vr(ST(c), 2)}, v{X2}")
        e(f"s_mul_i32 s44, s{W}, 6144")
        e(f"s_add_u32 s44, s44, {MRG}")
        e(f"v_add_u32 v{X1}, s44, v{X3}")
        for c in range(1, 4):
            for k in range(2):
                e(f"ds_read_b128 {vr(PO(c, k))}, v{X1} offset:{2048 * (c - 1) + 1024 * k}")
        if hd == 1:
            e(f"v_mov_b32 v{TM2}, 3")
            e(f"ds_write_b32 v{FW}, v{TM2} offset:{F_GB1}")
        mn = TM
        e(f"v_min_f32 v{mn}, v{ST(0)}, v{ST(1)}")
        e(f"v_min3_f32 v{mn}, v{ST(2)}, v{ST(3)}, v{mn}")
        for c in range(4):
            e(f"v_sub_f32 v{ST(c)}, v{mn}, v{ST(c)}")
        for c in range(4):
            e(f"v_exp_f32 v{ST(c)}, v{ST(c)}")
        e(f"v_mul_f32 v{mn}, v{ST(0)}, v{ST(0) + 1}")
        for c in range(1, 4):
            e(f"v_fma_f32 v{mn}, v{ST(c)}, v{ST(c) + 1}, v{mn}")
        e(f"v_rcp_f32 v{mn}, v{mn}")
        for c in range(4):
            e(f"v_mul_f32 v{ST(c)}, v{ST(c)}, v{mn}")
        for r in range(8):
            e(f"v_mul_f32 v{r}, v{r}, v{ST(0)}")
        for c in range(1, 4):
            for r in range(8):
                e(f"v_fma_f32 v{r}, v{PO(c, 0) + r}, v{ST(c)}, v{r}")
        for k in range(4):
            e(f"v_cvt_pk_bf16_f32 v{k}, v{2 * k}, v{2 * k + 1}")
        e(f"s_mul_i32 s45, s{W}, 9216")
        e(f"s_add_u32 s45, s45, {8192 + 36864 * hd}")
        e(f"buffer_store_dwordx4 {vr(0)}, v{X3}, {sr(SO)}, s45 offen {OPT['ostore']}", ("st", hd))

    def fast_free(nm, need):
        e(f"v_cmp_lt_u32 s[56:57], v{PL}, {need}")
        e("s_cmp_eq_u64 s[56:57], 0")
        e(f"s_cbranch_scc0 {nm}")
        snap = e.snapshot()
        e.label(nm + "_ret")

        def slow():
            e.restore(snap)
            e.label(nm)
            e("s_setprio 0")
            blocking_poll4(e, nm + "_p", FQ, F_FREE, PL, need, sleep=int(OPT["sleep"]))
            e(f"s_setprio {OPT['g1prio']}")
            e(f"s_branch {nm}_ret")
        late.append(slow)
        trace()

    CO, CW, CD, CG = 4, 8, 12, 16
    of = OPT["oflag"]
    acc_regs = list(range(0, 40, 4)) + list(range(112, 216, 4))
    ACC = lambda mt, t: acc_regs[4 * mt + t]
    FB = lambda p, mt: 40 + 36 * p + 4 * mt
    FA = lambda p, t: 216 + 16 * p + 4 * t
    AA = lambda t: 248 + t
    VB, VA, PG, PH = 252, 253, 254, 255

    def c_setup():
        e("s_load_dwordx4 s[28:31], s[0:1], 32")
        e("s_load_dwordx2 s[32:33], s[0:1], 48")
        out_tile_ids(e, False)
        e(f"s_mul_i32 s44, s{W}, 9216")
        e(f"v_lshl_add_u32 v{VB}, v{LANE}, 4, s44")
        wo_voffset(e, VA, LANE, T0)
        e.wait(lgkm=0)
        e(f"s_mul_i32 s44, s34, {32 * 36864}")
        e(f"s_add_u32 s{CO}, s36, s44")
        e(f"s_addc_u32 s{CO + 1}, s37, 0")
        e(f"s_mov_b32 s{CO + 2}, {32 * 36864}")
        e(f"s_mov_b32 s{CO + 3}, 0x20000")
        wo_dbg_srds(e, CW, CG)
        e("s_mul_i32 s45, s34, 294912")
        e("s_add_u32 s44, s44, s45")
        e(f"s_add_u32 s{CD}, s30, s44")
        e(f"s_addc_u32 s{CD + 1}, s31, 0")
        e(f"s_sub_u32 s{CD + 2}, {16 * 294912}, s44")
        e(f"s_mov_b32 s{CD + 3}, 0x20000")

    def dma_a(pos):
        return wo_dma(pos, f"s_add_u32 m0, s41, {AR1 + 16384 * (pos & 1)}", VA, CW)

    def b_prep(pos):
        return head_of(pos, 54) + ["s_mul_i32 s54, s54, 36864", "s_add_u32 s55, s54, 4096", f"s_add_u32 s{(47, 51)[pos & 1]}, s54, 8192"]

    def b_load(pos, mt):
        return f"buffer_load_dwordx4 {vr(FB(pos & 1, mt))}, v{VB}, {sr(CO)}, s{(54, 55, (47, 51)[pos & 1])[mt // 4]} offen offset:{1024 * (mt % 4)} {of}"

    def a_reads(pos):
        return [f"ds_read_b64_tr_b16 {vr(FA(pos & 1, t) + 2 * ee, 2)}, v{AA(t)} offset:{16384 * (pos & 1) + 2048 * ee}"
                for t in range(4) for ee in range(2)]

    def gflag_issue(rnd):
        e(f"buffer_load_dword v{PG}, off, {sr(CG)}, s40 offset:{64 * rnd} sc1")

    def gflag_check(rnd):
        nm = f"G1_gf{rnd}"
        e(f"v_cmp_gt_u32 vcc, 16, v{PG}")
        e("s_nop 1")
        e(f"s_cbranch_vccnz {nm}")
        snap = e.snapshot()
        e.label(nm + "_ret")

        def slow():
            e.restore(snap)
            e.label(nm)
            e(f"s_mov_b32 s59, {1 << 16}")
            e.label(nm + "_l")
            e("s_sleep 32")
            gflag_issue(rnd)
            e.wait(vm=0)
            e(f"v_cmp_gt_u32 vcc, 16, v{PG}")
            e("s_nop 1")
            e(f"s_cbranch_vccz {nm}_ret")
            e("s_sub_u32 s59, s59, 1")
            e("s_cmp_lg_u32 s59, 0")
            e(f"s_cbranch_scc1 {nm}_l")
            e(f"s_branch {nm}_ret")
        late.append(slow)

    assert all(k >= 10 or n < 19 for k, (n, c) in enumerate(regp))
    e(f"s_setprio {OPT['g1prio']}")
    blocking_poll4(e, "G1_gb0", FQ, F_GB, PL, 1)
    load_q8(QIA)
    qk8_reads(0)
    e(f"ds_read_b32 v{PL}, v{FQ} offset:{F_FREE}")
    qk8_math(0)
    for n in range(5, 33):
        if n != 31:
            fast_free(f"G1_fb{n}", 33 + (0 if n == 5 else n - 6))
            fill(n)
        j = (n - 5) // 2 if n & 1 else (n - 4) // 2
        skip8 = "not8" in OPT["abl"] and j % 8 not in (0, 7)
        nr = 0 if skip8 else (pv8_reads(j) if n & 1 else qk8_reads(j))
        e(f"ds_read_b32 v{PL}, v{FQ} offset:{F_FREE}")
        if n != 31:
            e.wait(lgkm=nr + 1)
            publish(33 + n)
        if n == int(OPT["pwround"]) and OPT["prewarm"]:
            e("s_load_dwordx2 s[54:55], s[0:1], 32")
            e("s_lshl_b32 s44, s2, 2")
            e(f"s_add_u32 s44, s44, s{W}")
            e("s_lshl_b32 s44, s44, 13")
            e(f"v_lshl_add_u32 v{T1}, v{LANE}, 7, s44")
            e.wait(lgkm=0)
            e(f"global_load_dword v{DUMMY}, v{T1}, s[54:55]")
        if skip8:
            pass
        elif n & 1:
            pv8_math(j)
        else:
            qk8_math(j)
        if n == 19:
            merge1(0)
            load_q8(QIB)
            e(f"ds_read_b32 v{PL}, v{FQ} offset:{F_FREE}")
        if n == 21:
            merge2(0)
        if n == 24:
            k = e.vm_needed_for_tags(lambda t: t[0] == "st")
            if k is not None:
                e.wait(vm=k)
            e(f"v_mov_b32 v{TM2}, 1")
            e(f"ds_write_b32 v{FW}, v{TM2} offset:{F_DONE1}")
        if n == 26:
            e(f"s_cmp_lg_u32 s{W}, 0")
            e("s_cbranch_scc1 G1_nosig")
            st0 = e.snapshot()
            signal(e, "G1_sig", FQ, PL + 2, 0)
            st1 = e.snapshot()
            st1.lgkm = st0.lgkm
            e.merge([st0, st1])
            e.label("G1_nosig")
    if OPT["trace"]:
        e("s_lshl_b32 s58, s2, 2")
        e(f"s_add_u32 s58, s58, s{W}")
        e("s_lshl_b32 s58, s58, 9")
        e(f"s_add_u32 s58, s58, {STAMP_OFF + (2 << 20)}")
        e(f"v_lshl_add_u32 v{T0}, v{LANE}, 2, s58")
        e(f"global_store_dword v{T0}, v254, s[36:37]")
        e(f"global_store_dword v{T0}, v255, s[36:37] offset:256")
        e("s_nop 4")
        sys.stderr.write("trace points: %d\n" % trace_n[0])
    c_setup()
    gflag_issue(0)
    emit(dma_a(0) + dma_a(1))
    pv8_reads(14)
    pv8_math(14)
    qk8_reads(15)
    qk8_math(15)
    gflag_check(0)
    emit(b_prep(0) + [b_load(0, mt) for mt in range(9)])
    pv8_reads(15)
    pv8_math(15)
    merge1(1)
    emit(b_prep(1) + [b_load(1, mt) for mt in range(9)])
    merge2(1)
    blocking_poll4(e, "G1_l0", FQ, F_GB, PL, 2)
    stamp(e, 3)
    e(f"s_add_u32 s44, s41, {AR1}")
    wo_read_addr(e, AA, LANE, T0, "s44")
    e(f"v_mov_b32 v{PH}, v{FW}")
    e("s_xor_b32 s44, s2, 1")
    e(f"s_mul_i32 s44, s44, 36864")
    e(f"s_add_u32 s44, s44, {MBOX}")
    e(f"s_add_u32 s{SO}, s36, s44")
    e(f"s_addc_u32 s{SO + 1}, s37, 0")
    e(f"s_mov_b32 s{SO + 2}, 36864")
    e(f"s_mov_b32 s{SO + 3}, 0x20000")

    def w_landed(pos):
        k = e.vm_needed_for_tags(lambda t: t[0] == "w" and t[1] <= pos)
        if k is not None:
            e.wait(vm=k)

    w_landed(0)
    emit(a_reads(0))
    e(f"s_setprio {OPT['oprio'].split(',')[0]}")
    LAST = NPOS - 1
    held = []
    RA = 4 if OPT["aspread"] else 2

    def partner_loads():
        e.raw("    s_mov_b32 s55, 4096\n    s_mov_b32 s51, 1")
        for k in range(5):
            e.raw(f"    buffer_load_dwordx4 {vr(FB((LAST & 1) ^ 1, k))}, v{VB}, {sr(SO)}, {'s55' if k == 4 else 0} offen offset:{1024 * (k % 4)} sc1")
    for pos in range(NPOS):
        p = pos & 1
        ot = [int(x) for x in OPT["otrace"].split(",") if x]
        if pos in ot:
            stamp(e, 1 + ot.index(pos))
        if pos < 19 or pos == LAST:
            pt(e, pos == 0)
        e.wait(lgkm=2 if 1 <= pos <= NM1 else 0)
        dm, cur = [], []
        for it in (dma_a(pos + 2) if pos + 2 < NPOS else []):
            cur.append(it)
            if isinstance(it, tuple):
                dm.append(cur)
                cur = []
        if not OPT["aspread"] or pos == 5:
            for d in dm:
                emit(d)
            dm = []
        if pos == 1:
            k = e.vm_needed_for_tags(lambda t: t[0] == "st")
            if k is not None:
                e.wait(vm=k)
            e(f"v_mov_b32 v{PG}, 2")
            e(f"ds_write_b32 v{PH}, v{PG} offset:{F_DONE1}")
        if pos == 2:
            e(f"s_cmp_lg_u32 s{W}, 0")
            e("s_cbranch_scc1 G1_nosig2")
            st0 = e.snapshot()
            t0_, t1_ = FA(p ^ 1, 0), FA(p ^ 1, 0) + 2
            e(f"v_mbcnt_lo_u32_b32 v{t0_}, -1, 0")
            e(f"v_and_b32 v{t0_}, 3, v{t0_}")
            e(f"v_lshlrev_b32 v{t0_}, 2, v{t0_}")
            e(f"v_add_u32 v{t0_}, {FLG}, v{t0_}")
            signal(e, "G1_sig2", t0_, t1_, 1)
            e("s_nop 4")
            st1 = e.snapshot()
            st1.lgkm = st0.lgkm
            e.merge([st0, st1])
            e.label("G1_nosig2")
        t0_ = FA(p ^ 1, 0)

        def bflag_addr():
            e(f"v_mbcnt_lo_u32_b32 v{t0_}, -1, 0")
            e(f"v_and_b32 v{t0_}, 15, v{t0_}")
            e("s_lshl_b32 s44, s34, 12")
            e(f"s_add_u32 s44, s44, {FLAGS}")
            e(f"v_lshl_add_u32 v{t0_ + 1}, v{t0_}, 7, s44")
        if pos == 5:
            bflag_addr()
            e(f"s_lshl_b32 s44, s{W}, 6")
            e(f"s_add_u32 m0, s44, {PAREA}")
            e("s_mov_b64 exec, 0xffff")
            e(f"global_load_lds_dword v{t0_ + 1}, s[36:37] sc1", ("pf", 0))
            e("s_mov_b64 exec, -1")
        if pos == 6:
            bflag_addr()
            e(f"s_lshl_b32 s44, s{W}, 6")
            e(f"s_add_u32 s44, s44, {PAREA}")
            e(f"v_lshl_add_u32 v{t0_}, v{t0_}, 2, s44")
            k = e.vm_needed_for_tags(lambda t: t[0] == "pf")
            if k is not None:
                e.wait(vm=k)
            e(f"ds_read_b32 v{PG}, v{t0_}")
            e(f"v_cmp_eq_u32 vcc, 0, v{PG}")
            e("s_nop 1")
            e("s_cbranch_vccnz G1_gwb")
            snap = e.snapshot()
            e.label("G1_gwb_ret")

            def slowb(snap=snap, t0_=t0_):
                e.restore(snap)
                e.label("G1_gwb")
                flag_wait(e, "G1_gwb_p", t0_ + 1, PG, 8)
                e("s_branch G1_gwb_ret")
            late.append(slowb)
        if pos + 2 < NPOS:
            emit(b_prep(pos + 2))
        if pos == LAST:
            e.wait(vm=0)
            e(f"ds_read_b32 v{PG}, v{PH} offset:{F_XRDY}")
            e("s_mov_b32 s51, 0")
            e(f"v_cmp_eq_u32 vcc, 0, v{PG}")
            e("s_nop 1")
            e("s_cbranch_vccnz G1_xlate")
            partner_loads()
            e.label("G1_xlate")
            e(f"v_mbcnt_lo_u32_b32 v{PG}, -1, 0")
            e(f"v_mbcnt_hi_u32_b32 v{PG}, -1, v{PG}")
            e(f"v_and_b32 v{t0_}, 3, v{PG}")
            e(f"v_lshlrev_b32 v{t0_}, 2, v{t0_}")
            e(f"v_add_u32 v{t0_}, {FLG}, v{t0_}")
            blocking_poll4(e, "G1_scr", t0_, F_GB, t0_ + 1, 5)
            red_write_addr(e, AA, PG)
        rd = a_reads(pos + 1) if pos < LAST else []
        fwd = pos < NM1
        chk = word_check(e, late, f"G1_fr{pos + 1}", PH, F_FREEB, PG, pos) if 2 <= pos + 1 < NM1 else []
        for mt in range(9):
            m = [f"{MF} {vr(ACC(mt, t))}, {vr(FA(p, t))}, {vr(FB(p, mt))}, {'0' if pos == 0 else vr(ACC(mt, t))}" for t in range(4)]
            if mt == RA and rd:
                w_landed(pos + 1)
            fl = [f"ds_write_b128 v{VB}, {vr(FB(p, mt))} offset:{36864 * p + 1024 * mt}"] if fwd else []
            if RA <= mt < RA + 4:
                fl += rd[2 * (mt - RA): 2 * (mt - RA + 1)]
            if mt == 6:
                fl += chk[:1]
            if mt == 7 and chk:
                fl += [chk[1]]
            if mt == 8 and fwd:
                fl = [f"v_mov_b32 v{PG}, {pos + 1}"] + fl + [f"ds_write_b32 v{PH}, v{PG} offset:{F_FULLB}"] + chk[2:]
            if pos == LAST and mt >= 2:
                fl = [f"ds_write_b128 v{AA(c)}, {vr(ACC(mt - 2, c))} offset:{1024 * (mt - 2)}" for c in range(1, 4)]
            if dm and mt % 2 == 0:
                fl = fl + [lambda d=dm.pop(0): emit(d)]
            emit(interleave(m, fl))
            if held:
                e(held.pop())
            if pos + 2 < NPOS:
                if fwd:
                    held.append(b_load(pos + 2, mt))
                else:
                    e(b_load(pos + 2, mt))
    stamp(e, 4)
    for mt in (7, 8):
        for c in range(1, 4):
            e(f"ds_write_b128 v{AA(c)}, {vr(ACC(mt, c))} offset:{1024 * mt}")
    LN = PG
    XP = lambda mt: FB((LAST & 1) ^ 1, mt // 2) + 2 * (mt & 1)
    X0, X1, X2, X3 = 216, 217, 218, 219
    OB = 220
    e(f"v_lshrrev_b32 v{X0}, 5, v{LN}")
    e(f"s_lshl_b32 s44, s{W}, 1")
    e(f"v_add_u32 v{X0}, s44, v{X0}")
    e(f"v_and_b32 v{X1}, 7, v{LN}")
    e(f"v_xor_b32 v{X0}, v{X0}, v{X1}")
    e(f"v_lshlrev_b32 v{X0}, 4, v{X0}")
    e(f"v_bfe_u32 v{X1}, v{LN}, 4, 1")
    e(f"v_lshl_add_u32 v{X0}, v{X1}, 3, v{X0}")
    e(f"v_and_b32 v{X1}, 15, v{LN}")
    e(f"v_lshl_add_u32 v{X0}, v{X1}, 7, v{X0}")
    e(f"v_add_u32 v{X0}, {IMG}, v{X0}")
    e(f"v_lshrrev_b32 v{X1}, 3, v{LN}")
    e(f"v_and_b32 v{X2}, 7, v{LN}")
    e(f"v_xor_b32 v{X2}, v{X2}, v{X1}")
    e(f"v_lshlrev_b32 v{X2}, 4, v{X2}")
    e(f"v_lshl_add_u32 v{X2}, v{X1}, 11, v{X2}")
    e(f"s_add_u32 s44, s41, {IMG}")
    e(f"v_lshl_add_u32 v{X3}, v{LN}, 4, s44")
    e(f"s_lshl_b32 s45, s{W}, 10")
    e(f"s_add_u32 s45, s45, {IMG}")
    e(f"v_lshl_add_u32 v{X1}, v{LN}, 4, s45")
    e.wait(lgkm=0)
    e("s_barrier")
    e("s_cmp_lg_u32 s51, 0")
    e("s_cbranch_scc1 G1_xdone")
    partner_loads()
    e.label("G1_xdone")
    for mt in range(9):
        for c in range(1, 4):
            e(f"ds_read_b128 {vr(ACC(mt, c))}, v{AA(0)} offset:{9216 * (c - 1) + 1024 * mt}")
    for mt in range(9):
        a = ACC(mt, 0)
        for r in range(4):
            e(f"v_add_f32 v{a + r}, v{a + r}, v{ACC(mt, 1) + r}")
            e(f"v_add_f32 v{ACC(mt, 2) + r}, v{ACC(mt, 2) + r}, v{ACC(mt, 3) + r}")
        for r in range(4):
            e(f"v_add_f32 v{a + r}, v{a + r}, v{ACC(mt, 2) + r}")
    e.wait(vm=0)
    for mt in range(9):
        a = ACC(mt, 0)
        t = ACC(mt, 1)
        for h in range(2):
            e(f"v_lshlrev_b32 v{t + 2 * h}, 16, v{XP(mt) + h}")
            e(f"v_and_b32 v{t + 2 * h + 1}, 0xffff0000, v{XP(mt) + h}")
        for r in range(4):
            e(f"v_add_f32 v{a + r}, v{a + r}, v{t + r}")
        e(f"v_cvt_pk_bf16_f32 v{a}, v{a}, v{a + 1}")
        e(f"v_cvt_pk_bf16_f32 v{a + 1}, v{a + 2}, v{a + 3}")
        e(f"ds_write_b64 v{X0}, {vr(a, 2)} offset:{2048 * mt}")
    e.wait(lgkm=0)
    e("s_barrier")
    for i in range(4):
        e(f"ds_read_b128 {vr(OB + 4 * i)}, v{X3} offset:{1024 * i}")
    e(f"ds_read_b128 {vr(OB + 16)}, v{X1} offset:16384")
    e(f"s_lshl_b32 s44, s{W}, 16")
    outf = OPT["outflag"]
    for i in range(4):
        e(f"buffer_store_dwordx4 {vr(OB + 4 * i)}, v{X2}, {sr(CD)}, s44 offen {outf}")
        e(f"s_add_u32 s44, s44, 16384")
    e(f"s_cmp_ge_u32 s{W}, 2")
    e("s_cbranch_scc1 G1_done")
    e(f"s_lshl_b32 s44, s{W}, 14")
    e(f"s_add_u32 s44, s44, {128 * 2048}")
    e(f"buffer_store_dwordx4 {vr(OB + 16)}, v{X2}, {sr(CD)}, s44 offen {outf}")
    e.label("G1_done")
    pt(e)
    pt_store(e, 1)
    if OPT["stamp"] or OPT["dbg"]:
        e.wait(vm=0, lgkm=0)
    stamp(e, 5)
    stamp_store(e, 6, 36, STAMP_OFF, ["s_lshl_b32 s58, s2, 2", f"s_add_u32 s58, s58, s{W}", "s_add_u32 s58, s58, 1024"])
    e("s_endpgm")
    for f in late:
        f()
    e.restore(joined(e, slow_states))
    e.st.lgkm = []
    e.label("G1_slow")
    lane_reduce(e, "v_max_f32", TM, TM2)
    e(f"v_max_f32 v{TM}, 0, v{TM}")
    for r in range(4):
        e(f"v_sub_f32 v{NEGM + r}, v{NEGM + r}, v{TM}")
        e(f"v_sub_f32 v{S8 + r}, v{S8 + r}, v{TM}")
    e(f"v_exp_f32 v{TM}, -v{TM}")
    e(f"v_mul_f32 v{L8}, v{L8}, v{TM}")
    for r in range(32):
        e(f"v_mul_f32 v{O8(0) + r}, v{O8(0) + r}, v{TM}")
    e("s_nop 1")
    e("s_setpc_b64 s[38:39]")


def engine(e):
    stamp(e, 0)
    e("s_load_dwordx4 s[28:31], s[0:1], 0")
    e("s_load_dwordx4 s[32:35], s[0:1], 16")
    e("s_load_dwordx2 s[36:37], s[0:1], 56")
    e("v_lshrrev_b32 v1, 6, v0")
    e("s_and_b32 s25, s2, 1")
    e("v_readfirstlane_b32 s3, v1")
    e("s_lshl_b32 s25, s25, 3")
    e("s_bfe_u32 s26, s2, 0x30003")
    e("s_add_u32 s25, s25, s26")
    e("s_bfe_u32 s26, s2, 0x20001")
    e("s_lshl_b32 s26, s26, 2")
    e("s_lshr_b32 s27, s2, 6")
    e("s_add_u32 s26, s26, s27")
    e("s_lshl_b32 s26, s26, 1")
    e("s_lshl_b32 s27, s25, 5")
    e("s_add_u32 s27, s27, s26")
    e(f"s_and_b32 s{W}, s3, 3")
    e("s_cmp_lt_u32 s3, 4")
    e("s_cbranch_scc1 G0_start")
    st = e.snapshot()
    loader_group(e)
    e.restore(st)
    e.label("G0_start")
    compute_group(e)


def kd(name):
    return f""".section .rodata,"a"
.p2align 6
.amdhsa_kernel {name}
  .amdhsa_next_free_vgpr 256
  .amdhsa_next_free_sgpr 102
  .amdhsa_accum_offset 256
  .amdhsa_group_segment_fixed_size 0
  .amdhsa_kernarg_size 64
  .amdhsa_user_sgpr_count 2
  .amdhsa_user_sgpr_kernarg_segment_ptr 1
  .amdhsa_system_sgpr_workgroup_id_x 1
.end_amdhsa_kernel
"""


def main():
    out = HEADER
    out += "; @launch grid=(256,1,1) block=(512,1,1) lds=163840\n"
    out += '.amdgcn_target "amdgcn-amd-amdhsa--gfx950"\n.text\n'
    e = Emitter()
    e.raw(f".globl {KNAME}\n.p2align 8\n.type {KNAME},@function\n{KNAME}:")
    e("s_cmp_lt_u32 s2, 256")
    e("s_cbranch_scc1 P_go")
    e("s_endpgm")
    e.label("P_go")
    engine(e)
    e.raw(".p2align 8\n.type cnt_table,@object\ncnt_table:")
    for k in range(96):
        e.raw(f".long {k}")
    e.raw(".size cnt_table, 384")
    e.label("P_end")
    e.raw(f".set CODE_KB_P, (P_end - {KNAME}) / 1024 - 1")
    sys.stderr.write("engine counts: %s\n" % e.count)
    hold = {}
    import re as _re
    for ln in e.lines:
        mm = _re.search(r"; f(\d+)$", ln)
        if not mm:
            continue
        ins = Inst(ln.strip())
        if ins.cls == "ldsr":
            for r in ins.defs:
                hold[r] = mm.group(1)
        else:
            for r in regs_of(ins.ops[1]):
                assert hold.get(r) == mm.group(1), ln
    out += _re.sub(r" ; f\d+\n", "\n", e.text())
    out += kd(KNAME)
    open(sys.argv[1], "w").write(out)


main()
```

```python
import sys, struct, math
from asmlib import *

OPT = dict(stamp=False, kvflag="nt", xflag="", wflag="", oflag="sc1", ostore="sc1",
           lead="4", qlead="4", prewarm=False, pf0="3", pfd="6", pfstag="0,1,3,4", npf="4", abl_noload=False, abl_not8=False, gap="4", dbg=False, g0prio="2", g1prio="0", pwround="26", outflag="sc0 sc1", trace=False, sleep="2", abl="", agap=False, trace0=False, otrace="", qnop="0", msum=True, mprio="p", n1="4", oprio="1,0", ptrace=False, xprio="3", rprio="0", aspread=False, g0chk="3", xoff="8,2", first0=True, ooff=False, dit="10", dn="24", sn="26", mall="", mall0="6", malld="6")
for a in sys.argv[2:]:
    k, v = a.split("=", 1)
    assert k in OPT, k
    OPT[k] = {"True": True, "False": False}.get(v, v)

HEADER = """; Kernarg layout for this problem (64 bytes, ptrs only, base s[0:1]):
"""


def f32bits(x):
    return struct.unpack("<I", struct.pack("<f", x))[0]


MF = "v_mfma_f32_16x16x32_bf16"
STAMP_OFF = 64 << 20
SPIN_MAX = 1 << 18


def stamp(e, idx):
    if OPT["stamp"] or OPT["dbg"]:
        e(f"s_memrealtime s[{60 + 2 * idx}:{61 + 2 * idx}]")
        e(f"s_memtime s[{76 + 2 * idx}:{77 + 2 * idx}]")
        if idx == 0:
            e("s_mov_b32 s92, 0")
        if idx == 2:
            e("s_mov_b32 s93, s92")
            e("s_mov_b32 s92, 0")


PT = [0]


def pt(e, reset=False):
    if reset:
        PT[0] = 0
    if OPT["ptrace"]:
        e(f"s_memtime s[{58 + 2 + 2 * PT[0]}:{58 + 3 + 2 * PT[0]}]")
        PT[0] += 1
        assert PT[0] <= 21


def pt_store(e, grp):
    if not OPT["ptrace"]:
        return
    e.wait(lgkm=0)
    for k in range(PT[0]):
        e(f"v_writelane_b32 v3, s{60 + 2 * k}, {k}")
    e("s_lshl_b32 s58, s2, 2")
    e(f"s_add_u32 s58, s58, s24")
    e("s_lshl_b32 s58, s58, 9")
    e(f"s_add_u32 s58, s58, {STAMP_OFF + (2 << 20) + 256 * grp}")
    e(f"v_mbcnt_lo_u32_b32 v2, -1, 0")
    e(f"v_mbcnt_hi_u32_b32 v2, -1, v2")
    e(f"v_lshl_add_u32 v2, v2, 2, s58")
    e(f"global_store_dword v2, v3, s[36:37]")


def stamp_store(e, n, ws_lo, base_off, rec):
    if OPT["dbg"]:
        lab = "DBG_skip%d" % len(rec)
        off = 0 if len(rec) == 2 else 64
        e("s_or_b32 s58, s2, s24")
        e("s_cmp_lg_u32 s58, 0")
        e(f"s_cbranch_scc1 {lab}")
        e(f"s_add_u32 s56, s{ws_lo}, {STAMP_OFF}")
        e(f"s_addc_u32 s57, s{ws_lo + 1}, 0")
        e.wait(lgkm=0)
        e("v_mov_b32 v0, 0")
        for i in range(6):
            e(f"v_mov_b32 v1, s{60 + 2 * i}")
            e(f"global_store_dword v0, v1, s[56:57] offset:{off + 4 * i}")
        e.label(lab)
    if not OPT["stamp"]:
        return
    e.wait(lgkm=0)
    e("v_mov_b32 v0, 0")
    for r in rec:
        e(r)
    e(f"s_lshl_b32 s58, s58, 6")
    e(f"s_add_u32 s58, s58, {base_off}")
    e(f"s_add_u32 s56, s{ws_lo}, s58")
    e(f"s_addc_u32 s57, s{ws_lo + 1}, 0")
    for i in range(n):
        e(f"v_mov_b32 v1, s{60 + 2 * i}")
        e(f"global_store_dword v0, v1, s[56:57] offset:{4 * i}")
    for i in range(n):
        e(f"v_mov_b32 v1, s{76 + 2 * i}")
        e(f"global_store_dword v0, v1, s[56:57] offset:{32 + 4 * i}")
    e(f"v_mov_b32 v1, s93")
    e(f"global_store_dword v0, v1, s[56:57] offset:24")
    e(f"v_mov_b32 v1, s92")
    e(f"global_store_dword v0, v1, s[56:57] offset:28")


def mk_emit(e):
    def emit(items):
        for it in items:
            if isinstance(it, tuple):
                e(it[0], it[1])
            elif callable(it):
                it()
            else:
                e(it)
    return emit


XR = 98304
WQREG = lambda st: 16384 * [(0, 1), (3, 2), (4, 5)][((st >> 1) - 13) % 3][st & 1]
KS, VS = 0, 49152
QIA, QIB = 89856, 126720
MRG = 98304
FLG = 163584
F_FULL, F_FREE, F_GB, F_GB1, F_DONE0, F_DONE1, F_FULLB, F_FREEB, F_XRDY = 0, 16, 32, 48, 64, 80, 96, 112, 128
AR0, AR1, IMG = 98048, 130816, 110592
MBOX = 32 << 20
FLAGS = 48 << 20
PAREA = 73728
N1 = int(OPT["n1"])
NM1 = 8 + N1
NPOS = NM1 + 16 - 2 * N1
KNAME = "standalone__mha_block_cached__near_ridge_kernel"
W = 24
MF16 = "v_mfma_f32_16x16x16_bf16"
THR = 10.0


def blocking_poll4(e, name, addr, off, tmp, need, sleep=1):
    e(f"s_mov_b32 s59, {SPIN_MAX}")
    e.label(name)
    e(f"ds_read_b32 v{tmp}, v{addr} offset:{off}")
    e.wait(lgkm=0)
    e(f"v_cmp_lt_u32 s[56:57], v{tmp}, {need}")
    e("s_cmp_eq_u64 s[56:57], 0")
    e(f"s_cbranch_scc1 {name}_ok")
    e(f"s_sleep {sleep}")
    e("s_sub_u32 s59, s59, 1")
    e("s_cmp_lg_u32 s59, 0")
    e(f"s_cbranch_scc1 {name}")
    e.label(name + "_ok")
    if OPT["stamp"]:
        e(f"s_sub_u32 s59, {SPIN_MAX + 1}, s59")
        e("s_add_u32 s92, s92, s59")
        e("s_add_u32 s92, s92, 0x10000")


def kv_addr_setup(e, LANE, AK, AV, T, xor_sgpr, add_k, add_v):
    T0, T1, T2, T3 = T
    q, g = T0, T1
    e(f"v_and_b32 v{q}, 15, v{LANE}")
    e(f"v_lshrrev_b32 v{g}, 4, v{LANE}")
    e(f"v_and_b32 v{T2}, 7, v{q}")
    e(f"v_lshlrev_b32 v{T2}, 1, v{T2}")
    e(f"v_xor_b32 v{T2}, v{T2}, v{g}")
    e(f"v_lshlrev_b32 v{T2}, 4, v{T2}")
    e(f"v_lshl_add_u32 v{AK(0)}, v{q}, 8, v{T2}")
    if add_k is not None:
        e(f"v_add_u32 v{AK(0)}, {add_k}, v{AK(0)}")
    for u in range(1, 4):
        e(f"v_xor_b32 v{AK(u)}, {64 * u}, v{AK(0)}")
    e(f"v_and_b32 v{T3}, 3, v{LANE}")
    e(f"v_lshlrev_b32 v{T3}, 3, v{T3}")
    e(f"v_lshrrev_b32 v{T2}, 2, v{LANE}")
    e(f"v_lshl_add_u32 v{AV(0)}, v{T2}, 8, v{T3}")
    e(f"v_and_b32 v{T2}, 7, v{T2}")
    e(f"v_lshl_add_u32 v{AV(0)}, v{T2}, 5, v{AV(0)}")
    if xor_sgpr is not None:
        e(f"v_xor_b32 v{AV(0)}, {xor_sgpr}, v{AV(0)}")
    e(f"v_add_u32 v{AV(0)}, {add_v}, v{AV(0)}")
    for Tt in range(1, 8):
        e(f"v_xor_b32 v{AV(Tt)}, {32 * Tt}, v{AV(0)}")


def lane_reduce(e, op, x, t):
    e(f"v_mov_b32 v{t}, v{x}")
    e(f"v_permlane32_swap_b32 v{t}, v{x}")
    e(f"{op} v{x}, v{x}, v{t}")
    e(f"v_mov_b32 v{t}, v{x}")
    e(f"v_permlane16_swap_b32 v{t}, v{x}")
    e(f"{op} v{x}, v{x}, v{t}")


def o_srd(e, SO):
    e("s_mul_i32 s44, s27, 36864")
    e(f"s_add_u32 s{SO}, s36, s44")
    e(f"s_addc_u32 s{SO + 1}, s37, 0")
    e(f"s_mov_b32 s{SO + 2}, {2 * 36864}")
    e(f"s_mov_b32 s{SO + 3}, 0x20000")


def signal(e, name, FQ, PL, rnd):
    blocking_poll4(e, name + "a", FQ, F_DONE0, PL, rnd + 1)
    blocking_poll4(e, name + "b", FQ, F_DONE1, PL, rnd + 1)
    if rnd == 1:
        e("s_lshl_b32 s58, s27, 6")
        e("s_lshl_b32 s59, s25, 11")
        e("s_add_u32 s58, s58, s59")
        e(f"s_add_u32 s58, s58, {FLAGS}")
        e(f"v_mov_b32 v{PL}, s58")
        e(f"v_mov_b32 v{PL + 1}, 1")
        e("s_mov_b64 exec, 1")
        e.raw(f"    global_store_dword v{PL}, v{PL + 1}, s[36:37] sc1")
        e("s_mov_b64 exec, -1")
        return
    e("s_load_dwordx2 s[56:57], s[0:1], 48")
    e("s_and_b32 s58, s25, 1")
    e("s_lshl_b32 s58, s58, 6")
    e("s_add_u32 s58, s58, s25")
    e("s_and_b32 s58, s58, 0xfe")
    e("s_lshl_b32 s58, s58, 1")
    e(f"v_mov_b32 v{PL}, s58")
    e(f"v_mov_b32 v{PL + 1}, 1")
    e.wait(lgkm=0)
    e("s_mov_b64 exec, 1")
    e.raw(f"    global_atomic_add v{PL}, v{PL + 1}, s[56:57] sc1")
    e("s_mov_b64 exec, -1")


def out_tile_ids(e, send):
    e("s_bfe_u32 s34, s2, 0x20001")
    e("s_lshl_b32 s34, s34, 2")
    e("s_bfe_u32 s35, s2, 0x20003")
    e("s_add_u32 s34, s34, s35")
    e("s_bfe_u32 s35, s2, 0x30005")
    e("s_add_u32 s53, s34, s35")
    e("s_and_b32 s53, s53, 3")
    e("s_and_b32 s52, s2, 1")
    e("s_lshl_b32 s35, s35, 1")
    e("s_add_u32 s35, s35, s52")
    if send:
        e("s_xor_b32 s35, s35, 1")
    e("s_lshl_b32 s52, s52, 1")
    e("s_and_b32 s40, s34, 1")
    e("s_lshl_b32 s40, s40, 6")
    e("s_add_u32 s40, s40, s34")
    e("s_and_b32 s40, s40, 0xfe")
    e("s_lshl_b32 s40, s40, 1")


def wo_voffset(e, VA, LANE, T0):
    e(f"v_lshrrev_b32 v{T0}, 4, v{LANE}")
    e(f"v_lshlrev_b32 v{T0}, 1, v{T0}")
    e(f"v_and_b32 v{VA}, 7, v{LANE}")
    e(f"v_xor_b32 v{VA}, v{VA}, v{T0}")
    e(f"v_lshlrev_b32 v{VA}, 4, v{VA}")
    e(f"v_lshrrev_b32 v{T0}, 3, v{LANE}")
    e(f"v_lshl_add_u32 v{VA}, v{T0}, 11, v{VA}")
    e(f"s_lshl_b32 s44, s{W}, 16")
    e(f"v_add_u32 v{VA}, s44, v{VA}")


def wo_dbg_srds(e, CW, CG):
    e("s_lshl_b32 s44, s35, 7")
    e(f"s_add_u32 s{CW}, s28, s44")
    e(f"s_addc_u32 s{CW + 1}, s29, 0")
    e(f"s_sub_u32 s{CW + 2}, 8388608, s44")
    e(f"s_mov_b32 s{CW + 3}, 0x20000")
    e(f"s_mov_b32 s{CG}, s32")
    e(f"s_mov_b32 s{CG + 1}, s33")
    e(f"s_mov_b32 s{CG + 2}, 256")
    e(f"s_mov_b32 s{CG + 3}, 0x20000")


def head_of(pos, dst):
    if pos < 8:
        P, n, c1, c0, kp = pos, 8, 4, 0, True
    elif pos < NM1:
        P, n, c1, c0, kp = pos - 8, N1, 4, 1, True
    else:
        P, n, c1, c0, kp = pos - NM1, 16 - 2 * N1, 2, 4 * N1 + 1, False
    hd = lambda a: c1 * a + c0
    nl = n - n % 4
    if not int(OPT["lead"]) or P >= nl:
        out = [f"s_mov_b32 s{dst}, {hd(P)}"]
    elif P == 0:
        out = [f"s_mul_i32 s{dst}, s53, {c1}", f"s_add_u32 s{dst}, s{dst}, {c0}"]
    elif P - 1 < nl - 4:
        out = [f"s_cmp_eq_u32 s53, {(P - 1) & 3}", f"s_cselect_b32 s{dst}, {hd(P + 3)}, {hd(P - 1)}"]
    else:
        out = [f"s_cmp_le_u32 s53, {P - 1 - (nl - 4)}", f"s_cselect_b32 s{dst}, {hd(P)}, {hd(P - 1)}"]
    return out + ([f"s_add_u32 s{dst}, s{dst}, s52"] if kp else [])


def wo_read_addr(e, AA, LANE, T0, base_sgpr):
    e(f"v_lshrrev_b32 v{T0}, 2, v{LANE}")
    e(f"v_and_b32 v{AA(1)}, 3, v{LANE}")
    e(f"v_lshlrev_b32 v{AA(1)}, 3, v{AA(1)}")
    e(f"v_lshl_add_u32 v{AA(0)}, v{T0}, 7, v{AA(1)}")
    e(f"v_bfe_u32 v{T0}, v{LANE}, 3, 2")
    e(f"v_xor_b32 v{T0}, s{W}, v{T0}")
    e(f"v_lshl_add_u32 v{AA(0)}, v{T0}, 5, v{AA(0)}")
    e(f"v_add_u32 v{AA(0)}, {base_sgpr}, v{AA(0)}")
    for t in range(1, 4):
        e(f"v_xor_b32 v{AA(t)}, {32 * t}, v{AA(0)}")


def word_check(e, late, nm, addr, off, tmp, need):
    def br():
        e(f"s_cbranch_vccnz {nm}")
        snap = e.snapshot()
        e.label(nm + "_ret")

        def slow():
            e.restore(snap)
            e.label(nm)
            blocking_poll4(e, nm + "_p", addr, off, tmp, need)
            e(f"s_branch {nm}_ret")
        late.append(slow)
    return [f"ds_read_b32 v{tmp}, v{addr} offset:{off}", f"v_cmp_gt_u32 vcc, {need}, v{tmp}", br]


def red_write_addr(e, AA, LN):
    for c in range(1, 4):
        e(f"s_xor_b32 s44, s{W}, {c}")
        e(f"s_mul_i32 s44, s44, 27648")
        e(f"s_add_u32 s44, s44, {9216 * (c - 1)}")
        e(f"v_lshl_add_u32 v{AA(c)}, v{LN}, 4, s44")
    e(f"s_mul_i32 s44, s{W}, 27648")
    e(f"v_lshl_add_u32 v{AA(0)}, v{LN}, 4, s44")


def wo_dma(pos, m0line, VA, CW):
    out = [m0line] + head_of(pos, 46) + ["s_lshl_b32 s46, s46, 18"]
    for i in range(4):
        if i:
            out.append(f"s_add_u32 s46, s46, {16384 - 1024}")
        out.append((f"buffer_load_dwordx4 v{VA}, {sr(CW)}, s46 offen offset:{1024 * i} {OPT['wflag']} lds", ("w", pos)))
    return out


def flag_wait(e, nm, PA, PG, sleep):
    e(f"s_mov_b32 s59, {1 << 16}")
    e.label(nm)
    e(f"global_load_dword v{PG}, v{PA}, s[36:37] sc1")
    e.wait(vm=0)
    e(f"v_cmp_eq_u32 vcc, 0, v{PG}")
    e("s_nop 1")
    e(f"s_cbranch_vccz {nm}_ok")
    e(f"s_sleep {sleep}")
    e("s_sub_u32 s59, s59, 1")
    e("s_cmp_lg_u32 s59, 0")
    e(f"s_cbranch_scc1 {nm}")
    e.label(nm + "_ok")


def joined(e, states):
    st = states[0].copy()
    for s in states[1:]:
        st.hist += [list(h) for h in s.hist]
    return st


def compute_group(e):
    emit = mk_emit(e)
    SO = 20
    O = lambda qt, T: 32 * qt + 4 * T
    Q = lambda qt, u: 64 + 16 * qt + 4 * u
    S = lambda par, kt, qt: 96 + 32 * par + 16 * qt + 4 * kt
    NF = 13
    F = lambda i: 160 + 4 * (i % NF)
    ONES = 212
    LS = lambda qt: 216 + 4 * qt
    NEGM = lambda qt: 224 + 4 * qt
    RL = lambda qt: 232 + qt
    TMP = lambda qt: 234 + qt
    FD = 237
    AK = lambda u: 238 + u
    AV = lambda T: 242 + T
    FA_, FQ, PL = 250, 251, 252
    ACC = lambda t, qt: 16 * qt + 4 * t
    FA = lambda p, t: 144 + 16 * p + 4 * t
    NB = 8
    FB = lambda k: 176 + 4 * (k % NB)
    AA = lambda t: 208 + t
    AH = lambda t: 212 + t
    AB, LANE = 216, 217
    T0, T1, T2, T3 = 218, 219, 220, 221
    late = []

    e(f"s_setprio {OPT['g0prio']}")
    e(f"v_and_b32 v{LANE}, 63, v0")
    e(f"v_mov_b32 v{T0}, 0")
    e(f"v_lshlrev_b32 v{T1}, 2, v{LANE}")
    e(f"v_add_u32 v{T1}, {FLG}, v{T1}")
    e(f"ds_write_b32 v{T1}, v{T0}")
    e(f"s_lshl_b32 s44, s{W}, 2")
    e(f"s_add_u32 s44, s44, {FLG}")
    e(f"v_mov_b32 v{FA_}, s44")
    e(f"v_and_b32 v{FQ}, 0xfffffe0c, v{T1}")
    e(f"v_or_b32 v{FQ}, {FLG & 0x1f0}, v{FQ}")
    e.wait(lgkm=0)
    e("s_barrier")
    o_srd(e, SO)
    kv_addr_setup(e, LANE, AK, AV, (T0, T1, T2, T3), None, None, VS)
    q, g, cq = T0, T1, T3
    e(f"v_lshrrev_b32 v{T2}, 2, v{q}")
    e(f"v_and_b32 v{T2}, 2, v{T2}")
    e(f"v_xor_b32 v{T2}, v{T2}, v{g}")
    e(f"v_lshlrev_b32 v{T2}, 4, v{T2}")
    e(f"v_lshl_add_u32 v{T2}, v{q}, 6, v{T2}")
    e(f"v_add_u32 v{AB}, {XR}, v{T2}")
    rp = T2
    e(f"v_bfe_u32 v{rp}, v{LANE}, 2, 2")
    e(f"v_lshl_add_u32 v{q}, v{g}, 3, v{rp}")
    e(f"v_lshl_add_u32 v{q}, v{q}, 8, v{cq}")
    e(f"v_lshl_add_u32 v{q}, v{rp}, 5, v{q}")
    e(f"v_and_b32 v{g}, 1, v{g}")
    e(f"v_lshl_add_u32 v{q}, v{g}, 7, v{q}")
    e(f"s_and_b32 s48, s{W}, 1")
    e(f"s_lshl_b32 s48, s48, 7")
    e(f"v_xor_b32 v{q}, s48, v{q}")
    e(f"s_lshr_b32 s49, s{W}, 1")
    e(f"s_lshl_b32 s44, s49, 13")
    e(f"v_add_u32 v{AA(0)}, s44, v{q}")
    for t in range(1, 4):
        e(f"v_xor_b32 v{AA(t)}, {32 * t}, v{AA(0)}")
    for t in range(4):
        e(f"v_add_u32 v{AH(t)}, 49152, v{AA(t)}")

    def a_reads(st):
        p, base = st & 1, WQREG(st)
        out = []
        for t in range(4):
            for ee in range(2):
                if base < 65536:
                    out.append(f"ds_read_b64_tr_b16 {vr(FA(p, t) + 2 * ee, 2)}, v{AA(t)} offset:{base + 1024 * ee}")
                else:
                    out.append(f"ds_read_b64_tr_b16 {vr(FA(p, t) + 2 * ee, 2)}, v{AH(t)} offset:{base - 49152 + 1024 * ee}")
        return out

    def b_read(k):
        st, qt = k // 9, k % 9
        return f"ds_read_b128 {vr(FB(k))}, v{AB} offset:{18432 * ((st >> 1) % 3) + 9216 * (st & 1) + 1024 * qt}"

    def check_items(nm, need, sink, off=F_FULL, pre=None):
        def br():
            e("s_cmp_eq_u64 s[56:57], 0")
            e(f"s_cbranch_scc0 {nm}")
            snap = e.snapshot()
            e.label(nm + "_ret")

            def slow():
                e.restore(snap)
                e.label(nm)
                if pre:
                    e(pre)
                blocking_poll4(e, nm + "_p", FQ, off, PL, need)
                e(f"s_branch {nm}_ret")
            sink.append(slow)
        return [f"ds_read_b32 v{PL}, v{FQ} offset:{off}", f"v_cmp_lt_u32 s[56:57], v{PL}, {need}", br]

    DB = 6
    blocking_poll4(e, "G0_first", FQ, F_FULL, PL, 1)
    stamp(e, 1)
    emit(a_reads(0) + [b_read(k) for k in range(DB)])
    e(f"s_mov_b32 s50, {f32bits(math.log2(math.e) / math.sqrt(128.0)):#x}")
    QW = 222
    e(f"v_and_b32 v{T1}, 15, v{LANE}")
    e(f"v_lshlrev_b32 v{QW}, 4, v{T1}")
    e(f"v_lshrrev_b32 v{T1}, 5, v{LANE}")
    e(f"v_lshl_add_u32 v{QW}, v{T1}, 8, v{QW}")
    e(f"v_bfe_u32 v{T1}, v{LANE}, 4, 1")
    e(f"v_lshl_add_u32 v{QW}, v{T1}, 3, v{QW}")
    e(f"s_mul_i32 s44, s49, {QIB - QIA}")
    e(f"s_lshl_b32 s45, s48, 4")
    e(f"s_add_u32 s44, s44, s45")
    e(f"s_add_u32 s44, s44, {QIA}")
    e(f"v_add_u32 v{QW}, s44, v{QW}")

    def qconv(qt):
        out = []
        for t in range(4):
            a = ACC(t, qt)
            out += [f"v_mul_f32 v{a + r}, s50, v{a + r}" for r in range(4)]
            out += [f"v_cvt_pk_bf16_f32 v{a}, v{a}, v{a + 1}", f"v_cvt_pk_bf16_f32 v{a + 1}, v{a + 2}, v{a + 3}"]
        return out

    conv = []
    for st in range(32):
        p = st & 1
        ar = a_reads(st + 1) if st < 31 else []
        chk = check_items(f"G0_qs{st + 1}", st + 2, late) if st < 31 else check_items("G0_qfree", 32, late, F_FREE)
        for qt in range(9):
            k = 9 * st + qt
            m = []
            for t in range(4):
                c = "0" if st == 0 else vr(ACC(t, qt))
                m.append(f"{MF} {vr(ACC(t, qt))}, {vr(FA(p, t))}, {vr(FB(k))}, {c}")
            fill = []
            nk = k + DB
            c0 = 0 if st < 31 else 5
            if qt == c0:
                fill.append(chk[0])
            if qt == c0 + 3:
                fill.append(chk[2])
            if nk < 288:
                fill.append(b_read(nk))
            if qt == 1 and st & 1:
                fill.append(f"v_mov_b32 v{FD}, {st + 1}")
            if qt == 2 and st & 1:
                fill.append(f"ds_write_b32 v{FA_}, v{FD} offset:{F_FREE}")
            if qt == c0 + 2:
                fill.append(chk[1])
            if 3 <= qt < 7:
                fill += ar[2 * (qt - 3): 2 * (qt - 3) + 2]
            if st == 31 and qt >= 2:
                conv += qconv(qt - 2)
                fill += conv[:10]
                del conv[:10]
            emit(weave(m, [x for x in fill if kind_of(x) == "v"], [x for x in fill if kind_of(x) == "d"],
                       at={0: [x for x in fill if kind_of(x) == "s"]}))
            if int(OPT["qnop"]):
                e(f"s_nop {OPT['qnop']}")
    stamp(e, 2)
    conv += qconv(7) + qconv(8)
    done = 9 - (len(conv) + 23) // 24
    wr = lambda qt: [f"ds_write_b64 v{QW}, {vr(ACC(t, qt), 2)} offset:{4096 * qt + 512 * t}" for t in range(4)]
    for qt in range(done):
        emit(wr(qt))
    for qt in range(done, 9):
        n = len(conv) - 24 * (8 - qt)
        emit(conv[:n])
        del conv[:n]
        emit(wr(qt))
    e(f"v_mov_b32 v{FD}, 1")
    e(f"ds_write_b32 v{FA_}, v{FD} offset:{F_GB}")
    blocking_poll4(e, "G0_gb0", FQ, F_GB, PL, 1)

    MS = OPT["msum"]
    QA, SA = 253, 254
    e(f"s_lshl_b32 s44, s{W}, 13")
    e(f"s_add_u32 s44, s44, {QIA}")
    e(f"v_lshl_add_u32 v{QA}, v{LANE}, 4, s44")
    e(f"s_lshl_b32 s44, s{W}, 11")
    e(f"v_lshl_add_u32 v{SA}, v{LANE}, 4, s44")
    q_reads = lambda hd: [f"ds_read_b128 {vr(Q(qt, u))}, v{QA} offset:{(QIB - QIA) * hd + 4096 * qt + 1024 * u}"
                          for u in range(4) for qt in range(2)]
    emit(q_reads(0))
    e(f"s_mov_b32 s50, {f32bits(THR):#x}")
    e("s_mov_b32 s42, 65")
    for r in range(4):
        e(f"v_mov_b32 v{ONES + r}, 0x3f803f80")
    blocking_poll4(e, "G0_k0", FQ, F_FULL, PL, 34)
    stamp(e, 3)
    L = lambda j, qt: LS(qt) if MS else LS(qt) + j // 8

    def k_read(j, kt, u, f):
        return [f"ds_read_b128 {vr(F(f))}, v{AK(u)} offset:{KS + 16384 * (j % 3) + 4096 * kt} ; f{f}"]

    def v_read(j, s, T, f):
        return [f"ds_read_b64_tr_b16 {vr(F(f) + 2 * ee, 2)}, v{AV(T)} offset:{16384 * (j % 3) + 4096 * (2 * s + ee)} ; f{f}" for ee in range(2)]

    def qk(j, kt, u, f):
        par = j & 1
        c0 = lambda qt: "0" if j % 8 == 0 else vr(NEGM(qt))
        return [f"{MF} {vr(S(par, kt, qt))}, {vr(F(f))}, {vr(Q(qt, u))}, {c0(qt) if u == 0 else vr(S(par, kt, qt))} ; f{f}"
                for qt in range(2)]

    def pv(j, s, T, f):
        c = lambda r: "0" if j % 8 == 0 and s == 0 else vr(r)
        out = [f"{MF} {vr(O(qt, T))}, {vr(F(f))}, {vr(S(j & 1, 2 * s, qt))}, {c(O(qt, T))} ; f{f}" for qt in range(2)]
        if MS and T in (3, 5):
            qt = T // 4
            out.append(f"{MF} {vr(LS(qt))}, {vr(ONES)}, {vr(S(j & 1, 2 * s, qt))}, {c(LS(qt))}")
        return out

    def maxes(j):
        out = []
        for kt in range(4):
            for h in range(2):
                for qt in range(2):
                    s = S(j & 1, kt, qt) + 2 * h
                    if kt == 0 and h == 0:
                        out.append(f"v_max_f32 v{TMP(qt)}, v{s}, v{s + 1}")
                    else:
                        out.append(f"v_max3_f32 v{TMP(qt)}, v{s}, v{s + 1}, v{TMP(qt)}")
        return out

    def softmax(j, s):
        out = []
        for qt in range(2):
            a, b = S(j & 1, 2 * s, qt), S(j & 1, 2 * s + 1, qt)
            regs = [a, a + 1, a + 2, a + 3, b, b + 1, b + 2, b + 3]
            ex = [f"v_exp_f32 v{r}, v{r}" for r in regs]
            cv = [f"v_cvt_pk_bf16_f32 v{a + k}, v{regs[2 * k]}, v{regs[2 * k + 1]}" for k in range(4)]
            if MS:
                out += [ex[0], ex[1], ex[2], cv[0], ex[3], ex[4], cv[1], ex[5], ex[6], cv[2], ex[7]]
                out += [cv[3]] if qt else []
                if qt:
                    out.insert(12, last_cv)
                last_cv = cv[3]
                continue
            l = L(j, qt)
            ad = [f"v_add_f32 v{l}, v{l}, v{r}" for r in regs]
            if j % 8 == 0 and s == 0:
                ad[0] = f"v_mov_b32 v{l}, v{regs[0]}"
            out += [ex[0], ex[1], ex[2], ad[0], ex[3], ad[1], cv[0], ex[4], ad[2], ex[5], ad[3], cv[1],
                    ex[6], ad[4], ex[7], ad[5], cv[2], ad[6], ad[7], cv[3]]
        return out

    def reduce2(op, xs, ts):
        out = []
        for sw in ("v_permlane32_swap_b32", "v_permlane16_swap_b32"):
            out += [f"v_mov_b32 v{t}, v{x}" for x, t in zip(xs, ts)]
            out += [f"{sw} v{t}, v{x}" for x, t in zip(xs, ts)]
            out += [f"{op} v{x}, v{x}, v{t}" for x, t in zip(xs, ts)]
        return out

    def first(j):
        out = reduce2("v_max_f32", [TMP(0), TMP(1)], [NEGM(0), NEGM(1)])
        for qt in range(2):
            out += [f"v_sub_f32 v{NEGM(qt) + r}, 0, v{TMP(qt)}" for r in range(4)]
        for kt in range(4):
            for qt in range(2):
                out += [f"v_sub_f32 v{S(j & 1, kt, qt) + r}, v{S(j & 1, kt, qt) + r}, v{TMP(qt)}" for r in range(4)]
        return out

    def epilogue(hd):
        j = 8 * hd
        out = []
        if not MS:
            out += reduce2("v_add_f32", [L(j, 0), L(j, 1)], [RL(0), RL(1)])
        out += [f"v_rcp_f32 v{RL(qt)}, v{L(j, qt)}" for qt in range(2)]
        for u in range(4):
            for qt in range(2):
                a = O(qt, 2 * u)
                out += [f"v_mul_f32 v{a + r}, v{a + r}, v{RL(qt)}" for r in range(8)]
                out += [f"v_cvt_pk_bf16_f32 v{a + k}, v{a + 2 * k}, v{a + 2 * k + 1}" for k in range(4)]
                out.append(f"s_mov_b32 s45, {36864 * hd + 9216 * u}")
                out.append(f"buffer_store_dwordx4 {vr(a)}, v{SA}, {sr(SO)}, s45 offen offset:{1024 * qt} {OPT['ostore']}")
        return out

    def group_wait(f):
        def w():
            regs = set(f"v{r}" for i in range(4) for r in range(F(f + i), F(f + i) + 4))
            lg = None
            for i, rs in enumerate(e.st.lgkm):
                if rs & regs:
                    lg = len(e.st.lgkm) - 1 - i
            if lg is not None:
                e.wait(lgkm=lg)
        return w

    segs = [("k", 0, 0), ("k", 0, 1)]
    for j in range(16):
        if j < 15:
            segs += [("k", j + 1, 0), ("k", j + 1, 1)]
        segs += [("v", j, 0), ("v", j, 1)]
    sidx = lambda kind, j: (0 if j == 0 else 2 * j - 1) if kind == "k" else 2 * j + 2

    def seg_reads(n):
        kind, j, h = segs[n]
        out = []
        for i in range(8):
            out += k_read(j, 2 * h + i // 4, i % 4, 8 * n + i) if kind == "k" else v_read(j, h, i, 8 * n + i)
        return out

    def split_cost(items, frac):
        tot = sum(cost_of(x) for x in items)
        acc = 0
        for i, x in enumerate(items):
            if acc >= tot * frac:
                return items[:i], items[i:]
            acc += cost_of(x)
        return items, []

    slow_states = {0: [], 1: []}
    emit(seg_reads(0))
    group_wait(0)()
    rel = f"ds_write_b32 v{FA_}, v{FD} offset:{F_FREE}"
    pending_br = None
    for n, (kind, j, h) in enumerate(segs):
        it = j - 1 if kind == "k" else j
        if OPT["trace0"] and it >= 0 and (kind, h) == (("k", 0) if it < 15 else ("v", 0)):
            if it > 0:
                e.raw(f"    v_writelane_b32 v255, s90, {it - 1}")
            e("s_memtime s[90:91]")
        m = []
        gapof = []
        for i in range(8):
            gapof.append(len(m))
            m += qk(j, 2 * h + i // 4, i % 4, 8 * n + i) if kind == "k" else pv(j, h, i, 8 * n + i)
        rd = seg_reads(n + 1) if n + 1 < len(segs) else []
        at = {gapof[4] - 1: [group_wait(8 * n + 4)]}
        if n + 1 < len(segs):
            at[len(m) - 1] = [group_wait(8 * n + 8)]
        valu, pre = [], []
        if it >= 0:
            if kind == "k":
                body = softmax(it, 0)
                a1, rest1 = split_cost(softmax(it, 1), 0.30 if MS else 0.40)
                if it == 8:
                    body = epilogue(0) + body
                    a1, rest1 = [], softmax(it, 1)
                x0, x1 = split_cost(body + a1, 0.56)
                valu = x0 if h == 0 else x1
            elif h == 0:
                if it == 15:
                    pre = softmax(it, 0)
                    rest1 = softmax(it, 1)
                valu = list(rest1)
                if it == 7:
                    valu += maxes(8)
            else:
                if it == 7:
                    valu = first(8)
                elif it < 15:
                    valu = maxes(it + 1) + [f"v_max_f32 v{TMP(2)}, v{TMP(0)}, v{TMP(1)}", f"v_cmp_lt_f32 vcc, s50, v{TMP(2)}"]
                if it == 6:
                    rd = interleave(rd, q_reads(1))
        if h == 0 and n + 2 < len(segs):
            k2, j2, _ = segs[n + 2]
            need = 33 + sidx(k2, j2)
            valu = valu + [f"v_mov_b32 v{FD}, {33 + sidx(kind, j)}"]
            if need > 34:
                chk = check_items(f"G0_x{n}", need if need <= 64 else "s42", late, pre=rel)
                at[gapof[3]] = [chk[0]]
                valu = valu + [chk[1]]
                pending_br = [chk[2], rel]
            else:
                pending_br = [rel]
        elif h == 1 and pending_br:
            at[0] = pending_br
            pending_br = None
        if it == int(OPT["dit"]) and kind == "k" and h == 1:
            at[2] = [f"v_mov_b32 v{TMP(2)}, 1"]
            at[4] = [lambda: e.wait(vm=0), f"ds_write_b32 v{FA_}, v{TMP(2)} offset:{F_DONE0}"]
        emit(pre)
        guard = kind == "v" and h == 1 and it < 15 and it != 7
        emit(weave(m, valu, rd, at=at, hi=len(m) - (2 if guard else 0)))
        if it == -1 and h == 1:
            emit(maxes(0) + first(0))
        if guard:
            nm = f"G0_g{it}"
            e(f"s_cbranch_vccnz {nm}")
            snap = e.snapshot()
            slow_states[(it + 1) & 1].append(snap)
            e.label(nm + "_ret")

            def tramp(nm=nm, snap=snap, it=it):
                e.restore(snap)
                e.label(nm)
                e(f"s_call_b64 s[38:39], G0_slow{(it + 1) & 1}{it // 8 if not MS else 0}")
                e(f"s_branch {nm}_ret")
            late.append(tramp)
        if it == 7 and kind == "v" and h == 1:
            stamp(e, 4)
    pt(e, True)
    e(f"v_mov_b32 v{PL + 1}, 2")
    e(f"ds_write_b32 v{FA_}, v{PL + 1} offset:{F_GB}")
    emit(epilogue(1))
    if OPT["trace0"]:
        e.raw(f"    v_writelane_b32 v255, s90, 15")
        e("s_lshl_b32 s58, s2, 2")
        e(f"s_add_u32 s58, s58, s{W}")
        e("s_lshl_b32 s58, s58, 9")
        e(f"s_add_u32 s58, s58, {STAMP_OFF + (2 << 20)}")
        e(f"v_mbcnt_lo_u32_b32 v66, -1, 0")
        e(f"v_mbcnt_hi_u32_b32 v66, -1, v66")
        e(f"v_lshl_add_u32 v66, v66, 2, s58")
        e(f"global_store_dword v66, v255, s[36:37]")
        e(f"global_store_dword v66, v255, s[36:37] offset:256")
    CW, CG, CM = 8, 16, 12
    ACC = lambda mt, t: 16 * mt + 4 * t
    FB = lambda p, mt: 144 + 36 * p + 4 * mt
    FA = lambda p, t: 216 + 16 * p + 4 * t
    AA = lambda t: 248 + t
    VA, PH, BR, PG = 252, 253, 254, 255
    LN, FQ2 = 64, 65
    e("s_load_dwordx4 s[28:31], s[0:1], 32")
    e("s_load_dwordx2 s[32:33], s[0:1], 48")
    out_tile_ids(e, True)
    e(f"v_mbcnt_lo_u32_b32 v{LN}, -1, 0")
    e(f"v_mbcnt_hi_u32_b32 v{LN}, -1, v{LN}")
    e(f"v_mov_b32 v{FQ2}, v{FQ}")
    e(f"v_mov_b32 v{PH}, v{FA_}")
    wo_voffset(e, VA, LN, 66)
    e(f"s_lshl_b32 s41, s{W}, 12")
    e(f"s_add_u32 s41, s41, {AR0}")
    wo_read_addr(e, AA, LN, 66, "s41")
    e(f"s_mul_i32 s44, s{W}, 9216")
    e(f"v_lshl_add_u32 v{BR}, v{LN}, 4, s44")
    e.wait(lgkm=0)
    wo_dbg_srds(e, CW, CG)
    e(f"s_mul_i32 s44, s2, 36864")
    e(f"s_add_u32 s44, s44, {MBOX}")
    e(f"s_add_u32 s{CM}, s36, s44")
    e(f"s_addc_u32 s{CM + 1}, s37, 0")
    e(f"s_mov_b32 s{CM + 2}, 36864")
    e(f"s_mov_b32 s{CM + 3}, 0x20000")
    blocking_poll4(e, "G0_l0", FQ2, F_GB, PG, 2)
    blocking_poll4(e, "G0_l1", FQ2, F_GB1, PG, 3)
    dma_a = lambda pos: wo_dma(pos, f"s_add_u32 m0, s41, {16384 * (pos & 1)}", VA, CW)
    a_reads = lambda pos: [f"ds_read_b64_tr_b16 {vr(FA(pos & 1, t) + 2 * ee, 2)}, v{AA(t)} offset:{16384 * (pos & 1) + 2048 * ee}"
                           for t in range(4) for ee in range(2)]
    b_reads = lambda pos: [f"ds_read_b128 {vr(FB(pos & 1, mt))}, v{BR} offset:{36864 * (pos & 1) + 1024 * mt}" for mt in range(9)]
    free_b = lambda pos: [f"v_mov_b32 v{PG}, {pos + 1}", f"ds_write_b32 v{PH}, v{PG} offset:{F_FREEB}"]
    pt(e)
    emit(dma_a(0) + dma_a(1))
    e(f"v_mov_b32 v{PG}, 2")
    e.wait(vm=8)
    e(f"ds_write_b32 v{PH}, v{PG} offset:{F_DONE0}")
    stamp(e, 5)
    e(f"s_setprio {OPT['oprio'].split(',')[1]}")
    blocking_poll4(e, "G0_b0", PH, F_FULLB, PG, 1)
    e.wait(vm=4)
    emit(a_reads(0) + b_reads(0) + free_b(0))
    def split_dma(items):
        out, cur = [], []
        for it in items:
            cur.append(it)
            if isinstance(it, tuple):
                out.append(cur)
                cur = []
        return out

    def gbar(k):
        e(f"v_mov_b32 v{PG}, {k}")
        e(f"ds_write_b32 v{PH}, v{PG} offset:{F_GB}")
        blocking_poll4(e, f"G0_gb{k}", FQ2, F_GB, PG, k)

    c0 = int(OPT["g0chk"])
    for pos in range(NM1):
        p = pos & 1
        pt(e)
        e.wait(lgkm=0)
        dm = split_dma(dma_a(pos + 2)) if pos + 2 < NM1 else []
        if not OPT["aspread"]:
            for d in dm:
                emit(d)
            dm = []
        nxt = pos + 1 < NM1
        if not nxt:
            e(f"s_setprio {OPT['xprio']}")
            LN, FQ2 = FA(p ^ 1, 0), FA(p ^ 1, 0) + 1
            e(f"v_mbcnt_lo_u32_b32 v{LN}, -1, 0")
            e(f"v_mbcnt_hi_u32_b32 v{LN}, -1, v{LN}")
            e(f"v_and_b32 v{FQ2}, 3, v{LN}")
            e(f"v_lshlrev_b32 v{FQ2}, 2, v{FQ2}")
            e(f"v_add_u32 v{FQ2}, {FLG}, v{FQ2}")
            red_write_addr(e, AA, LN)
            gbar(3)
        chk = word_check(e, late, f"G0_b{pos + 1}", PH, F_FULLB, PG, pos + 2) if nxt else []
        ar, br = (a_reads(pos + 1), b_reads(pos + 1)) if nxt else ([], [])
        for mt in range(9):
            m = [f"{MF} {vr(ACC(mt, t))}, {vr(FA(p, t))}, {vr(FB(p, mt))}, {'0' if pos == 0 else vr(ACC(mt, t))}" for t in range(4)]
            fl = []
            if nxt:
                a0 = 1 if c0 >= 3 else c0 + 6
                if mt == a0:
                    k = e.vm_needed_for_tags(lambda t: t[0] == "w" and t[1] <= pos + 1)
                    if k is not None:
                        e.wait(vm=k)
                if a0 <= mt < a0 + 2:
                    fl = ar[4 * (mt - a0): 4 * (mt - a0 + 1)]
                if mt == c0:
                    fl = chk[:1]
                if mt == c0 + 1:
                    fl = ["s_nop 0", chk[1], "s_nop 0", chk[2]]
                if c0 + 2 <= mt < c0 + 5:
                    fl = br[3 * (mt - c0 - 2): 3 * (mt - c0 - 1)]
                if mt == c0 + 5:
                    fl = free_b(pos + 1)
            elif mt >= 2:
                fl = [f"ds_write_b128 v{AA(c)}, {vr(ACC(mt - 2, c))} offset:{1024 * (mt - 2)}" for c in range(1, 4)]
            emit(interleave(m, fl))
            if dm and mt % 2 == 0:
                emit(dm.pop(0))
    pt(e)
    e(f"s_setprio {OPT['rprio']}")
    for mt in (7, 8):
        for c in range(1, 4):
            e(f"ds_write_b128 v{AA(c)}, {vr(ACC(mt, c))} offset:{1024 * mt}")
    gbar(4)
    pt(e)
    for mt in range(9):
        for c in range(1, 4):
            e(f"ds_read_b128 {vr(ACC(mt, c))}, v{AA(0)} offset:{9216 * (c - 1) + 1024 * mt}")
    e(f"v_mov_b32 v{PG}, 5")
    e(f"ds_write_b32 v{PH}, v{PG} offset:{F_GB}")
    e(f"s_setprio {OPT['xprio']}")
    e("s_mov_b32 s55, 4096")
    for mt in range(9):
        a = ACC(mt, 0)
        for r in range(4):
            e(f"v_add_f32 v{a + r}, v{a + r}, v{ACC(mt, 1) + r}")
            e(f"v_add_f32 v{ACC(mt, 2) + r}, v{ACC(mt, 2) + r}, v{ACC(mt, 3) + r}")
        for r in range(4):
            e(f"v_add_f32 v{a + r}, v{a + r}, v{ACC(mt, 2) + r}")
        d = FB(0, mt // 2) + 2 * (mt & 1)
        e(f"v_cvt_pk_bf16_f32 v{d}, v{a}, v{a + 1}")
        e(f"v_cvt_pk_bf16_f32 v{d + 1}, v{a + 2}, v{a + 3}")
        if mt & 1:
            e(f"buffer_store_dwordx4 {vr(FB(0, mt // 2))}, v{BR}, {sr(CM)}, 0 offen offset:{1024 * (mt // 2)} sc1")
        elif mt == 8:
            e(f"buffer_store_dwordx4 {vr(FB(0, 4))}, v{BR}, {sr(CM)}, s55 offen sc1")
    pt(e)
    e.wait(vm=0)
    pt(e)
    e("s_lshl_b32 s44, s34, 12")
    e("s_lshl_b32 s45, s35, 7")
    e("s_add_u32 s44, s44, s45")
    e(f"s_lshl_b32 s45, s{W}, 2")
    e("s_add_u32 s44, s44, s45")
    e(f"s_add_u32 s44, s44, {FLAGS + 2048}")
    e(f"v_mov_b32 v0, s44")
    e(f"v_mov_b32 v1, 1")
    e(f"v_xor_b32 v2, 0x80, v0")
    e("s_mov_b64 exec, 1")
    e(f"global_store_dword v0, v1, s[36:37] sc1")
    e("s_mov_b64 exec, -1")
    flag_wait(e, "G0_gw", 2, PG, 4)
    e(f"v_mov_b32 v{PG}, 1")
    e(f"ds_write_b32 v{PH}, v{PG} offset:{F_XRDY}")
    e.label("G0_exit")
    pt(e)
    pt_store(e, 0)
    stamp_store(e, 6, 36, STAMP_OFF, ["s_lshl_b32 s58, s2, 2", f"s_add_u32 s58, s58, s{W}"])
    e("s_endpgm")
    for f in late:
        f()
    for par in range(2):
        for hd in range(1 if MS else 2):
            st = joined(e, slow_states[par])
            st.lgkm, st.vm = [], []
            e.restore(st)
            e.label(f"G0_slow{par}{hd}")
            emit(reduce2("v_max_f32", [TMP(0), TMP(1)], [RL(0), RL(1)]))
            for qt in range(2):
                t = TMP(qt)
                e(f"v_max_f32 v{t}, 0, v{t}")
                for r in range(4):
                    e(f"v_sub_f32 v{NEGM(qt) + r}, v{NEGM(qt) + r}, v{t}")
                for kt in range(4):
                    for r in range(4):
                        e(f"v_sub_f32 v{S(par, kt, qt) + r}, v{S(par, kt, qt) + r}, v{t}")
                e(f"v_exp_f32 v{t}, -v{t}")
                for r in range(4 if MS else 1):
                    e(f"v_mul_f32 v{L(8 * hd, qt) + r}, v{L(8 * hd, qt) + r}, v{t}")
                for r in range(32):
                    e(f"v_mul_f32 v{O(qt, 0) + r}, v{O(qt, 0) + r}, v{t}")
            e("s_nop 1")
            e("s_setpc_b64 s[38:39]")


def loader_group(e):
    emit = mk_emit(e)
    SX, SW, SK, SV, SO = 4, 8, 12, 16, 20
    kvf, xf, wf = OPT["kvflag"], OPT["xflag"], OPT["wflag"]
    BUF = lambda c: 4 * c
    O8 = lambda T: 128 + 4 * T
    Q8 = lambda u: 160 + 4 * u
    S8 = 176
    KF = lambda u: 180 + 4 * u
    VF = lambda T: 196 + 2 * T
    NEGM, L8, TM, TM2 = 212, 216, 217, 218
    AK = lambda u: 220 + u
    AV = lambda T: 224 + T
    VXM = lambda i: 232 + i
    VX8 = 234
    VWQ = lambda i: 235 + i
    VKV = lambda i: 237 + (i & 1)
    LANE, FQ, FW, FD, WA = 239, 240, 241, 242, 243
    T0, T1, T2, T3 = 244, 245, 246, 247
    PL, DUMMY = 248, 219
    late = []
    e(f"v_and_b32 v{LANE}, 63, v0")
    g4 = T0
    e(f"v_lshrrev_b32 v{g4}, 4, v{LANE}")
    e(f"v_and_b32 v{T1}, 2, v{g4}")
    e(f"v_and_b32 v{T2}, 3, v{LANE}")
    e(f"v_xor_b32 v{T1}, v{T1}, v{T2}")
    e(f"v_lshlrev_b32 v{T1}, 4, v{T1}")
    e(f"v_lshrrev_b32 v{T2}, 2, v{LANE}")
    e(f"v_lshl_add_u32 v{T1}, v{T2}, 11, v{T1}")
    e(f"s_lshl_b32 s38, s{W}, 16")
    e(f"v_add_u32 v{VXM(0)}, s38, v{T1}")
    e(f"v_add_u32 v{VXM(1)}, {32768 - 1024}, v{VXM(0)}")
    e(f"v_add_u32 v{VX8}, {128 * 2048}, v{T1}")
    e(f"v_and_b32 v{T1}, 15, v{LANE}")
    e(f"v_lshlrev_b32 v{T2}, 1, v{g4}")
    e(f"v_xor_b32 v{T1}, v{T1}, v{T2}")
    e(f"s_and_b32 s39, s{W}, 1")
    e(f"s_lshl_b32 s40, s39, 3")
    e(f"v_xor_b32 v{T2}, s40, v{T1}")
    e(f"v_lshlrev_b32 v{T2}, 4, v{T2}")
    e(f"v_lshl_add_u32 v{T3}, v{g4}, 13, v{T2}")
    e(f"v_add_u32 v{VWQ(0)}, s38, v{T3}")
    e(f"v_add_u32 v{VWQ(1)}, {32768 - 1024}, v{VWQ(0)}")
    e(f"s_lshl_b32 s41, s{W}, 12")
    e(f"v_lshlrev_b32 v{T1}, 4, v{T1}")
    e(f"v_lshl_add_u32 v{T1}, v{g4}, 8, v{T1}")
    e(f"v_add_u32 v{VKV(0)}, s41, v{T1}")
    e(f"v_xor_b32 v{VKV(1)}, 0x80, v{VKV(0)}")
    e(f"s_lshl_b32 s42, s{W}, 11")
    e("s_lshr_b32 s53, s26, 1")
    e("s_add_u32 s53, s53, s25")
    e("s_and_b32 s53, s53, 3")
    if OPT["xoff"]:
        xa, xb = [int(v) for v in OPT["xoff"].split(",")]
        e("s_and_b32 s47, s2, 1")
        e(f"s_mul_i32 s47, s47, {xa}")
        e("s_bfe_u32 s44, s2, 0x20001")
        e(f"s_mul_i32 s44, s44, {xb}")
        e("s_add_u32 s47, s47, s44")
    e.wait(lgkm=0)
    e("s_mul_i32 s44, s25, 294912")
    e(f"s_add_u32 s{SX}, s28, s44")
    e(f"s_addc_u32 s{SX + 1}, s29, 0")
    e(f"s_mov_b32 s{SX + 2}, 294912")
    e(f"s_mov_b32 s{SX + 3}, 0x20000")
    e("s_lshl_b32 s44, s26, 8")
    e(f"s_add_u32 s{SW}, s34, s44")
    e(f"s_addc_u32 s{SW + 1}, s35, 0")
    e(f"s_sub_u32 s{SW + 2}, 8388608, s44")
    e(f"s_mov_b32 s{SW + 3}, 0x20000")

    QLEAD = int(OPT["qlead"])

    def unit_of(P):
        post = ["s_add_u32 s46, s46, s47", "s_and_b32 s46, s46, 15"] if OPT["xoff"] else []
        if not QLEAD:
            return [f"s_mov_b32 s46, {P}"] + post
        if OPT["first0"]:
            orders = []
            for r in range(4):
                o = [r] + [(tp + 4 if (tp & 3) == r else tp) if tp < 12 else (tp + 1 if r <= tp - 12 else tp) for tp in range(15)]
                orders.append([15] + [u for u in o if u != 15])
            vals = [o[P] for o in orders]
            out = [f"s_mov_b32 s46, {vals[0]}"]
            for r in range(1, 4):
                if vals[r] != vals[0]:
                    out += [f"s_cmp_eq_u32 s53, {r}", f"s_cselect_b32 s46, {vals[r]}, s46"]
            return out + post
        if P == 0:
            return ["s_mov_b32 s46, s53"] + post
        tp = P - 1
        if tp < 12:
            return [f"s_cmp_eq_u32 s53, {tp & 3}", f"s_cselect_b32 s46, {tp + 4}, {tp}"] + post
        return [f"s_cmp_le_u32 s53, {tp - 12}", f"s_cselect_b32 s46, {tp + 1}, {tp}"] + post

    def gap(st, k):
        g = int(OPT["gap"])
        if st < 2 or g == 0 or (g == 4 and k == 0):
            return []
        return [lambda: e.raw(f"    global_load_dword v{DUMMY}, v{FD}, s[48:49]")]

    def issue_step(st):
        out = []
        P = st >> 1
        if st % 2 == 0:
            xs = XR + 18432 * (P % 3)
            out += unit_of(P)
            out += ["s_lshl_b32 s50, s46, 7", "s_add_u32 s51, s50, 64", "s_lshl_b32 s46, s46, 19"]

            def x8():
                e(f"s_cmp_eq_u32 s{W}, {P & 3}")
                e(f"s_cbranch_scc0 G1_x8s{st}")
                for hf in range(2):
                    e.raw(f"    s_mov_b32 m0, {xs + 9216 * hf + 8192}")
                    e.raw(f"    s_nop 0")
                    e.raw(f"    buffer_load_dwordx4 v{VX8}, {sr(SX)}, s{50 + hf} offen {xf} lds")
                e.label(f"G1_x8s{st}")
            out.append(x8)
            for hf in range(2):
                out.append(f"s_add_u32 m0, s42, {xs + 9216 * hf}")
                out.append((f"buffer_load_dwordx4 v{VXM(0)}, {sr(SX)}, s{50 + hf} offen {xf} lds", ("q", st)))
                out.append((f"buffer_load_dwordx4 v{VXM(1)}, {sr(SX)}, s{50 + hf} offen offset:1024 {xf} lds", ("q", st)))
                out += gap(st, hf)
        for hh in range(2):
            out.append(f"s_add_u32 m0, s42, {WQREG(st) + 8192 * hh}")
            out.append(f"s_add_u32 s45, s46, {262144 * (st & 1) + 256 * hh}")
            out.append((f"buffer_load_dwordx4 v{VWQ(0)}, {sr(SW)}, s45 offen {wf} lds", ("q", st)))
            out.append((f"buffer_load_dwordx4 v{VWQ(1)}, {sr(SW)}, s45 offen offset:1024 {wf} lds", ("q", st)))
            out += gap(st, hh)
        return out

    emit(issue_step(0))
    e("s_lshl_b32 s44, s27, 17")
    e(f"s_add_u32 s{SK}, s30, s44")
    e(f"s_addc_u32 s{SK + 1}, s31, 0")
    e(f"s_mov_b32 s{SK + 2}, 262144")
    e(f"s_mov_b32 s{SK + 3}, 0x20000")
    e(f"s_add_u32 s{SV}, s32, s44")
    e(f"s_addc_u32 s{SV + 1}, s33, 0")
    e(f"s_mov_b32 s{SV + 2}, 262144")
    e(f"s_mov_b32 s{SV + 3}, 0x20000")
    e(f"v_and_b32 v{FQ}, 3, v{LANE}")
    e(f"v_lshlrev_b32 v{FQ}, 2, v{FQ}")
    e(f"v_add_u32 v{FQ}, {FLG}, v{FQ}")
    e(f"s_lshl_b32 s44, s{W}, 2")
    e(f"v_mov_b32 v{FW}, {FLG}")
    e(f"v_add_u32 v{FW}, s44, v{FW}")
    e(f"s_add_u32 s43, s44, {FLG + F_FULL}")
    e("s_getpc_b64 s[54:55]")
    e.raw("G1_pc:")
    e(f"s_sub_u32 s54, s54, G1_pc - {KNAME}")
    e("s_subb_u32 s55, s55, 0")
    e(f"s_add_u32 s48, s54, cnt_table - {KNAME}")
    e("s_addc_u32 s49, s55, 0")
    e("s_lshr_b32 s44, s2, 3")
    e("s_lshl_b32 s44, s44, 2")
    e(f"s_add_u32 s44, s44, s{W}")
    e("s_min_u32 s44, s44, CODE_KB_P")
    e("s_lshl_b32 s44, s44, 10")
    e(f"v_lshl_add_u32 v{T1}, v{LANE}, 4, s44")
    e.raw(f"    global_load_dwordx4 {vr(KF(0))}, v{T1}, s[54:55]")
    o_srd(e, SO)
    e("s_lshl_b32 s44, s27, 6")
    e("s_lshl_b32 s45, s25, 11")
    e("s_add_u32 s44, s44, s45")
    e(f"s_add_u32 s44, s44, {FLAGS}")
    e(f"v_lshlrev_b32 v{T1}, 11, v{LANE}")
    e(f"v_add_u32 v{T1}, s44, v{T1}")
    for r in range(4):
        e(f"v_mov_b32 v{PL + r}, 0")
    e(f"s_cmp_lg_u32 s{W}, 0")
    e("s_cbranch_scc1 G1_noclr")
    e("s_mov_b64 exec, 3")
    e.raw(f"    global_store_dwordx4 v{T1}, {vr(PL)}, s[36:37] sc1")
    e("s_mov_b64 exec, -1")
    e.label("G1_noclr")
    e(f"s_lshl_b32 s44, s{W}, 6")
    e(f"s_add_u32 s45, s41, {VS}")
    kv_addr_setup(e, LANE, AK, AV, (T0, T1, T2, T3), "s44", "s41", "s45")
    e(f"v_lshl_add_u32 v{WA}, v{LANE}, 4, s41")
    if OPT["mall"]:
        e("s_load_dwordx2 s[54:55], s[0:1], 32")
        e(f"v_and_b32 v{T0}, 31, v{LANE}")
        e(f"v_lshl_add_u32 v{S8}, v{T0}, 7, s41")
        e(f"v_lshrrev_b32 v{T0}, 5, v{LANE}")
        e(f"v_lshl_add_u32 v{S8}, v{T0}, 14, v{S8}")
        e("s_lshl_b32 s44, s2, 2")
        e(f"s_add_u32 s44, s44, s{W}")
        e("s_lshl_b32 s44, s44, 13")
        e(f"v_lshl_add_u32 v{S8 + 1}, v{LANE}, 7, s44")
        e.wait(lgkm=0)
    e("s_barrier")

    def publish(val):
        e(f"v_mov_b32 v{FD}, {4 * val}")
        e("s_mov_b32 m0, s43")
        e("s_mov_b64 exec, 1")
        e(f"global_load_lds_dword v{FD}, s[48:49]", ("f", val))
        e("s_mov_b64 exec, -1")

    trace_n = [0]

    def trace():
        if OPT["trace"]:
            e("s_memrealtime s[94:95]")
            e("s_memtime s[90:91]")
            e.wait(lgkm=0)
            e(f"v_writelane_b32 v254, s94, {trace_n[0]}")
            e(f"v_writelane_b32 v255, s90, {trace_n[0]}")
            trace_n[0] += 1

    def need_free(nm, need):
        if need > 64:
            e(f"s_mov_b32 s58, {need}")
            need = "s58"
        blocking_poll4(e, nm, FQ, F_FREE, PL, need)
        trace()

    if OPT["abl_noload"]:
        e.wait(vm=0)
        e(f"v_mov_b32 v{FD}, 100")
        e(f"ds_write_b32 v{FW}, v{FD} offset:{F_FULL}")
        e("s_endpgm")

    tile_of = lambda n: (False, 0) if n == 0 else ((False, (n + 1) // 2) if n & 1 else (True, n // 2 - 1))
    NPF = int(OPT["npf"])
    mall = [x for x in OPT["mall"].split(",") if x]
    mt_ = set()
    for x in mall:
        if x != "W":
            mt_ |= {(x[0] == "V", int(x[1:])), (x[0] == "V", int(x[1:]) + 1)}
    allp = [(n, c) for n in range(5, 33) for c in range(4) if n != 31 and tile_of(n) not in mt_]
    nreg = 8 * NPF
    regp = [allp[(len(allp) * k + len(allp) // 2) // nreg] for k in range(nreg)] if nreg else []
    assert len(set(regp)) == nreg

    def piece_src(n, c):
        isv, j = tile_of(n)
        return (SV if isv else SK, 16384 * j)

    def piece_slot(n, c):
        isv, j = tile_of(n)
        return (VS if isv else KS) + 16384 * (j % 3)

    def pf_batch(bt, st):
        for k in range(8 * bt, 8 * bt + 8):
            p, c = regp[k]
            srd, off = piece_src(p, c)
            e.raw(f"    s_mov_b32 s52, {off}")
            e.raw(f"    buffer_load_dwordx4 {vr(BUF(k))}, v{VKV(c)}, {sr(srd)}, s52 offen offset:{1024 * (c & 3)} {kvf}")

    def fill(n):
        for c in range(4):
            if (n, c) in regp and "nowr" not in OPT["abl"]:
                off = piece_slot(n, c) + 1024 * c
                if off < 65536:
                    e(f"ds_write_b128 v{WA}, {vr(BUF(regp.index((n, c))))} offset:{off}")
                else:
                    e(f"ds_write_b128 v{T3}, {vr(BUF(regp.index((n, c))))} offset:{off - 49152}")
        srd, off = piece_src(n, 0)
        e(f"s_add_u32 m0, s41, {piece_slot(n, 0)}")
        e(f"s_mov_b32 s52, {off}")
        for c in range(4):
            if (n, c) not in regp and not ("nodma" in OPT["abl"] and n > 6):
                e(f"buffer_load_dwordx4 v{VKV(c)}, {sr(srd)}, s52 offen offset:{1024 * c} {kvf} lds", ("a", n))
                if OPT["agap"]:
                    e(f"global_load_dword v{DUMMY}, v{FD}, s[48:49]".replace(f"v{DUMMY},", f"v{DUMMY},"), ("g", n))
                    e.st.vm[-1] = (set(), ("g", n))

    def landed(p):
        n = e.vm_needed_for_tags(lambda t: t[0] == "a" and t[1] <= p)
        if n is not None:
            e.wait(vm=n)

    stag = [int(x) for x in OPT["pfstag"].split(",")]
    pf0, pfd = int(OPT["pf0"]), int(OPT["pfd"])
    publish(1)
    emit(issue_step(1))
    publish(2)
    stamp(e, 1)
    for st in range(2, 32):
        if st >= 6 and st % 2 == 0:
            need_free(f"G1_fq{st}", st - 4)
        emit(issue_step(st))
        publish(st + 1)
        for bt in range(NPF):
            for r in range(4):
                if pf0 + pfd * bt + stag[r] == st:
                    assert st < 31
                    e(f"s_cmp_eq_u32 s53, {r}")
                    e(f"s_cbranch_scc0 G1_pf{bt}_{r}")
                    pf_batch(bt, st)
                    e.label(f"G1_pf{bt}_{r}")
        for bt, x in enumerate(mall):
            for r in range(4):
                if int(OPT["mall0"]) + int(OPT["malld"]) * bt + stag[r] == st:
                    e(f"s_cmp_eq_u32 s53, {r}")
                    e(f"s_cbranch_scc0 G1_ml{bt}_{r}")
                    if x == "W":
                        e.raw(f"    global_load_dword v{DUMMY}, v{S8 + 1}, s[54:55]")
                    else:
                        e.raw(f"    s_mov_b32 s52, {16384 * int(x[1:])}")
                        e.raw(f"    buffer_load_dword v{DUMMY}, v{S8}, {sr(SV if x[0] == 'V' else SK)}, s52 offen")
                    e.label(f"G1_ml{bt}_{r}")
    e(f"v_add_u32 v{T3}, 49152, v{WA}")
    stamp(e, 2)
    need_free("G1_fa0", 28)
    fill(0)
    fill(1)
    publish(34)
    need_free("G1_fa2", 30)
    fill(2)
    publish(35)
    fill(3)
    publish(36)
    need_free("G1_fa4", 32)
    fill(4)
    publish(37)
    e(f"s_mov_b32 s50, {f32bits(THR):#x}")

    def load_q8(img):
        e(f"s_sub_u32 s44, {img + 32768}, s41")
        e(f"v_add_u32 v{PL}, s44, v{WA}")
        for u in range(4):
            e(f"ds_read_b128 {vr(Q8(u))}, v{PL} offset:{1024 * u}")
        for r in range(4):
            e(f"v_mov_b32 v{NEGM + r}, 0")
        e.wait(lgkm=0)

    slow_states = []

    def qk8_reads(j):
        landed(0 if j == 0 else 2 * j - 1)
        for u in range(4):
            e(f"ds_read_b128 {vr(KF(u))}, v{AK(u)} offset:{KS + 16384 * (j % 3)}")
        return 4

    def hi(tag):
        if tag in OPT["mprio"]:
            e.wait(lgkm=0)
            e("s_setprio 3")

    def lo(tag):
        if tag in OPT["mprio"]:
            e(f"s_setprio {OPT['g1prio']}")

    def qk8_math(j):
        hi("q")
        for u in range(4):
            e(f"{MF} {vr(S8)}, {vr(KF(u))}, {vr(Q8(u))}, {vr(NEGM) if u == 0 else vr(S8)}")
        lo("q")
        e(f"v_max_f32 v{TM}, v{S8}, v{S8 + 1}")
        e(f"v_max3_f32 v{TM}, v{S8 + 2}, v{S8 + 3}, v{TM}")
        if j % 8 == 0:
            lane_reduce(e, "v_max_f32", TM, TM2)
            for r in range(4):
                e(f"v_sub_f32 v{NEGM + r}, 0, v{TM}")
                e(f"v_sub_f32 v{S8 + r}, v{S8 + r}, v{TM}")
            e(f"v_mov_b32 v{L8}, 0")
        else:
            e(f"v_cmp_lt_f32 vcc, s50, v{TM}")
            e("s_nop 1")
            e(f"s_cbranch_vccnz G1_g{j}")
            snap = e.snapshot()
            slow_states.append(snap)
            e.label(f"G1_g{j}_ret")

            def tramp():
                e.restore(snap)
                e.label(f"G1_g{j}")
                e("s_call_b64 s[38:39], G1_slow")
                e(f"s_branch G1_g{j}_ret")
            late.append(tramp)
        for r in range(4):
            e(f"v_exp_f32 v{S8 + r}, v{S8 + r}")
        for r in range(4):
            e(f"v_add_f32 v{L8}, v{L8}, v{S8 + r}")
        e(f"v_cvt_pk_bf16_f32 v{S8}, v{S8}, v{S8 + 1}")
        e(f"v_cvt_pk_bf16_f32 v{S8 + 1}, v{S8 + 2}, v{S8 + 3}")

    def pv8_reads(j):
        landed(2 * j + 2)
        for T in range(8):
            e(f"ds_read_b64_tr_b16 {vr(VF(T), 2)}, v{AV(T)} offset:{16384 * (j % 3)}")
        return 8

    def pv8_math(j):
        hi("p")
        for T in range(8):
            e(f"{MF16} {vr(O8(T))}, {vr(VF(T), 2)}, {vr(S8, 2)}, {'0' if j % 8 == 0 else vr(O8(T))}")
        lo("p")

    X1, X2, X3 = T0, T1, T2

    def merge1(hd):
        lane_reduce(e, "v_add_f32", L8, TM)
        e(f"v_lshlrev_b32 v{X3}, 4, v{LANE}")
        for c in range(1, 4):
            e(f"s_xor_b32 s44, s{W}, {c}")
            e(f"s_mul_i32 s44, s44, 6144")
            e(f"s_add_u32 s44, s44, {MRG + 2048 * (c - 1)}")
            e(f"v_add_u32 v{X1}, s44, v{X3}")
            for k in range(2):
                e(f"ds_write_b128 v{X1}, {vr(O8(2 * c + k))} offset:{1024 * k}")
        e(f"s_lshl_b32 s44, s{W}, 9")
        e(f"s_add_u32 s44, s44, {MRG + 24576}")
        e(f"v_lshl_add_u32 v{X2}, v{LANE}, 3, s44")
        e(f"v_mov_b32 v{NEGM + 1}, v{L8}")
        e(f"v_mov_b32 v{TM2}, {hd + 1}")
        e(f"ds_write_b64 v{X2}, {vr(NEGM, 2)}")
        e(f"ds_write_b32 v{FW}, v{TM2} offset:{F_GB1}")
        for r in range(8):
            e(f"v_mov_b32 v{r}, v{O8(0) + r}")
        e.wait(lgkm=0)

    def merge2(hd):
        ST = lambda c: 32 + 2 * c
        PO = lambda c, k: 8 * c + 4 * k
        e(f"v_lshlrev_b32 v{X3}, 4, v{LANE}")
        blocking_poll4(e, f"G1_gb1{hd}", FQ, F_GB1, PL + 1, hd + 1)
        for c in range(4):
            e(f"s_xor_b32 s44, s{W}, {c}")
            e(f"s_lshl_b32 s44, s44, 9")
            e(f"s_add_u32 s44, s44, {MRG + 24576}")
            e(f"v_lshl_add_u32 v{X2}, v{LANE}, 3, s44")
            e(f"ds_read_b64 {vr(ST(c), 2)}, v{X2}")
        e(f"s_mul_i32 s44, s{W}, 6144")
        e(f"s_add_u32 s44, s44, {MRG}")
        e(f"v_add_u32 v{X1}, s44, v{X3}")
        for c in range(1, 4):
            for k in range(2):
                e(f"ds_read_b128 {vr(PO(c, k))}, v{X1} offset:{2048 * (c - 1) + 1024 * k}")
        if hd == 1:
            e(f"v_mov_b32 v{TM2}, 3")
            e(f"ds_write_b32 v{FW}, v{TM2} offset:{F_GB1}")
        mn = TM
        e(f"v_min_f32 v{mn}, v{ST(0)}, v{ST(1)}")
        e(f"v_min3_f32 v{mn}, v{ST(2)}, v{ST(3)}, v{mn}")
        for c in range(4):
            e(f"v_sub_f32 v{ST(c)}, v{mn}, v{ST(c)}")
        for c in range(4):
            e(f"v_exp_f32 v{ST(c)}, v{ST(c)}")
        e(f"v_mul_f32 v{mn}, v{ST(0)}, v{ST(0) + 1}")
        for c in range(1, 4):
            e(f"v_fma_f32 v{mn}, v{ST(c)}, v{ST(c) + 1}, v{mn}")
        e(f"v_rcp_f32 v{mn}, v{mn}")
        for c in range(4):
            e(f"v_mul_f32 v{ST(c)}, v{ST(c)}, v{mn}")
        for r in range(8):
            e(f"v_mul_f32 v{r}, v{r}, v{ST(0)}")
        for c in range(1, 4):
            for r in range(8):
                e(f"v_fma_f32 v{r}, v{PO(c, 0) + r}, v{ST(c)}, v{r}")
        for k in range(4):
            e(f"v_cvt_pk_bf16_f32 v{k}, v{2 * k}, v{2 * k + 1}")
        e(f"s_mul_i32 s45, s{W}, 9216")
        e(f"s_add_u32 s45, s45, {8192 + 36864 * hd}")
        e(f"buffer_store_dwordx4 {vr(0)}, v{X3}, {sr(SO)}, s45 offen {OPT['ostore']}", ("st", hd))

    def fast_free(nm, need):
        e(f"v_cmp_lt_u32 s[56:57], v{PL}, {need}")
        e("s_cmp_eq_u64 s[56:57], 0")
        e(f"s_cbranch_scc0 {nm}")
        snap = e.snapshot()
        e.label(nm + "_ret")

        def slow():
            e.restore(snap)
            e.label(nm)
            e("s_setprio 0")
            blocking_poll4(e, nm + "_p", FQ, F_FREE, PL, need, sleep=int(OPT["sleep"]))
            e(f"s_setprio {OPT['g1prio']}")
            e(f"s_branch {nm}_ret")
        late.append(slow)
        trace()

    CO, CW, CD, CG = 4, 8, 12, 16
    of = OPT["oflag"]
    acc_regs = list(range(0, 40, 4)) + list(range(112, 216, 4))
    ACC = lambda mt, t: acc_regs[4 * mt + t]
    FB = lambda p, mt: 40 + 36 * p + 4 * mt
    FA = lambda p, t: 216 + 16 * p + 4 * t
    AA = lambda t: 248 + t
    VB, VA, PG, PH = 252, 253, 254, 255

    def c_setup():
        e("s_load_dwordx4 s[28:31], s[0:1], 32")
        e("s_load_dwordx2 s[32:33], s[0:1], 48")
        out_tile_ids(e, False)
        e(f"s_mul_i32 s44, s{W}, 9216")
        e(f"v_lshl_add_u32 v{VB}, v{LANE}, 4, s44")
        wo_voffset(e, VA, LANE, T0)
        e.wait(lgkm=0)
        e(f"s_mul_i32 s44, s34, {32 * 36864}")
        e(f"s_add_u32 s{CO}, s36, s44")
        e(f"s_addc_u32 s{CO + 1}, s37, 0")
        e(f"s_mov_b32 s{CO + 2}, {32 * 36864}")
        e(f"s_mov_b32 s{CO + 3}, 0x20000")
        wo_dbg_srds(e, CW, CG)
        e("s_mul_i32 s45, s34, 294912")
        e("s_add_u32 s44, s44, s45")
        e(f"s_add_u32 s{CD}, s30, s44")
        e(f"s_addc_u32 s{CD + 1}, s31, 0")
        e(f"s_sub_u32 s{CD + 2}, {16 * 294912}, s44")
        e(f"s_mov_b32 s{CD + 3}, 0x20000")

    def dma_a(pos):
        return wo_dma(pos, f"s_add_u32 m0, s41, {AR1 + 16384 * (pos & 1)}", VA, CW)

    def b_prep(pos):
        return head_of(pos, 54) + ["s_mul_i32 s54, s54, 36864", "s_add_u32 s55, s54, 4096", f"s_add_u32 s{(47, 51)[pos & 1]}, s54, 8192"]

    def b_load(pos, mt):
        return f"buffer_load_dwordx4 {vr(FB(pos & 1, mt))}, v{VB}, {sr(CO)}, s{(54, 55, (47, 51)[pos & 1])[mt // 4]} offen offset:{1024 * (mt % 4)} {of}"

    def a_reads(pos):
        return [f"ds_read_b64_tr_b16 {vr(FA(pos & 1, t) + 2 * ee, 2)}, v{AA(t)} offset:{16384 * (pos & 1) + 2048 * ee}"
                for t in range(4) for ee in range(2)]

    def gflag_issue(rnd):
        e(f"buffer_load_dword v{PG}, off, {sr(CG)}, s40 offset:{64 * rnd} sc1")

    def gflag_check(rnd):
        nm = f"G1_gf{rnd}"
        e(f"v_cmp_gt_u32 vcc, 16, v{PG}")
        e("s_nop 1")
        e(f"s_cbranch_vccnz {nm}")
        snap = e.snapshot()
        e.label(nm + "_ret")

        def slow():
            e.restore(snap)
            e.label(nm)
            e(f"s_mov_b32 s59, {1 << 16}")
            e.label(nm + "_l")
            e("s_sleep 32")
            gflag_issue(rnd)
            e.wait(vm=0)
            e(f"v_cmp_gt_u32 vcc, 16, v{PG}")
            e("s_nop 1")
            e(f"s_cbranch_vccz {nm}_ret")
            e("s_sub_u32 s59, s59, 1")
            e("s_cmp_lg_u32 s59, 0")
            e(f"s_cbranch_scc1 {nm}_l")
            e(f"s_branch {nm}_ret")
        late.append(slow)

    assert all(k >= 10 or n < 19 for k, (n, c) in enumerate(regp))
    e(f"s_setprio {OPT['g1prio']}")
    blocking_poll4(e, "G1_gb0", FQ, F_GB, PL, 1)
    load_q8(QIA)
    qk8_reads(0)
    e(f"ds_read_b32 v{PL}, v{FQ} offset:{F_FREE}")
    qk8_math(0)
    for n in range(5, 33):
        if n != 31:
            fast_free(f"G1_fb{n}", 33 + (0 if n == 5 else n - 6))
            fill(n)
        j = (n - 5) // 2 if n & 1 else (n - 4) // 2
        skip8 = "not8" in OPT["abl"] and j % 8 not in (0, 7)
        nr = 0 if skip8 else (pv8_reads(j) if n & 1 else qk8_reads(j))
        e(f"ds_read_b32 v{PL}, v{FQ} offset:{F_FREE}")
        if n != 31:
            e.wait(lgkm=nr + 1)
            publish(33 + n)
        if n == int(OPT["pwround"]) and OPT["prewarm"]:
            e("s_load_dwordx2 s[54:55], s[0:1], 32")
            e("s_lshl_b32 s44, s2, 2")
            e(f"s_add_u32 s44, s44, s{W}")
            e("s_lshl_b32 s44, s44, 13")
            e(f"v_lshl_add_u32 v{T1}, v{LANE}, 7, s44")
            e.wait(lgkm=0)
            e(f"global_load_dword v{DUMMY}, v{T1}, s[54:55]")
        if skip8:
            pass
        elif n & 1:
            pv8_math(j)
        else:
            qk8_math(j)
        if n == 19:
            merge1(0)
            load_q8(QIB)
            e(f"ds_read_b32 v{PL}, v{FQ} offset:{F_FREE}")
        if n == 21:
            merge2(0)
        if n == int(OPT["dn"]):
            k = e.vm_needed_for_tags(lambda t: t[0] == "st")
            if k is not None:
                e.wait(vm=k)
            e(f"v_mov_b32 v{TM2}, 1")
            e(f"ds_write_b32 v{FW}, v{TM2} offset:{F_DONE1}")
        if n == int(OPT["sn"]):
            e(f"s_cmp_lg_u32 s{W}, 0")
            e("s_cbranch_scc1 G1_nosig")
            st0 = e.snapshot()
            signal(e, "G1_sig", FQ, PL + 2, 0)
            st1 = e.snapshot()
            st1.lgkm = st0.lgkm
            e.merge([st0, st1])
            e.label("G1_nosig")
    if OPT["trace"]:
        e("s_lshl_b32 s58, s2, 2")
        e(f"s_add_u32 s58, s58, s{W}")
        e("s_lshl_b32 s58, s58, 9")
        e(f"s_add_u32 s58, s58, {STAMP_OFF + (2 << 20)}")
        e(f"v_lshl_add_u32 v{T0}, v{LANE}, 2, s58")
        e(f"global_store_dword v{T0}, v254, s[36:37]")
        e(f"global_store_dword v{T0}, v255, s[36:37] offset:256")
        e("s_nop 4")
        sys.stderr.write("trace points: %d\n" % trace_n[0])
    c_setup()
    gflag_issue(0)
    emit(dma_a(0) + dma_a(1))
    pv8_reads(14)
    pv8_math(14)
    qk8_reads(15)
    qk8_math(15)
    gflag_check(0)
    emit(b_prep(0) + [b_load(0, mt) for mt in range(9)])
    pv8_reads(15)
    pv8_math(15)
    merge1(1)
    emit(b_prep(1) + [b_load(1, mt) for mt in range(9)])
    merge2(1)
    blocking_poll4(e, "G1_l0", FQ, F_GB, PL, 2)
    stamp(e, 3)
    e(f"s_add_u32 s44, s41, {AR1}")
    wo_read_addr(e, AA, LANE, T0, "s44")
    e(f"v_mov_b32 v{PH}, v{FW}")
    e("s_xor_b32 s44, s2, 1")
    e(f"s_mul_i32 s44, s44, 36864")
    e(f"s_add_u32 s44, s44, {MBOX}")
    e(f"s_add_u32 s{SO}, s36, s44")
    e(f"s_addc_u32 s{SO + 1}, s37, 0")
    e(f"s_mov_b32 s{SO + 2}, 36864")
    e(f"s_mov_b32 s{SO + 3}, 0x20000")

    def w_landed(pos):
        k = e.vm_needed_for_tags(lambda t: t[0] == "w" and t[1] <= pos)
        if k is not None:
            e.wait(vm=k)

    w_landed(0)
    emit(a_reads(0))
    e(f"s_setprio {OPT['oprio'].split(',')[0]}")
    LAST = NPOS - 1
    held = []
    RA = 4 if OPT["aspread"] else 2

    def partner_loads():
        e.raw("    s_mov_b32 s55, 4096\n    s_mov_b32 s51, 1")
        for k in range(5):
            e.raw(f"    buffer_load_dwordx4 {vr(FB((LAST & 1) ^ 1, k))}, v{VB}, {sr(SO)}, {'s55' if k == 4 else 0} offen offset:{1024 * (k % 4)} sc1")
    for pos in range(NPOS):
        p = pos & 1
        ot = [int(x) for x in OPT["otrace"].split(",") if x]
        if pos in ot:
            stamp(e, 1 + ot.index(pos))
        if pos < 19 or pos == LAST:
            pt(e, pos == 0)
        e.wait(lgkm=2 if 1 <= pos <= NM1 else 0)
        dm, cur = [], []
        for it in (dma_a(pos + 2) if pos + 2 < NPOS else []):
            cur.append(it)
            if isinstance(it, tuple):
                dm.append(cur)
                cur = []
        if not OPT["aspread"] or pos == 5:
            for d in dm:
                emit(d)
            dm = []
        if pos == 1:
            k = e.vm_needed_for_tags(lambda t: t[0] == "st")
            if k is not None:
                e.wait(vm=k)
            e(f"v_mov_b32 v{PG}, 2")
            e(f"ds_write_b32 v{PH}, v{PG} offset:{F_DONE1}")
        if pos == 2:
            e(f"s_cmp_lg_u32 s{W}, 0")
            e("s_cbranch_scc1 G1_nosig2")
            st0 = e.snapshot()
            t0_, t1_ = FA(p ^ 1, 0), FA(p ^ 1, 0) + 2
            e(f"v_mbcnt_lo_u32_b32 v{t0_}, -1, 0")
            e(f"v_and_b32 v{t0_}, 3, v{t0_}")
            e(f"v_lshlrev_b32 v{t0_}, 2, v{t0_}")
            e(f"v_add_u32 v{t0_}, {FLG}, v{t0_}")
            signal(e, "G1_sig2", t0_, t1_, 1)
            e("s_nop 4")
            st1 = e.snapshot()
            st1.lgkm = st0.lgkm
            e.merge([st0, st1])
            e.label("G1_nosig2")
        t0_ = FA(p ^ 1, 0)

        def bflag_addr():
            e(f"v_mbcnt_lo_u32_b32 v{t0_}, -1, 0")
            e(f"v_and_b32 v{t0_}, 15, v{t0_}")
            e("s_lshl_b32 s44, s34, 12")
            e(f"s_add_u32 s44, s44, {FLAGS}")
            e(f"v_lshl_add_u32 v{t0_ + 1}, v{t0_}, 7, s44")
        if pos == 5:
            bflag_addr()
            e(f"s_lshl_b32 s44, s{W}, 6")
            e(f"s_add_u32 m0, s44, {PAREA}")
            e("s_mov_b64 exec, 0xffff")
            e(f"global_load_lds_dword v{t0_ + 1}, s[36:37] sc1", ("pf", 0))
            e("s_mov_b64 exec, -1")
        if pos == 6:
            bflag_addr()
            e(f"s_lshl_b32 s44, s{W}, 6")
            e(f"s_add_u32 s44, s44, {PAREA}")
            e(f"v_lshl_add_u32 v{t0_}, v{t0_}, 2, s44")
            k = e.vm_needed_for_tags(lambda t: t[0] == "pf")
            if k is not None:
                e.wait(vm=k)
            e(f"ds_read_b32 v{PG}, v{t0_}")
            e(f"v_cmp_eq_u32 vcc, 0, v{PG}")
            e("s_nop 1")
            e("s_cbranch_vccnz G1_gwb")
            snap = e.snapshot()
            e.label("G1_gwb_ret")

            def slowb(snap=snap, t0_=t0_):
                e.restore(snap)
                e.label("G1_gwb")
                flag_wait(e, "G1_gwb_p", t0_ + 1, PG, 8)
                e("s_branch G1_gwb_ret")
            late.append(slowb)
        if pos + 2 < NPOS:
            emit(b_prep(pos + 2))
        if pos == LAST:
            e.wait(vm=0)
            e(f"ds_read_b32 v{PG}, v{PH} offset:{F_XRDY}")
            e("s_mov_b32 s51, 0")
            e(f"v_cmp_eq_u32 vcc, 0, v{PG}")
            e("s_nop 1")
            e("s_cbranch_vccnz G1_xlate")
            partner_loads()
            e.label("G1_xlate")
            e(f"v_mbcnt_lo_u32_b32 v{PG}, -1, 0")
            e(f"v_mbcnt_hi_u32_b32 v{PG}, -1, v{PG}")
            e(f"v_and_b32 v{t0_}, 3, v{PG}")
            e(f"v_lshlrev_b32 v{t0_}, 2, v{t0_}")
            e(f"v_add_u32 v{t0_}, {FLG}, v{t0_}")
            blocking_poll4(e, "G1_scr", t0_, F_GB, t0_ + 1, 5)
            red_write_addr(e, AA, PG)
        rd = a_reads(pos + 1) if pos < LAST else []
        fwd = pos < NM1
        chk = word_check(e, late, f"G1_fr{pos + 1}", PH, F_FREEB, PG, pos) if 2 <= pos + 1 < NM1 else []
        for mt in range(9):
            m = [f"{MF} {vr(ACC(mt, t))}, {vr(FA(p, t))}, {vr(FB(p, mt))}, {'0' if pos == 0 else vr(ACC(mt, t))}" for t in range(4)]
            if mt == RA and rd:
                w_landed(pos + 1)
            fl = [f"ds_write_b128 v{VB}, {vr(FB(p, mt))} offset:{36864 * p + 1024 * mt}"] if fwd else []
            if RA <= mt < RA + 4:
                fl += rd[2 * (mt - RA): 2 * (mt - RA + 1)]
            if mt == 6:
                fl += chk[:1]
            if mt == 7 and chk:
                fl += [chk[1]]
            if mt == 8 and fwd:
                fl = [f"v_mov_b32 v{PG}, {pos + 1}"] + fl + [f"ds_write_b32 v{PH}, v{PG} offset:{F_FULLB}"] + chk[2:]
            if pos == LAST and mt >= 2:
                fl = [f"ds_write_b128 v{AA(c)}, {vr(ACC(mt - 2, c))} offset:{1024 * (mt - 2)}" for c in range(1, 4)]
            if dm and mt % 2 == 0:
                fl = fl + [lambda d=dm.pop(0): emit(d)]
            emit(interleave(m, fl))
            if held:
                e(held.pop())
            if pos + 2 < NPOS:
                if fwd:
                    held.append(b_load(pos + 2, mt))
                else:
                    e(b_load(pos + 2, mt))
    stamp(e, 4)
    for mt in (7, 8):
        for c in range(1, 4):
            e(f"ds_write_b128 v{AA(c)}, {vr(ACC(mt, c))} offset:{1024 * mt}")
    LN = PG
    XP = lambda mt: FB((LAST & 1) ^ 1, mt // 2) + 2 * (mt & 1)
    X0, X1, X2, X3 = 216, 217, 218, 219
    OB = 220
    e(f"v_lshrrev_b32 v{X0}, 5, v{LN}")
    e(f"s_lshl_b32 s44, s{W}, 1")
    e(f"v_add_u32 v{X0}, s44, v{X0}")
    e(f"v_and_b32 v{X1}, 7, v{LN}")
    e(f"v_xor_b32 v{X0}, v{X0}, v{X1}")
    e(f"v_lshlrev_b32 v{X0}, 4, v{X0}")
    e(f"v_bfe_u32 v{X1}, v{LN}, 4, 1")
    e(f"v_lshl_add_u32 v{X0}, v{X1}, 3, v{X0}")
    e(f"v_and_b32 v{X1}, 15, v{LN}")
    e(f"v_lshl_add_u32 v{X0}, v{X1}, 7, v{X0}")
    e(f"v_add_u32 v{X0}, {IMG}, v{X0}")
    e(f"v_lshrrev_b32 v{X1}, 3, v{LN}")
    e(f"v_and_b32 v{X2}, 7, v{LN}")
    e(f"v_xor_b32 v{X2}, v{X2}, v{X1}")
    e(f"v_lshlrev_b32 v{X2}, 4, v{X2}")
    e(f"v_lshl_add_u32 v{X2}, v{X1}, 11, v{X2}")
    e(f"s_add_u32 s44, s41, {IMG}")
    e(f"v_lshl_add_u32 v{X3}, v{LN}, 4, s44")
    e(f"s_lshl_b32 s45, s{W}, 10")
    e(f"s_add_u32 s45, s45, {IMG}")
    e(f"v_lshl_add_u32 v{X1}, v{LN}, 4, s45")
    e.wait(lgkm=0)
    e("s_barrier")
    e("s_cmp_lg_u32 s51, 0")
    e("s_cbranch_scc1 G1_xdone")
    partner_loads()
    e.label("G1_xdone")
    for mt in range(9):
        for c in range(1, 4):
            e(f"ds_read_b128 {vr(ACC(mt, c))}, v{AA(0)} offset:{9216 * (c - 1) + 1024 * mt}")
    for mt in range(9):
        a = ACC(mt, 0)
        for r in range(4):
            e(f"v_add_f32 v{a + r}, v{a + r}, v{ACC(mt, 1) + r}")
            e(f"v_add_f32 v{ACC(mt, 2) + r}, v{ACC(mt, 2) + r}, v{ACC(mt, 3) + r}")
        for r in range(4):
            e(f"v_add_f32 v{a + r}, v{a + r}, v{ACC(mt, 2) + r}")
    e.wait(vm=0)
    for mt in range(9):
        a = ACC(mt, 0)
        t = ACC(mt, 1)
        for h in range(2):
            e(f"v_lshlrev_b32 v{t + 2 * h}, 16, v{XP(mt) + h}")
            e(f"v_and_b32 v{t + 2 * h + 1}, 0xffff0000, v{XP(mt) + h}")
        for r in range(4):
            e(f"v_add_f32 v{a + r}, v{a + r}, v{t + r}")
        e(f"v_cvt_pk_bf16_f32 v{a}, v{a}, v{a + 1}")
        e(f"v_cvt_pk_bf16_f32 v{a + 1}, v{a + 2}, v{a + 3}")
        e(f"ds_write_b64 v{X0}, {vr(a, 2)} offset:{2048 * mt}")
    e.wait(lgkm=0)
    e("s_barrier")
    for i in range(4):
        e(f"ds_read_b128 {vr(OB + 4 * i)}, v{X3} offset:{1024 * i}")
    e(f"ds_read_b128 {vr(OB + 16)}, v{X1} offset:16384")
    e(f"s_lshl_b32 s44, s{W}, 16")
    outf = OPT["outflag"]
    for i in range(4):
        e(f"buffer_store_dwordx4 {vr(OB + 4 * i)}, v{X2}, {sr(CD)}, s44 offen {outf}")
        e(f"s_add_u32 s44, s44, 16384")
    e(f"s_cmp_ge_u32 s{W}, 2")
    e("s_cbranch_scc1 G1_done")
    e(f"s_lshl_b32 s44, s{W}, 14")
    e(f"s_add_u32 s44, s44, {128 * 2048}")
    e(f"buffer_store_dwordx4 {vr(OB + 16)}, v{X2}, {sr(CD)}, s44 offen {outf}")
    e.label("G1_done")
    pt(e)
    pt_store(e, 1)
    if OPT["stamp"] or OPT["dbg"]:
        e.wait(vm=0, lgkm=0)
    stamp(e, 5)
    stamp_store(e, 6, 36, STAMP_OFF, ["s_lshl_b32 s58, s2, 2", f"s_add_u32 s58, s58, s{W}", "s_add_u32 s58, s58, 1024"])
    e("s_endpgm")
    for f in late:
        f()
    e.restore(joined(e, slow_states))
    e.st.lgkm = []
    e.label("G1_slow")
    lane_reduce(e, "v_max_f32", TM, TM2)
    e(f"v_max_f32 v{TM}, 0, v{TM}")
    for r in range(4):
        e(f"v_sub_f32 v{NEGM + r}, v{NEGM + r}, v{TM}")
        e(f"v_sub_f32 v{S8 + r}, v{S8 + r}, v{TM}")
    e(f"v_exp_f32 v{TM}, -v{TM}")
    e(f"v_mul_f32 v{L8}, v{L8}, v{TM}")
    for r in range(32):
        e(f"v_mul_f32 v{O8(0) + r}, v{O8(0) + r}, v{TM}")
    e("s_nop 1")
    e("s_setpc_b64 s[38:39]")


def engine(e):
    stamp(e, 0)
    e("s_load_dwordx4 s[28:31], s[0:1], 0")
    e("s_load_dwordx4 s[32:35], s[0:1], 16")
    e("s_load_dwordx2 s[36:37], s[0:1], 56")
    e("v_lshrrev_b32 v1, 6, v0")
    e("s_and_b32 s25, s2, 1")
    e("v_readfirstlane_b32 s3, v1")
    e("s_lshl_b32 s25, s25, 3")
    e("s_bfe_u32 s26, s2, 0x30003")
    e("s_add_u32 s25, s25, s26")
    e("s_bfe_u32 s26, s2, 0x20001")
    e("s_lshl_b32 s26, s26, 2")
    e("s_lshr_b32 s27, s2, 6")
    e("s_add_u32 s26, s26, s27")
    e("s_lshl_b32 s26, s26, 1")
    e("s_lshl_b32 s27, s25, 5")
    e("s_add_u32 s27, s27, s26")
    e(f"s_and_b32 s{W}, s3, 3")
    e("s_cmp_lt_u32 s3, 4")
    e("s_cbranch_scc1 G0_start")
    st = e.snapshot()
    loader_group(e)
    e.restore(st)
    e.label("G0_start")
    compute_group(e)


def kd(name):
    return f""".section .rodata,"a"
.p2align 6
.amdhsa_kernel {name}
  .amdhsa_next_free_vgpr 256
  .amdhsa_next_free_sgpr 102
  .amdhsa_accum_offset 256
  .amdhsa_group_segment_fixed_size 0
  .amdhsa_kernarg_size 64
  .amdhsa_user_sgpr_count 2
  .amdhsa_user_sgpr_kernarg_segment_ptr 1
  .amdhsa_system_sgpr_workgroup_id_x 1
.end_amdhsa_kernel
"""


def main():
    out = HEADER
    out += "; @launch grid=(256,1,1) block=(512,1,1) lds=163840\n"
    out += '.amdgcn_target "amdgcn-amd-amdhsa--gfx950"\n.text\n'
    e = Emitter()
    e.raw(f".globl {KNAME}\n.p2align 8\n.type {KNAME},@function\n{KNAME}:")
    e("s_cmp_lt_u32 s2, 256")
    e("s_cbranch_scc1 P_go")
    e("s_endpgm")
    e.label("P_go")
    engine(e)
    e.raw(".p2align 8\n.type cnt_table,@object\ncnt_table:")
    for k in range(96):
        e.raw(f".long {k}")
    e.raw(".size cnt_table, 384")
    e.label("P_end")
    e.raw(f".set CODE_KB_P, (P_end - {KNAME}) / 1024 - 1")
    sys.stderr.write("engine counts: %s\n" % e.count)
    hold = {}
    import re as _re
    for ln in e.lines:
        mm = _re.search(r"; f(\d+)$", ln)
        if not mm:
            continue
        ins = Inst(ln.strip())
        if ins.cls == "ldsr":
            for r in ins.defs:
                hold[r] = mm.group(1)
        else:
            for r in regs_of(ins.ops[1]):
                assert hold.get(r) == mm.group(1), ln
    out += _re.sub(r" ; f\d+\n", "\n", e.text())
    out += kd(KNAME)
    open(sys.argv[1], "w").write(out)


main()
```

```python
import sys, struct, math
from asmlib import *

OPT = dict(stamp=False, kvflag="nt", xflag="", wflag="", oflag="sc1", ostore="sc1",
           lead="4", qlead="4", prewarm=False, pf0="2", pfd="6", pfstag="0,1,2,4", npf="4", abl_noload=False, abl_not8=False, gap="4", dbg=False, g0prio="2", g1prio="3", pwround="26", outflag="sc0 sc1", trace=False, sleep="6", abl="", agap=False, trace0=False, otrace="", qnop="0", msum=False, mprio="p", n1="4", oprio="1,0", ptrace=False, xprio="3", rprio="0", aspread=False, g0chk="3", xoff="8,2", first0=True, ooff=False, dit="10", dn="24", sn="26", mall="", mall0="6", malld="6", regfrom="5", regto="33", regtile=False)
for a in sys.argv[2:]:
    k, v = a.split("=", 1)
    assert k in OPT, k
    OPT[k] = {"True": True, "False": False}.get(v, v)

HEADER = """; Kernarg layout for this problem (64 bytes, ptrs only, base s[0:1]):
"""


def f32bits(x):
    return struct.unpack("<I", struct.pack("<f", x))[0]


MF = "v_mfma_f32_16x16x32_bf16"
STAMP_OFF = 64 << 20
SPIN_MAX = 1 << 18


def stamp(e, idx):
    if OPT["stamp"] or OPT["dbg"]:
        e(f"s_memrealtime s[{60 + 2 * idx}:{61 + 2 * idx}]")
        e(f"s_memtime s[{76 + 2 * idx}:{77 + 2 * idx}]")
        if idx == 0:
            e("s_mov_b32 s92, 0")
        if idx == 2:
            e("s_mov_b32 s93, s92")
            e("s_mov_b32 s92, 0")


PT = [0]


def pt(e, reset=False):
    if reset:
        PT[0] = 0
    if OPT["ptrace"]:
        e(f"s_memtime s[{58 + 2 + 2 * PT[0]}:{58 + 3 + 2 * PT[0]}]")
        PT[0] += 1
        assert PT[0] <= 21


def pt_store(e, grp):
    if not OPT["ptrace"]:
        return
    e.wait(lgkm=0)
    for k in range(PT[0]):
        e(f"v_writelane_b32 v3, s{60 + 2 * k}, {k}")
    e("s_lshl_b32 s58, s2, 2")
    e(f"s_add_u32 s58, s58, s24")
    e("s_lshl_b32 s58, s58, 9")
    e(f"s_add_u32 s58, s58, {STAMP_OFF + (2 << 20) + 256 * grp}")
    e(f"v_mbcnt_lo_u32_b32 v2, -1, 0")
    e(f"v_mbcnt_hi_u32_b32 v2, -1, v2")
    e(f"v_lshl_add_u32 v2, v2, 2, s58")
    e(f"global_store_dword v2, v3, s[36:37]")


def stamp_store(e, n, ws_lo, base_off, rec):
    if OPT["dbg"]:
        lab = "DBG_skip%d" % len(rec)
        off = 0 if len(rec) == 2 else 64
        e("s_or_b32 s58, s2, s24")
        e("s_cmp_lg_u32 s58, 0")
        e(f"s_cbranch_scc1 {lab}")
        e(f"s_add_u32 s56, s{ws_lo}, {STAMP_OFF}")
        e(f"s_addc_u32 s57, s{ws_lo + 1}, 0")
        e.wait(lgkm=0)
        e("v_mov_b32 v0, 0")
        for i in range(6):
            e(f"v_mov_b32 v1, s{60 + 2 * i}")
            e(f"global_store_dword v0, v1, s[56:57] offset:{off + 4 * i}")
        e.label(lab)
    if not OPT["stamp"]:
        return
    e.wait(lgkm=0)
    e("v_mov_b32 v0, 0")
    for r in rec:
        e(r)
    e(f"s_lshl_b32 s58, s58, 6")
    e(f"s_add_u32 s58, s58, {base_off}")
    e(f"s_add_u32 s56, s{ws_lo}, s58")
    e(f"s_addc_u32 s57, s{ws_lo + 1}, 0")
    for i in range(n):
        e(f"v_mov_b32 v1, s{60 + 2 * i}")
        e(f"global_store_dword v0, v1, s[56:57] offset:{4 * i}")
    for i in range(n):
        e(f"v_mov_b32 v1, s{76 + 2 * i}")
        e(f"global_store_dword v0, v1, s[56:57] offset:{32 + 4 * i}")
    e(f"v_mov_b32 v1, s93")
    e(f"global_store_dword v0, v1, s[56:57] offset:24")
    e(f"v_mov_b32 v1, s92")
    e(f"global_store_dword v0, v1, s[56:57] offset:28")


def mk_emit(e):
    def emit(items):
        for it in items:
            if isinstance(it, tuple):
                e(it[0], it[1])
            elif callable(it):
                it()
            else:
                e(it)
    return emit


XR = 98304
WQREG = lambda st: 16384 * [(0, 1), (3, 2), (4, 5)][((st >> 1) - 13) % 3][st & 1]
KS, VS = 0, 49152
QIA, QIB = 89856, 126720
MRG = 98304
FLG = 163584
F_FULL, F_FREE, F_GB, F_GB1, F_DONE0, F_DONE1, F_FULLB, F_FREEB, F_XRDY = 0, 16, 32, 48, 64, 80, 96, 112, 128
AR0, AR1, IMG = 98048, 130816, 110592
MBOX = 32 << 20
FLAGS = 48 << 20
PAREA = 73728
N1 = int(OPT["n1"])
NM1 = 8 + N1
NPOS = NM1 + 16 - 2 * N1
KNAME = "standalone__mha_block_cached__near_ridge_kernel"
W = 24
MF16 = "v_mfma_f32_16x16x16_bf16"
THR = 10.0


def blocking_poll4(e, name, addr, off, tmp, need, sleep=1):
    e(f"s_mov_b32 s59, {SPIN_MAX}")
    e.label(name)
    e(f"ds_read_b32 v{tmp}, v{addr} offset:{off}")
    e.wait(lgkm=0)
    e(f"v_cmp_lt_u32 s[56:57], v{tmp}, {need}")
    e("s_cmp_eq_u64 s[56:57], 0")
    e(f"s_cbranch_scc1 {name}_ok")
    e(f"s_sleep {sleep}")
    e("s_sub_u32 s59, s59, 1")
    e("s_cmp_lg_u32 s59, 0")
    e(f"s_cbranch_scc1 {name}")
    e.label(name + "_ok")
    if OPT["stamp"]:
        e(f"s_sub_u32 s59, {SPIN_MAX + 1}, s59")
        e("s_add_u32 s92, s92, s59")
        e("s_add_u32 s92, s92, 0x10000")


def kv_addr_setup(e, LANE, AK, AV, T, xor_sgpr, add_k, add_v):
    T0, T1, T2, T3 = T
    q, g = T0, T1
    e(f"v_and_b32 v{q}, 15, v{LANE}")
    e(f"v_lshrrev_b32 v{g}, 4, v{LANE}")
    e(f"v_and_b32 v{T2}, 7, v{q}")
    e(f"v_lshlrev_b32 v{T2}, 1, v{T2}")
    e(f"v_xor_b32 v{T2}, v{T2}, v{g}")
    e(f"v_lshlrev_b32 v{T2}, 4, v{T2}")
    e(f"v_lshl_add_u32 v{AK(0)}, v{q}, 8, v{T2}")
    if add_k is not None:
        e(f"v_add_u32 v{AK(0)}, {add_k}, v{AK(0)}")
    for u in range(1, 4):
        e(f"v_xor_b32 v{AK(u)}, {64 * u}, v{AK(0)}")
    e(f"v_and_b32 v{T3}, 3, v{LANE}")
    e(f"v_lshlrev_b32 v{T3}, 3, v{T3}")
    e(f"v_lshrrev_b32 v{T2}, 2, v{LANE}")
    e(f"v_lshl_add_u32 v{AV(0)}, v{T2}, 8, v{T3}")
    e(f"v_and_b32 v{T2}, 7, v{T2}")
    e(f"v_lshl_add_u32 v{AV(0)}, v{T2}, 5, v{AV(0)}")
    if xor_sgpr is not None:
        e(f"v_xor_b32 v{AV(0)}, {xor_sgpr}, v{AV(0)}")
    e(f"v_add_u32 v{AV(0)}, {add_v}, v{AV(0)}")
    for Tt in range(1, 8):
        e(f"v_xor_b32 v{AV(Tt)}, {32 * Tt}, v{AV(0)}")


def lane_reduce(e, op, x, t):
    e(f"v_mov_b32 v{t}, v{x}")
    e(f"v_permlane32_swap_b32 v{t}, v{x}")
    e(f"{op} v{x}, v{x}, v{t}")
    e(f"v_mov_b32 v{t}, v{x}")
    e(f"v_permlane16_swap_b32 v{t}, v{x}")
    e(f"{op} v{x}, v{x}, v{t}")


def o_srd(e, SO):
    e("s_mul_i32 s44, s27, 36864")
    e(f"s_add_u32 s{SO}, s36, s44")
    e(f"s_addc_u32 s{SO + 1}, s37, 0")
    e(f"s_mov_b32 s{SO + 2}, {2 * 36864}")
    e(f"s_mov_b32 s{SO + 3}, 0x20000")


def signal(e, name, FQ, PL, rnd):
    blocking_poll4(e, name + "a", FQ, F_DONE0, PL, rnd + 1)
    blocking_poll4(e, name + "b", FQ, F_DONE1, PL, rnd + 1)
    if rnd == 1:
        e("s_lshl_b32 s58, s27, 6")
        e("s_lshl_b32 s59, s25, 11")
        e("s_add_u32 s58, s58, s59")
        e(f"s_add_u32 s58, s58, {FLAGS}")
        e(f"v_mov_b32 v{PL}, s58")
        e(f"v_mov_b32 v{PL + 1}, 1")
        e("s_mov_b64 exec, 1")
        e.raw(f"    global_store_dword v{PL}, v{PL + 1}, s[36:37] sc1")
        e("s_mov_b64 exec, -1")
        return
    e("s_load_dwordx2 s[56:57], s[0:1], 48")
    e("s_and_b32 s58, s25, 1")
    e("s_lshl_b32 s58, s58, 6")
    e("s_add_u32 s58, s58, s25")
    e("s_and_b32 s58, s58, 0xfe")
    e("s_lshl_b32 s58, s58, 1")
    e(f"v_mov_b32 v{PL}, s58")
    e(f"v_mov_b32 v{PL + 1}, 1")
    e.wait(lgkm=0)
    e("s_mov_b64 exec, 1")
    e.raw(f"    global_atomic_add v{PL}, v{PL + 1}, s[56:57] sc1")
    e("s_mov_b64 exec, -1")


def out_tile_ids(e, send):
    e("s_bfe_u32 s34, s2, 0x20001")
    e("s_lshl_b32 s34, s34, 2")
    e("s_bfe_u32 s35, s2, 0x20003")
    e("s_add_u32 s34, s34, s35")
    e("s_bfe_u32 s35, s2, 0x30005")
    e("s_add_u32 s53, s34, s35")
    e("s_and_b32 s53, s53, 3")
    e("s_and_b32 s52, s2, 1")
    e("s_lshl_b32 s35, s35, 1")
    e("s_add_u32 s35, s35, s52")
    if send:
        e("s_xor_b32 s35, s35, 1")
    e("s_lshl_b32 s52, s52, 1")
    e("s_and_b32 s40, s34, 1")
    e("s_lshl_b32 s40, s40, 6")
    e("s_add_u32 s40, s40, s34")
    e("s_and_b32 s40, s40, 0xfe")
    e("s_lshl_b32 s40, s40, 1")


def wo_voffset(e, VA, LANE, T0):
    e(f"v_lshrrev_b32 v{T0}, 4, v{LANE}")
    e(f"v_lshlrev_b32 v{T0}, 1, v{T0}")
    e(f"v_and_b32 v{VA}, 7, v{LANE}")
    e(f"v_xor_b32 v{VA}, v{VA}, v{T0}")
    e(f"v_lshlrev_b32 v{VA}, 4, v{VA}")
    e(f"v_lshrrev_b32 v{T0}, 3, v{LANE}")
    e(f"v_lshl_add_u32 v{VA}, v{T0}, 11, v{VA}")
    e(f"s_lshl_b32 s44, s{W}, 16")
    e(f"v_add_u32 v{VA}, s44, v{VA}")


def wo_dbg_srds(e, CW, CG):
    e("s_lshl_b32 s44, s35, 7")
    e(f"s_add_u32 s{CW}, s28, s44")
    e(f"s_addc_u32 s{CW + 1}, s29, 0")
    e(f"s_sub_u32 s{CW + 2}, 8388608, s44")
    e(f"s_mov_b32 s{CW + 3}, 0x20000")
    e(f"s_mov_b32 s{CG}, s32")
    e(f"s_mov_b32 s{CG + 1}, s33")
    e(f"s_mov_b32 s{CG + 2}, 256")
    e(f"s_mov_b32 s{CG + 3}, 0x20000")


def head_of(pos, dst):
    if pos < 8:
        P, n, c1, c0, kp = pos, 8, 4, 0, True
    elif pos < NM1:
        P, n, c1, c0, kp = pos - 8, N1, 4, 1, True
    else:
        P, n, c1, c0, kp = pos - NM1, 16 - 2 * N1, 2, 4 * N1 + 1, False
    hd = lambda a: c1 * a + c0
    nl = n - n % 4
    if not int(OPT["lead"]) or P >= nl:
        out = [f"s_mov_b32 s{dst}, {hd(P)}"]
    elif P == 0:
        out = [f"s_mul_i32 s{dst}, s53, {c1}", f"s_add_u32 s{dst}, s{dst}, {c0}"]
    elif P - 1 < nl - 4:
        out = [f"s_cmp_eq_u32 s53, {(P - 1) & 3}", f"s_cselect_b32 s{dst}, {hd(P + 3)}, {hd(P - 1)}"]
    else:
        out = [f"s_cmp_le_u32 s53, {P - 1 - (nl - 4)}", f"s_cselect_b32 s{dst}, {hd(P)}, {hd(P - 1)}"]
    return out + ([f"s_add_u32 s{dst}, s{dst}, s52"] if kp else [])


def wo_read_addr(e, AA, LANE, T0, base_sgpr):
    e(f"v_lshrrev_b32 v{T0}, 2, v{LANE}")
    e(f"v_and_b32 v{AA(1)}, 3, v{LANE}")
    e(f"v_lshlrev_b32 v{AA(1)}, 3, v{AA(1)}")
    e(f"v_lshl_add_u32 v{AA(0)}, v{T0}, 7, v{AA(1)}")
    e(f"v_bfe_u32 v{T0}, v{LANE}, 3, 2")
    e(f"v_xor_b32 v{T0}, s{W}, v{T0}")
    e(f"v_lshl_add_u32 v{AA(0)}, v{T0}, 5, v{AA(0)}")
    e(f"v_add_u32 v{AA(0)}, {base_sgpr}, v{AA(0)}")
    for t in range(1, 4):
        e(f"v_xor_b32 v{AA(t)}, {32 * t}, v{AA(0)}")


def word_check(e, late, nm, addr, off, tmp, need):
    def br():
        e(f"s_cbranch_vccnz {nm}")
        snap = e.snapshot()
        e.label(nm + "_ret")

        def slow():
            e.restore(snap)
            e.label(nm)
            blocking_poll4(e, nm + "_p", addr, off, tmp, need)
            e(f"s_branch {nm}_ret")
        late.append(slow)
    return [f"ds_read_b32 v{tmp}, v{addr} offset:{off}", f"v_cmp_gt_u32 vcc, {need}, v{tmp}", br]


def red_write_addr(e, AA, LN):
    for c in range(1, 4):
        e(f"s_xor_b32 s44, s{W}, {c}")
        e(f"s_mul_i32 s44, s44, 27648")
        e(f"s_add_u32 s44, s44, {9216 * (c - 1)}")
        e(f"v_lshl_add_u32 v{AA(c)}, v{LN}, 4, s44")
    e(f"s_mul_i32 s44, s{W}, 27648")
    e(f"v_lshl_add_u32 v{AA(0)}, v{LN}, 4, s44")


def wo_dma(pos, m0line, VA, CW):
    out = [m0line] + head_of(pos, 46) + ["s_lshl_b32 s46, s46, 18"]
    for i in range(4):
        if i:
            out.append(f"s_add_u32 s46, s46, {16384 - 1024}")
        out.append((f"buffer_load_dwordx4 v{VA}, {sr(CW)}, s46 offen offset:{1024 * i} {OPT['wflag']} lds", ("w", pos)))
    return out


def flag_wait(e, nm, PA, PG, sleep):
    e(f"s_mov_b32 s59, {1 << 16}")
    e.label(nm)
    e(f"global_load_dword v{PG}, v{PA}, s[36:37] sc1")
    e.wait(vm=0)
    e(f"v_cmp_eq_u32 vcc, 0, v{PG}")
    e("s_nop 1")
    e(f"s_cbranch_vccz {nm}_ok")
    e(f"s_sleep {sleep}")
    e("s_sub_u32 s59, s59, 1")
    e("s_cmp_lg_u32 s59, 0")
    e(f"s_cbranch_scc1 {nm}")
    e.label(nm + "_ok")


def joined(e, states):
    st = states[0].copy()
    for s in states[1:]:
        st.hist += [list(h) for h in s.hist]
    return st


def compute_group(e):
    emit = mk_emit(e)
    SO = 20
    O = lambda qt, T: 32 * qt + 4 * T
    Q = lambda qt, u: 64 + 16 * qt + 4 * u
    S = lambda par, kt, qt: 96 + 32 * par + 16 * qt + 4 * kt
    NF = 13
    F = lambda i: 160 + 4 * (i % NF)
    ONES = 212
    LS = lambda qt: 216 + 4 * qt
    NEGM = lambda qt: 224 + 4 * qt
    RL = lambda qt: 232 + qt
    TMP = lambda qt: 234 + qt
    FD = 237
    AK = lambda u: 238 + u
    AV = lambda T: 242 + T
    FA_, FQ, PL = 250, 251, 252
    ACC = lambda t, qt: 16 * qt + 4 * t
    FA = lambda p, t: 144 + 16 * p + 4 * t
    NB = 8
    FB = lambda k: 176 + 4 * (k % NB)
    AA = lambda t: 208 + t
    AH = lambda t: 212 + t
    AB, LANE = 216, 217
    T0, T1, T2, T3 = 218, 219, 220, 221
    late = []

    e(f"s_setprio {OPT['g0prio']}")
    e(f"v_and_b32 v{LANE}, 63, v0")
    e(f"v_mov_b32 v{T0}, 0")
    e(f"v_lshlrev_b32 v{T1}, 2, v{LANE}")
    e(f"v_add_u32 v{T1}, {FLG}, v{T1}")
    e(f"ds_write_b32 v{T1}, v{T0}")
    e(f"s_lshl_b32 s44, s{W}, 2")
    e(f"s_add_u32 s44, s44, {FLG}")
    e(f"v_mov_b32 v{FA_}, s44")
    e(f"v_and_b32 v{FQ}, 0xfffffe0c, v{T1}")
    e(f"v_or_b32 v{FQ}, {FLG & 0x1f0}, v{FQ}")
    e.wait(lgkm=0)
    e("s_barrier")
    o_srd(e, SO)
    kv_addr_setup(e, LANE, AK, AV, (T0, T1, T2, T3), None, None, VS)
    q, g, cq = T0, T1, T3
    e(f"v_lshrrev_b32 v{T2}, 2, v{q}")
    e(f"v_and_b32 v{T2}, 2, v{T2}")
    e(f"v_xor_b32 v{T2}, v{T2}, v{g}")
    e(f"v_lshlrev_b32 v{T2}, 4, v{T2}")
    e(f"v_lshl_add_u32 v{T2}, v{q}, 6, v{T2}")
    e(f"v_add_u32 v{AB}, {XR}, v{T2}")
    rp = T2
    e(f"v_bfe_u32 v{rp}, v{LANE}, 2, 2")
    e(f"v_lshl_add_u32 v{q}, v{g}, 3, v{rp}")
    e(f"v_lshl_add_u32 v{q}, v{q}, 8, v{cq}")
    e(f"v_lshl_add_u32 v{q}, v{rp}, 5, v{q}")
    e(f"v_and_b32 v{g}, 1, v{g}")
    e(f"v_lshl_add_u32 v{q}, v{g}, 7, v{q}")
    e(f"s_and_b32 s48, s{W}, 1")
    e(f"s_lshl_b32 s48, s48, 7")
    e(f"v_xor_b32 v{q}, s48, v{q}")
    e(f"s_lshr_b32 s49, s{W}, 1")
    e(f"s_lshl_b32 s44, s49, 13")
    e(f"v_add_u32 v{AA(0)}, s44, v{q}")
    for t in range(1, 4):
        e(f"v_xor_b32 v{AA(t)}, {32 * t}, v{AA(0)}")
    for t in range(4):
        e(f"v_add_u32 v{AH(t)}, 49152, v{AA(t)}")

    def a_reads(st):
        p, base = st & 1, WQREG(st)
        out = []
        for t in range(4):
            for ee in range(2):
                if base < 65536:
                    out.append(f"ds_read_b64_tr_b16 {vr(FA(p, t) + 2 * ee, 2)}, v{AA(t)} offset:{base + 1024 * ee}")
                else:
                    out.append(f"ds_read_b64_tr_b16 {vr(FA(p, t) + 2 * ee, 2)}, v{AH(t)} offset:{base - 49152 + 1024 * ee}")
        return out

    def b_read(k):
        st, qt = k // 9, k % 9
        return f"ds_read_b128 {vr(FB(k))}, v{AB} offset:{18432 * ((st >> 1) % 3) + 9216 * (st & 1) + 1024 * qt}"

    def check_items(nm, need, sink, off=F_FULL, pre=None):
        def br():
            e("s_cmp_eq_u64 s[56:57], 0")
            e(f"s_cbranch_scc0 {nm}")
            snap = e.snapshot()
            e.label(nm + "_ret")

            def slow():
                e.restore(snap)
                e.label(nm)
                if pre:
                    e(pre)
                blocking_poll4(e, nm + "_p", FQ, off, PL, need)
                e(f"s_branch {nm}_ret")
            sink.append(slow)
        return [f"ds_read_b32 v{PL}, v{FQ} offset:{off}", f"v_cmp_lt_u32 s[56:57], v{PL}, {need}", br]

    DB = 6
    blocking_poll4(e, "G0_first", FQ, F_FULL, PL, 1)
    stamp(e, 1)
    emit(a_reads(0) + [b_read(k) for k in range(DB)])
    e(f"s_mov_b32 s50, {f32bits(math.log2(math.e) / math.sqrt(128.0)):#x}")
    QW = 222
    e(f"v_and_b32 v{T1}, 15, v{LANE}")
    e(f"v_lshlrev_b32 v{QW}, 4, v{T1}")
    e(f"v_lshrrev_b32 v{T1}, 5, v{LANE}")
    e(f"v_lshl_add_u32 v{QW}, v{T1}, 8, v{QW}")
    e(f"v_bfe_u32 v{T1}, v{LANE}, 4, 1")
    e(f"v_lshl_add_u32 v{QW}, v{T1}, 3, v{QW}")
    e(f"s_mul_i32 s44, s49, {QIB - QIA}")
    e(f"s_lshl_b32 s45, s48, 4")
    e(f"s_add_u32 s44, s44, s45")
    e(f"s_add_u32 s44, s44, {QIA}")
    e(f"v_add_u32 v{QW}, s44, v{QW}")

    def qconv(qt):
        out = []
        for t in range(4):
            a = ACC(t, qt)
            out += [f"v_mul_f32 v{a + r}, s50, v{a + r}" for r in range(4)]
            out += [f"v_cvt_pk_bf16_f32 v{a}, v{a}, v{a + 1}", f"v_cvt_pk_bf16_f32 v{a + 1}, v{a + 2}, v{a + 3}"]
        return out

    conv = []
    for st in range(32):
        p = st & 1
        ar = a_reads(st + 1) if st < 31 else []
        chk = check_items(f"G0_qs{st + 1}", st + 2, late) if st < 31 else check_items("G0_qfree", 32, late, F_FREE)
        for qt in range(9):
            k = 9 * st + qt
            m = []
            for t in range(4):
                c = "0" if st == 0 else vr(ACC(t, qt))
                m.append(f"{MF} {vr(ACC(t, qt))}, {vr(FA(p, t))}, {vr(FB(k))}, {c}")
            fill = []
            nk = k + DB
            c0 = 0 if st < 31 else 5
            if qt == c0:
                fill.append(chk[0])
            if qt == c0 + 3:
                fill.append(chk[2])
            if nk < 288:
                fill.append(b_read(nk))
            if qt == 1 and st & 1:
                fill.append(f"v_mov_b32 v{FD}, {st + 1}")
            if qt == 2 and st & 1:
                fill.append(f"ds_write_b32 v{FA_}, v{FD} offset:{F_FREE}")
            if qt == c0 + 2:
                fill.append(chk[1])
            if 3 <= qt < 7:
                fill += ar[2 * (qt - 3): 2 * (qt - 3) + 2]
            if st == 31 and qt >= 2:
                conv += qconv(qt - 2)
                fill += conv[:10]
                del conv[:10]
            emit(weave(m, [x for x in fill if kind_of(x) == "v"], [x for x in fill if kind_of(x) == "d"],
                       at={0: [x for x in fill if kind_of(x) == "s"]}))
            if int(OPT["qnop"]):
                e(f"s_nop {OPT['qnop']}")
    stamp(e, 2)
    conv += qconv(7) + qconv(8)
    done = 9 - (len(conv) + 23) // 24
    wr = lambda qt: [f"ds_write_b64 v{QW}, {vr(ACC(t, qt), 2)} offset:{4096 * qt + 512 * t}" for t in range(4)]
    for qt in range(done):
        emit(wr(qt))
    for qt in range(done, 9):
        n = len(conv) - 24 * (8 - qt)
        emit(conv[:n])
        del conv[:n]
        emit(wr(qt))
    e(f"v_mov_b32 v{FD}, 1")
    e(f"ds_write_b32 v{FA_}, v{FD} offset:{F_GB}")
    blocking_poll4(e, "G0_gb0", FQ, F_GB, PL, 1)

    MS = OPT["msum"]
    QA, SA = 253, 254
    e(f"s_lshl_b32 s44, s{W}, 13")
    e(f"s_add_u32 s44, s44, {QIA}")
    e(f"v_lshl_add_u32 v{QA}, v{LANE}, 4, s44")
    e(f"s_lshl_b32 s44, s{W}, 11")
    e(f"v_lshl_add_u32 v{SA}, v{LANE}, 4, s44")
    q_reads = lambda hd: [f"ds_read_b128 {vr(Q(qt, u))}, v{QA} offset:{(QIB - QIA) * hd + 4096 * qt + 1024 * u}"
                          for u in range(4) for qt in range(2)]
    emit(q_reads(0))
    e(f"s_mov_b32 s50, {f32bits(THR):#x}")
    e("s_mov_b32 s42, 65")
    for r in range(4):
        e(f"v_mov_b32 v{ONES + r}, 0x3f803f80")
    blocking_poll4(e, "G0_k0", FQ, F_FULL, PL, 34)
    stamp(e, 3)
    L = lambda j, qt: LS(qt) if MS else LS(qt) + j // 8

    def k_read(j, kt, u, f):
        return [f"ds_read_b128 {vr(F(f))}, v{AK(u)} offset:{KS + 16384 * (j % 3) + 4096 * kt} ; f{f}"]

    def v_read(j, s, T, f):
        return [f"ds_read_b64_tr_b16 {vr(F(f) + 2 * ee, 2)}, v{AV(T)} offset:{16384 * (j % 3) + 4096 * (2 * s + ee)} ; f{f}" for ee in range(2)]

    def qk(j, kt, u, f):
        par = j & 1
        c0 = lambda qt: "0" if j % 8 == 0 else vr(NEGM(qt))
        return [f"{MF} {vr(S(par, kt, qt))}, {vr(F(f))}, {vr(Q(qt, u))}, {c0(qt) if u == 0 else vr(S(par, kt, qt))} ; f{f}"
                for qt in range(2)]

    def pv(j, s, T, f):
        c = lambda r: "0" if j % 8 == 0 and s == 0 else vr(r)
        out = [f"{MF} {vr(O(qt, T))}, {vr(F(f))}, {vr(S(j & 1, 2 * s, qt))}, {c(O(qt, T))} ; f{f}" for qt in range(2)]
        if MS and T in (3, 5):
            qt = T // 4
            out.append(f"{MF} {vr(LS(qt))}, {vr(ONES)}, {vr(S(j & 1, 2 * s, qt))}, {c(LS(qt))}")
        return out

    def maxes(j):
        out = []
        for kt in range(4):
            for h in range(2):
                for qt in range(2):
                    s = S(j & 1, kt, qt) + 2 * h
                    if kt == 0 and h == 0:
                        out.append(f"v_max_f32 v{TMP(qt)}, v{s}, v{s + 1}")
                    else:
                        out.append(f"v_max3_f32 v{TMP(qt)}, v{s}, v{s + 1}, v{TMP(qt)}")
        return out

    def softmax(j, s):
        out = []
        for qt in range(2):
            a, b = S(j & 1, 2 * s, qt), S(j & 1, 2 * s + 1, qt)
            regs = [a, a + 1, a + 2, a + 3, b, b + 1, b + 2, b + 3]
            ex = [f"v_exp_f32 v{r}, v{r}" for r in regs]
            cv = [f"v_cvt_pk_bf16_f32 v{a + k}, v{regs[2 * k]}, v{regs[2 * k + 1]}" for k in range(4)]
            if MS:
                out += [ex[0], ex[1], ex[2], cv[0], ex[3], ex[4], cv[1], ex[5], ex[6], cv[2], ex[7]]
                out += [cv[3]] if qt else []
                if qt:
                    out.insert(12, last_cv)
                last_cv = cv[3]
                continue
            l = L(j, qt)
            ad = [f"v_add_f32 v{l}, v{l}, v{r}" for r in regs]
            if j % 8 == 0 and s == 0:
                ad[0] = f"v_mov_b32 v{l}, v{regs[0]}"
            out += [ex[0], ex[1], ex[2], ad[0], ex[3], ad[1], cv[0], ex[4], ad[2], ex[5], ad[3], cv[1],
                    ex[6], ad[4], ex[7], ad[5], cv[2], ad[6], ad[7], cv[3]]
        return out

    def reduce2(op, xs, ts):
        out = []
        for sw in ("v_permlane32_swap_b32", "v_permlane16_swap_b32"):
            out += [f"v_mov_b32 v{t}, v{x}" for x, t in zip(xs, ts)]
            out += [f"{sw} v{t}, v{x}" for x, t in zip(xs, ts)]
            out += [f"{op} v{x}, v{x}, v{t}" for x, t in zip(xs, ts)]
        return out

    def first(j):
        out = reduce2("v_max_f32", [TMP(0), TMP(1)], [NEGM(0), NEGM(1)])
        for qt in range(2):
            out += [f"v_sub_f32 v{NEGM(qt) + r}, 0, v{TMP(qt)}" for r in range(4)]
        for kt in range(4):
            for qt in range(2):
                out += [f"v_sub_f32 v{S(j & 1, kt, qt) + r}, v{S(j & 1, kt, qt) + r}, v{TMP(qt)}" for r in range(4)]
        return out

    def epilogue(hd):
        j = 8 * hd
        out = []
        if not MS:
            out += reduce2("v_add_f32", [L(j, 0), L(j, 1)], [RL(0), RL(1)])
        out += [f"v_rcp_f32 v{RL(qt)}, v{L(j, qt)}" for qt in range(2)]
        for u in range(4):
            for qt in range(2):
                a = O(qt, 2 * u)
                out += [f"v_mul_f32 v{a + r}, v{a + r}, v{RL(qt)}" for r in range(8)]
                out += [f"v_cvt_pk_bf16_f32 v{a + k}, v{a + 2 * k}, v{a + 2 * k + 1}" for k in range(4)]
                out.append(f"s_mov_b32 s45, {36864 * hd + 9216 * u}")
                out.append(f"buffer_store_dwordx4 {vr(a)}, v{SA}, {sr(SO)}, s45 offen offset:{1024 * qt} {OPT['ostore']}")
        return out

    def group_wait(f):
        def w():
            regs = set(f"v{r}" for i in range(4) for r in range(F(f + i), F(f + i) + 4))
            lg = None
            for i, rs in enumerate(e.st.lgkm):
                if rs & regs:
                    lg = len(e.st.lgkm) - 1 - i
            if lg is not None:
                e.wait(lgkm=lg)
        return w

    segs = [("k", 0, 0), ("k", 0, 1)]
    for j in range(16):
        if j < 15:
            segs += [("k", j + 1, 0), ("k", j + 1, 1)]
        segs += [("v", j, 0), ("v", j, 1)]
    sidx = lambda kind, j: (0 if j == 0 else 2 * j - 1) if kind == "k" else 2 * j + 2

    def seg_reads(n):
        kind, j, h = segs[n]
        out = []
        for i in range(8):
            out += k_read(j, 2 * h + i // 4, i % 4, 8 * n + i) if kind == "k" else v_read(j, h, i, 8 * n + i)
        return out

    def split_cost(items, frac):
        tot = sum(cost_of(x) for x in items)
        acc = 0
        for i, x in enumerate(items):
            if acc >= tot * frac:
                return items[:i], items[i:]
            acc += cost_of(x)
        return items, []

    slow_states = {0: [], 1: []}
    emit(seg_reads(0))
    group_wait(0)()
    rel = f"ds_write_b32 v{FA_}, v{FD} offset:{F_FREE}"
    pending_br = None
    for n, (kind, j, h) in enumerate(segs):
        it = j - 1 if kind == "k" else j
        if OPT["trace0"] and it >= 0 and (kind, h) == (("k", 0) if it < 15 else ("v", 0)):
            if it > 0:
                e.raw(f"    v_writelane_b32 v255, s90, {it - 1}")
            e("s_memtime s[90:91]")
        m = []
        gapof = []
        for i in range(8):
            gapof.append(len(m))
            m += qk(j, 2 * h + i // 4, i % 4, 8 * n + i) if kind == "k" else pv(j, h, i, 8 * n + i)
        rd = seg_reads(n + 1) if n + 1 < len(segs) else []
        at = {gapof[4] - 1: [group_wait(8 * n + 4)]}
        if n + 1 < len(segs):
            at[len(m) - 1] = [group_wait(8 * n + 8)]
        valu, pre = [], []
        if it >= 0:
            if kind == "k":
                body = softmax(it, 0)
                a1, rest1 = split_cost(softmax(it, 1), 0.30 if MS else 0.40)
                if it == 8:
                    body = epilogue(0) + body
                    a1, rest1 = [], softmax(it, 1)
                x0, x1 = split_cost(body + a1, 0.56)
                valu = x0 if h == 0 else x1
            elif h == 0:
                if it == 15:
                    pre = softmax(it, 0)
                    rest1 = softmax(it, 1)
                valu = list(rest1)
                if it == 7:
                    valu += maxes(8)
            else:
                if it == 7:
                    valu = first(8)
                elif it < 15:
                    valu = maxes(it + 1) + [f"v_max_f32 v{TMP(2)}, v{TMP(0)}, v{TMP(1)}", f"v_cmp_lt_f32 vcc, s50, v{TMP(2)}"]
                if it == 6:
                    rd = interleave(rd, q_reads(1))
        if h == 0 and n + 2 < len(segs):
            k2, j2, _ = segs[n + 2]
            need = 33 + sidx(k2, j2)
            valu = valu + [f"v_mov_b32 v{FD}, {33 + sidx(kind, j)}"]
            if need > 34:
                chk = check_items(f"G0_x{n}", need if need <= 64 else "s42", late, pre=rel)
                at[gapof[3]] = [chk[0]]
                valu = valu + [chk[1]]
                pending_br = [chk[2], rel]
            else:
                pending_br = [rel]
        elif h == 1 and pending_br:
            at[0] = pending_br
            pending_br = None
        if it == int(OPT["dit"]) and kind == "k" and h == 1:
            at[2] = [f"v_mov_b32 v{TMP(2)}, 1"]
            at[4] = [lambda: e.wait(vm=0), f"ds_write_b32 v{FA_}, v{TMP(2)} offset:{F_DONE0}"]
        emit(pre)
        guard = kind == "v" and h == 1 and it < 15 and it != 7
        emit(weave(m, valu, rd, at=at, hi=len(m) - (2 if guard else 0)))
        if it == -1 and h == 1:
            emit(maxes(0) + first(0))
        if guard:
            nm = f"G0_g{it}"
            e(f"s_cbranch_vccnz {nm}")
            snap = e.snapshot()
            slow_states[(it + 1) & 1].append(snap)
            e.label(nm + "_ret")

            def tramp(nm=nm, snap=snap, it=it):
                e.restore(snap)
                e.label(nm)
                e(f"s_call_b64 s[38:39], G0_slow{(it + 1) & 1}{it // 8 if not MS else 0}")
                e(f"s_branch {nm}_ret")
            late.append(tramp)
        if it == 7 and kind == "v" and h == 1:
            stamp(e, 4)
    pt(e, True)
    e(f"v_mov_b32 v{PL + 1}, 2")
    e(f"ds_write_b32 v{FA_}, v{PL + 1} offset:{F_GB}")
    emit(epilogue(1))
    if OPT["trace0"]:
        e.raw(f"    v_writelane_b32 v255, s90, 15")
        e("s_lshl_b32 s58, s2, 2")
        e(f"s_add_u32 s58, s58, s{W}")
        e("s_lshl_b32 s58, s58, 9")
        e(f"s_add_u32 s58, s58, {STAMP_OFF + (2 << 20)}")
        e(f"v_mbcnt_lo_u32_b32 v66, -1, 0")
        e(f"v_mbcnt_hi_u32_b32 v66, -1, v66")
        e(f"v_lshl_add_u32 v66, v66, 2, s58")
        e(f"global_store_dword v66, v255, s[36:37]")
        e(f"global_store_dword v66, v255, s[36:37] offset:256")
    CW, CG, CM = 8, 16, 12
    ACC = lambda mt, t: 16 * mt + 4 * t
    FB = lambda p, mt: 144 + 36 * p + 4 * mt
    FA = lambda p, t: 216 + 16 * p + 4 * t
    AA = lambda t: 248 + t
    VA, PH, BR, PG = 252, 253, 254, 255
    LN, FQ2 = 64, 65
    e("s_load_dwordx4 s[28:31], s[0:1], 32")
    e("s_load_dwordx2 s[32:33], s[0:1], 48")
    out_tile_ids(e, True)
    e(f"v_mbcnt_lo_u32_b32 v{LN}, -1, 0")
    e(f"v_mbcnt_hi_u32_b32 v{LN}, -1, v{LN}")
    e(f"v_mov_b32 v{FQ2}, v{FQ}")
    e(f"v_mov_b32 v{PH}, v{FA_}")
    wo_voffset(e, VA, LN, 66)
    e(f"s_lshl_b32 s41, s{W}, 12")
    e(f"s_add_u32 s41, s41, {AR0}")
    wo_read_addr(e, AA, LN, 66, "s41")
    e(f"s_mul_i32 s44, s{W}, 9216")
    e(f"v_lshl_add_u32 v{BR}, v{LN}, 4, s44")
    e.wait(lgkm=0)
    wo_dbg_srds(e, CW, CG)
    e(f"s_mul_i32 s44, s2, 36864")
    e(f"s_add_u32 s44, s44, {MBOX}")
    e(f"s_add_u32 s{CM}, s36, s44")
    e(f"s_addc_u32 s{CM + 1}, s37, 0")
    e(f"s_mov_b32 s{CM + 2}, 36864")
    e(f"s_mov_b32 s{CM + 3}, 0x20000")
    blocking_poll4(e, "G0_l0", FQ2, F_GB, PG, 2)
    blocking_poll4(e, "G0_l1", FQ2, F_GB1, PG, 3)
    dma_a = lambda pos: wo_dma(pos, f"s_add_u32 m0, s41, {16384 * (pos & 1)}", VA, CW)
    a_reads = lambda pos: [f"ds_read_b64_tr_b16 {vr(FA(pos & 1, t) + 2 * ee, 2)}, v{AA(t)} offset:{16384 * (pos & 1) + 2048 * ee}"
                           for t in range(4) for ee in range(2)]
    b_reads = lambda pos: [f"ds_read_b128 {vr(FB(pos & 1, mt))}, v{BR} offset:{36864 * (pos & 1) + 1024 * mt}" for mt in range(9)]
    free_b = lambda pos: [f"v_mov_b32 v{PG}, {pos + 1}", f"ds_write_b32 v{PH}, v{PG} offset:{F_FREEB}"]
    pt(e)
    emit(dma_a(0) + dma_a(1))
    e(f"v_mov_b32 v{PG}, 2")
    e.wait(vm=8)
    e(f"ds_write_b32 v{PH}, v{PG} offset:{F_DONE0}")
    stamp(e, 5)
    e(f"s_setprio {OPT['oprio'].split(',')[1]}")
    blocking_poll4(e, "G0_b0", PH, F_FULLB, PG, 1)
    e.wait(vm=4)
    emit(a_reads(0) + b_reads(0) + free_b(0))
    def split_dma(items):
        out, cur = [], []
        for it in items:
            cur.append(it)
            if isinstance(it, tuple):
                out.append(cur)
                cur = []
        return out

    def gbar(k):
        e(f"v_mov_b32 v{PG}, {k}")
        e(f"ds_write_b32 v{PH}, v{PG} offset:{F_GB}")
        blocking_poll4(e, f"G0_gb{k}", FQ2, F_GB, PG, k)

    c0 = int(OPT["g0chk"])
    for pos in range(NM1):
        p = pos & 1
        pt(e)
        e.wait(lgkm=0)
        dm = split_dma(dma_a(pos + 2)) if pos + 2 < NM1 else []
        if not OPT["aspread"]:
            for d in dm:
                emit(d)
            dm = []
        nxt = pos + 1 < NM1
        if not nxt:
            e(f"s_setprio {OPT['xprio']}")
            LN, FQ2 = FA(p ^ 1, 0), FA(p ^ 1, 0) + 1
            e(f"v_mbcnt_lo_u32_b32 v{LN}, -1, 0")
            e(f"v_mbcnt_hi_u32_b32 v{LN}, -1, v{LN}")
            e(f"v_and_b32 v{FQ2}, 3, v{LN}")
            e(f"v_lshlrev_b32 v{FQ2}, 2, v{FQ2}")
            e(f"v_add_u32 v{FQ2}, {FLG}, v{FQ2}")
            red_write_addr(e, AA, LN)
            gbar(3)
        chk = word_check(e, late, f"G0_b{pos + 1}", PH, F_FULLB, PG, pos + 2) if nxt else []
        ar, br = (a_reads(pos + 1), b_reads(pos + 1)) if nxt else ([], [])
        for mt in range(9):
            m = [f"{MF} {vr(ACC(mt, t))}, {vr(FA(p, t))}, {vr(FB(p, mt))}, {'0' if pos == 0 else vr(ACC(mt, t))}" for t in range(4)]
            fl = []
            if nxt:
                a0 = 1 if c0 >= 3 else c0 + 6
                if mt == a0:
                    k = e.vm_needed_for_tags(lambda t: t[0] == "w" and t[1] <= pos + 1)
                    if k is not None:
                        e.wait(vm=k)
                if a0 <= mt < a0 + 2:
                    fl = ar[4 * (mt - a0): 4 * (mt - a0 + 1)]
                if mt == c0:
                    fl = chk[:1]
                if mt == c0 + 1:
                    fl = ["s_nop 0", chk[1], "s_nop 0", chk[2]]
                if c0 + 2 <= mt < c0 + 5:
                    fl = br[3 * (mt - c0 - 2): 3 * (mt - c0 - 1)]
                if mt == c0 + 5:
                    fl = free_b(pos + 1)
            elif mt >= 2:
                fl = [f"ds_write_b128 v{AA(c)}, {vr(ACC(mt - 2, c))} offset:{1024 * (mt - 2)}" for c in range(1, 4)]
            emit(interleave(m, fl))
            if dm and mt % 2 == 0:
                emit(dm.pop(0))
    pt(e)
    e(f"s_setprio {OPT['rprio']}")
    for mt in (7, 8):
        for c in range(1, 4):
            e(f"ds_write_b128 v{AA(c)}, {vr(ACC(mt, c))} offset:{1024 * mt}")
    gbar(4)
    pt(e)
    for mt in range(9):
        for c in range(1, 4):
            e(f"ds_read_b128 {vr(ACC(mt, c))}, v{AA(0)} offset:{9216 * (c - 1) + 1024 * mt}")
    e(f"v_mov_b32 v{PG}, 5")
    e(f"ds_write_b32 v{PH}, v{PG} offset:{F_GB}")
    e(f"s_setprio {OPT['xprio']}")
    e("s_mov_b32 s55, 4096")
    for mt in range(9):
        a = ACC(mt, 0)
        for r in range(4):
            e(f"v_add_f32 v{a + r}, v{a + r}, v{ACC(mt, 1) + r}")
            e(f"v_add_f32 v{ACC(mt, 2) + r}, v{ACC(mt, 2) + r}, v{ACC(mt, 3) + r}")
        for r in range(4):
            e(f"v_add_f32 v{a + r}, v{a + r}, v{ACC(mt, 2) + r}")
        d = FB(0, mt // 2) + 2 * (mt & 1)
        e(f"v_cvt_pk_bf16_f32 v{d}, v{a}, v{a + 1}")
        e(f"v_cvt_pk_bf16_f32 v{d + 1}, v{a + 2}, v{a + 3}")
        if mt & 1:
            e(f"buffer_store_dwordx4 {vr(FB(0, mt // 2))}, v{BR}, {sr(CM)}, 0 offen offset:{1024 * (mt // 2)} sc1")
        elif mt == 8:
            e(f"buffer_store_dwordx4 {vr(FB(0, 4))}, v{BR}, {sr(CM)}, s55 offen sc1")
    pt(e)
    e.wait(vm=0)
    pt(e)
    e("s_lshl_b32 s44, s34, 12")
    e("s_lshl_b32 s45, s35, 7")
    e("s_add_u32 s44, s44, s45")
    e(f"s_lshl_b32 s45, s{W}, 2")
    e("s_add_u32 s44, s44, s45")
    e(f"s_add_u32 s44, s44, {FLAGS + 2048}")
    e(f"v_mov_b32 v0, s44")
    e(f"v_mov_b32 v1, 1")
    e(f"v_xor_b32 v2, 0x80, v0")
    e("s_mov_b64 exec, 1")
    e(f"global_store_dword v0, v1, s[36:37] sc1")
    e("s_mov_b64 exec, -1")
    flag_wait(e, "G0_gw", 2, PG, 4)
    e(f"v_mov_b32 v{PG}, 1")
    e(f"ds_write_b32 v{PH}, v{PG} offset:{F_XRDY}")
    e.label("G0_exit")
    pt(e)
    pt_store(e, 0)
    stamp_store(e, 6, 36, STAMP_OFF, ["s_lshl_b32 s58, s2, 2", f"s_add_u32 s58, s58, s{W}"])
    e("s_endpgm")
    for f in late:
        f()
    for par in range(2):
        for hd in range(1 if MS else 2):
            st = joined(e, slow_states[par])
            st.lgkm, st.vm = [], []
            e.restore(st)
            e.label(f"G0_slow{par}{hd}")
            emit(reduce2("v_max_f32", [TMP(0), TMP(1)], [RL(0), RL(1)]))
            for qt in range(2):
                t = TMP(qt)
                e(f"v_max_f32 v{t}, 0, v{t}")
                for r in range(4):
                    e(f"v_sub_f32 v{NEGM(qt) + r}, v{NEGM(qt) + r}, v{t}")
                for kt in range(4):
                    for r in range(4):
                        e(f"v_sub_f32 v{S(par, kt, qt) + r}, v{S(par, kt, qt) + r}, v{t}")
                e(f"v_exp_f32 v{t}, -v{t}")
                for r in range(4 if MS else 1):
                    e(f"v_mul_f32 v{L(8 * hd, qt) + r}, v{L(8 * hd, qt) + r}, v{t}")
                for r in range(32):
                    e(f"v_mul_f32 v{O(qt, 0) + r}, v{O(qt, 0) + r}, v{t}")
            e("s_nop 1")
            e("s_setpc_b64 s[38:39]")


def loader_group(e):
    emit = mk_emit(e)
    SX, SW, SK, SV, SO = 4, 8, 12, 16, 20
    kvf, xf, wf = OPT["kvflag"], OPT["xflag"], OPT["wflag"]
    BUF = lambda c: 4 * c
    O8 = lambda T: 128 + 4 * T
    Q8 = lambda u: 160 + 4 * u
    S8 = 176
    KF = lambda u: 180 + 4 * u
    VF = lambda T: 196 + 2 * T
    NEGM, L8, TM, TM2 = 212, 216, 217, 218
    AK = lambda u: 220 + u
    AV = lambda T: 224 + T
    VXM = lambda i: 232 + i
    VX8 = 234
    VWQ = lambda i: 235 + i
    VKV = lambda i: 237 + (i & 1)
    LANE, FQ, FW, FD, WA = 239, 240, 241, 242, 243
    T0, T1, T2, T3 = 244, 245, 246, 247
    PL, DUMMY = 248, 219
    late = []
    e(f"v_and_b32 v{LANE}, 63, v0")
    g4 = T0
    e(f"v_lshrrev_b32 v{g4}, 4, v{LANE}")
    e(f"v_and_b32 v{T1}, 2, v{g4}")
    e(f"v_and_b32 v{T2}, 3, v{LANE}")
    e(f"v_xor_b32 v{T1}, v{T1}, v{T2}")
    e(f"v_lshlrev_b32 v{T1}, 4, v{T1}")
    e(f"v_lshrrev_b32 v{T2}, 2, v{LANE}")
    e(f"v_lshl_add_u32 v{T1}, v{T2}, 11, v{T1}")
    e(f"s_lshl_b32 s38, s{W}, 16")
    e(f"v_add_u32 v{VXM(0)}, s38, v{T1}")
    e(f"v_add_u32 v{VXM(1)}, {32768 - 1024}, v{VXM(0)}")
    e(f"v_add_u32 v{VX8}, {128 * 2048}, v{T1}")
    e(f"v_and_b32 v{T1}, 15, v{LANE}")
    e(f"v_lshlrev_b32 v{T2}, 1, v{g4}")
    e(f"v_xor_b32 v{T1}, v{T1}, v{T2}")
    e(f"s_and_b32 s39, s{W}, 1")
    e(f"s_lshl_b32 s40, s39, 3")
    e(f"v_xor_b32 v{T2}, s40, v{T1}")
    e(f"v_lshlrev_b32 v{T2}, 4, v{T2}")
    e(f"v_lshl_add_u32 v{T3}, v{g4}, 13, v{T2}")
    e(f"v_add_u32 v{VWQ(0)}, s38, v{T3}")
    e(f"v_add_u32 v{VWQ(1)}, {32768 - 1024}, v{VWQ(0)}")
    e(f"s_lshl_b32 s41, s{W}, 12")
    e(f"v_lshlrev_b32 v{T1}, 4, v{T1}")
    e(f"v_lshl_add_u32 v{T1}, v{g4}, 8, v{T1}")
    e(f"v_add_u32 v{VKV(0)}, s41, v{T1}")
    e(f"v_xor_b32 v{VKV(1)}, 0x80, v{VKV(0)}")
    e(f"s_lshl_b32 s42, s{W}, 11")
    e("s_lshr_b32 s53, s26, 1")
    e("s_add_u32 s53, s53, s25")
    e("s_and_b32 s53, s53, 3")
    if OPT["xoff"]:
        xa, xb = [int(v) for v in OPT["xoff"].split(",")]
        e("s_and_b32 s47, s2, 1")
        e(f"s_mul_i32 s47, s47, {xa}")
        e("s_bfe_u32 s44, s2, 0x20001")
        e(f"s_mul_i32 s44, s44, {xb}")
        e("s_add_u32 s47, s47, s44")
    e.wait(lgkm=0)
    e("s_mul_i32 s44, s25, 294912")
    e(f"s_add_u32 s{SX}, s28, s44")
    e(f"s_addc_u32 s{SX + 1}, s29, 0")
    e(f"s_mov_b32 s{SX + 2}, 294912")
    e(f"s_mov_b32 s{SX + 3}, 0x20000")
    e("s_lshl_b32 s44, s26, 8")
    e(f"s_add_u32 s{SW}, s34, s44")
    e(f"s_addc_u32 s{SW + 1}, s35, 0")
    e(f"s_sub_u32 s{SW + 2}, 8388608, s44")
    e(f"s_mov_b32 s{SW + 3}, 0x20000")

    QLEAD = int(OPT["qlead"])

    def unit_of(P):
        post = ["s_add_u32 s46, s46, s47", "s_and_b32 s46, s46, 15"] if OPT["xoff"] else []
        if not QLEAD:
            return [f"s_mov_b32 s46, {P}"] + post
        if OPT["first0"]:
            orders = []
            for r in range(4):
                o = [r] + [(tp + 4 if (tp & 3) == r else tp) if tp < 12 else (tp + 1 if r <= tp - 12 else tp) for tp in range(15)]
                orders.append([15] + [u for u in o if u != 15])
            vals = [o[P] for o in orders]
            out = [f"s_mov_b32 s46, {vals[0]}"]
            for r in range(1, 4):
                if vals[r] != vals[0]:
                    out += [f"s_cmp_eq_u32 s53, {r}", f"s_cselect_b32 s46, {vals[r]}, s46"]
            return out + post
        if P == 0:
            return ["s_mov_b32 s46, s53"] + post
        tp = P - 1
        if tp < 12:
            return [f"s_cmp_eq_u32 s53, {tp & 3}", f"s_cselect_b32 s46, {tp + 4}, {tp}"] + post
        return [f"s_cmp_le_u32 s53, {tp - 12}", f"s_cselect_b32 s46, {tp + 1}, {tp}"] + post

    def gap(st, k):
        g = int(OPT["gap"])
        if st < 2 or g == 0 or (g == 4 and k == 0):
            return []
        return [lambda: e.raw(f"    global_load_dword v{DUMMY}, v{FD}, s[48:49]")]

    def issue_step(st):
        out = []
        P = st >> 1
        if st % 2 == 0:
            xs = XR + 18432 * (P % 3)
            out += unit_of(P)
            out += ["s_lshl_b32 s50, s46, 7", "s_add_u32 s51, s50, 64", "s_lshl_b32 s46, s46, 19"]

            def x8():
                e(f"s_cmp_eq_u32 s{W}, {P & 3}")
                e(f"s_cbranch_scc0 G1_x8s{st}")
                for hf in range(2):
                    e.raw(f"    s_mov_b32 m0, {xs + 9216 * hf + 8192}")
                    e.raw(f"    s_nop 0")
                    e.raw(f"    buffer_load_dwordx4 v{VX8}, {sr(SX)}, s{50 + hf} offen {xf} lds")
                e.label(f"G1_x8s{st}")
            out.append(x8)
            for hf in range(2):
                out.append(f"s_add_u32 m0, s42, {xs + 9216 * hf}")
                out.append((f"buffer_load_dwordx4 v{VXM(0)}, {sr(SX)}, s{50 + hf} offen {xf} lds", ("q", st)))
                out.append((f"buffer_load_dwordx4 v{VXM(1)}, {sr(SX)}, s{50 + hf} offen offset:1024 {xf} lds", ("q", st)))
                out += gap(st, hf)
        for hh in range(2):
            out.append(f"s_add_u32 m0, s42, {WQREG(st) + 8192 * hh}")
            out.append(f"s_add_u32 s45, s46, {262144 * (st & 1) + 256 * hh}")
            out.append((f"buffer_load_dwordx4 v{VWQ(0)}, {sr(SW)}, s45 offen {wf} lds", ("q", st)))
            out.append((f"buffer_load_dwordx4 v{VWQ(1)}, {sr(SW)}, s45 offen offset:1024 {wf} lds", ("q", st)))
            out += gap(st, hh)
        return out

    emit(issue_step(0))
    e("s_lshl_b32 s44, s27, 17")
    e(f"s_add_u32 s{SK}, s30, s44")
    e(f"s_addc_u32 s{SK + 1}, s31, 0")
    e(f"s_mov_b32 s{SK + 2}, 262144")
    e(f"s_mov_b32 s{SK + 3}, 0x20000")
    e(f"s_add_u32 s{SV}, s32, s44")
    e(f"s_addc_u32 s{SV + 1}, s33, 0")
    e(f"s_mov_b32 s{SV + 2}, 262144")
    e(f"s_mov_b32 s{SV + 3}, 0x20000")
    e(f"v_and_b32 v{FQ}, 3, v{LANE}")
    e(f"v_lshlrev_b32 v{FQ}, 2, v{FQ}")
    e(f"v_add_u32 v{FQ}, {FLG}, v{FQ}")
    e(f"s_lshl_b32 s44, s{W}, 2")
    e(f"v_mov_b32 v{FW}, {FLG}")
    e(f"v_add_u32 v{FW}, s44, v{FW}")
    e(f"s_add_u32 s43, s44, {FLG + F_FULL}")
    e("s_getpc_b64 s[54:55]")
    e.raw("G1_pc:")
    e(f"s_sub_u32 s54, s54, G1_pc - {KNAME}")
    e("s_subb_u32 s55, s55, 0")
    e(f"s_add_u32 s48, s54, cnt_table - {KNAME}")
    e("s_addc_u32 s49, s55, 0")
    e("s_lshr_b32 s44, s2, 3")
    e("s_lshl_b32 s44, s44, 2")
    e(f"s_add_u32 s44, s44, s{W}")
    e("s_min_u32 s44, s44, CODE_KB_P")
    e("s_lshl_b32 s44, s44, 10")
    e(f"v_lshl_add_u32 v{T1}, v{LANE}, 4, s44")
    e.raw(f"    global_load_dwordx4 {vr(KF(0))}, v{T1}, s[54:55]")
    o_srd(e, SO)
    e("s_lshl_b32 s44, s27, 6")
    e("s_lshl_b32 s45, s25, 11")
    e("s_add_u32 s44, s44, s45")
    e(f"s_add_u32 s44, s44, {FLAGS}")
    e(f"v_lshlrev_b32 v{T1}, 11, v{LANE}")
    e(f"v_add_u32 v{T1}, s44, v{T1}")
    for r in range(4):
        e(f"v_mov_b32 v{PL + r}, 0")
    e(f"s_cmp_lg_u32 s{W}, 0")
    e("s_cbranch_scc1 G1_noclr")
    e("s_mov_b64 exec, 3")
    e.raw(f"    global_store_dwordx4 v{T1}, {vr(PL)}, s[36:37] sc1")
    e("s_mov_b64 exec, -1")
    e.label("G1_noclr")
    e(f"s_lshl_b32 s44, s{W}, 6")
    e(f"s_add_u32 s45, s41, {VS}")
    kv_addr_setup(e, LANE, AK, AV, (T0, T1, T2, T3), "s44", "s41", "s45")
    e(f"v_lshl_add_u32 v{WA}, v{LANE}, 4, s41")
    if OPT["mall"]:
        e("s_load_dwordx2 s[54:55], s[0:1], 32")
        e(f"v_and_b32 v{T0}, 31, v{LANE}")
        e(f"v_lshl_add_u32 v{S8}, v{T0}, 7, s41")
        e(f"v_lshrrev_b32 v{T0}, 5, v{LANE}")
        e(f"v_lshl_add_u32 v{S8}, v{T0}, 14, v{S8}")
        e("s_lshl_b32 s44, s2, 2")
        e(f"s_add_u32 s44, s44, s{W}")
        e("s_lshl_b32 s44, s44, 13")
        e(f"v_lshl_add_u32 v{S8 + 1}, v{LANE}, 7, s44")
        e.wait(lgkm=0)
    e("s_barrier")

    def publish(val):
        e(f"v_mov_b32 v{FD}, {4 * val}")
        e("s_mov_b32 m0, s43")
        e("s_mov_b64 exec, 1")
        e(f"global_load_lds_dword v{FD}, s[48:49]", ("f", val))
        e("s_mov_b64 exec, -1")

    trace_n = [0]

    def trace():
        if OPT["trace"]:
            e("s_memrealtime s[94:95]")
            e("s_memtime s[90:91]")
            e.wait(lgkm=0)
            e(f"v_writelane_b32 v254, s94, {trace_n[0]}")
            e(f"v_writelane_b32 v255, s90, {trace_n[0]}")
            trace_n[0] += 1

    def need_free(nm, need):
        if need > 64:
            e(f"s_mov_b32 s58, {need}")
            need = "s58"
        blocking_poll4(e, nm, FQ, F_FREE, PL, need)
        trace()

    if OPT["abl_noload"]:
        e.wait(vm=0)
        e(f"v_mov_b32 v{FD}, 100")
        e(f"ds_write_b32 v{FW}, v{FD} offset:{F_FULL}")
        e("s_endpgm")

    tile_of = lambda n: (False, 0) if n == 0 else ((False, (n + 1) // 2) if n & 1 else (True, n // 2 - 1))
    NPF = int(OPT["npf"])
    mall = [x for x in OPT["mall"].split(",") if x]
    mt_ = set()
    for x in mall:
        if x != "W":
            mt_ |= {(x[0] == "V", int(x[1:])), (x[0] == "V", int(x[1:]) + 1)}
    allp = [(n, c) for n in range(int(OPT["regfrom"]), int(OPT["regto"])) for c in range(4) if n != 31 and tile_of(n) not in mt_]
    nreg = 8 * NPF
    regp = [allp[(len(allp) * k + len(allp) // 2) // nreg] for k in range(nreg)] if nreg else []
    if OPT["regtile"]:
        tl = sorted({n for n, c in allp})
        regp = [(tl[(len(tl) * k + len(tl) // 2) // (nreg // 4)], c) for k in range(nreg // 4) for c in range(4)]
    assert len(set(regp)) == nreg

    def piece_src(n, c):
        isv, j = tile_of(n)
        return (SV if isv else SK, 16384 * j)

    def piece_slot(n, c):
        isv, j = tile_of(n)
        return (VS if isv else KS) + 16384 * (j % 3)

    def pf_batch(bt, st):
        for k in range(8 * bt, 8 * bt + 8):
            p, c = regp[k]
            srd, off = piece_src(p, c)
            e.raw(f"    s_mov_b32 s52, {off}")
            e.raw(f"    buffer_load_dwordx4 {vr(BUF(k))}, v{VKV(c)}, {sr(srd)}, s52 offen offset:{1024 * (c & 3)} {kvf}")

    def fill(n):
        for c in range(4):
            if (n, c) in regp and "nowr" not in OPT["abl"]:
                off = piece_slot(n, c) + 1024 * c
                if off < 65536:
                    e(f"ds_write_b128 v{WA}, {vr(BUF(regp.index((n, c))))} offset:{off}")
                else:
                    e(f"ds_write_b128 v{T3}, {vr(BUF(regp.index((n, c))))} offset:{off - 49152}")
        srd, off = piece_src(n, 0)
        e(f"s_add_u32 m0, s41, {piece_slot(n, 0)}")
        e(f"s_mov_b32 s52, {off}")
        for c in range(4):
            if (n, c) not in regp and not ("nodma" in OPT["abl"] and n > 6):
                e(f"buffer_load_dwordx4 v{VKV(c)}, {sr(srd)}, s52 offen offset:{1024 * c} {kvf} lds", ("a", n))
                if OPT["agap"]:
                    e(f"global_load_dword v{DUMMY}, v{FD}, s[48:49]".replace(f"v{DUMMY},", f"v{DUMMY},"), ("g", n))
                    e.st.vm[-1] = (set(), ("g", n))

    def landed(p):
        n = e.vm_needed_for_tags(lambda t: t[0] == "a" and t[1] <= p)
        if n is not None:
            e.wait(vm=n)

    stag = [int(x) for x in OPT["pfstag"].split(",")]
    pf0, pfd = int(OPT["pf0"]), int(OPT["pfd"])
    publish(1)
    emit(issue_step(1))
    publish(2)
    stamp(e, 1)
    for st in range(2, 32):
        if st >= 6 and st % 2 == 0:
            need_free(f"G1_fq{st}", st - 4)
        emit(issue_step(st))
        publish(st + 1)
        for bt in range(NPF):
            for r in range(4):
                if pf0 + pfd * bt + stag[r] == st:
                    assert st < 31
                    e(f"s_cmp_eq_u32 s53, {r}")
                    e(f"s_cbranch_scc0 G1_pf{bt}_{r}")
                    pf_batch(bt, st)
                    e.label(f"G1_pf{bt}_{r}")
        for bt, x in enumerate(mall):
            for r in range(4):
                if int(OPT["mall0"]) + int(OPT["malld"]) * bt + stag[r] == st:
                    e(f"s_cmp_eq_u32 s53, {r}")
                    e(f"s_cbranch_scc0 G1_ml{bt}_{r}")
                    if x == "W":
                        e.raw(f"    global_load_dword v{DUMMY}, v{S8 + 1}, s[54:55]")
                    else:
                        e.raw(f"    s_mov_b32 s52, {16384 * int(x[1:])}")
                        e.raw(f"    buffer_load_dword v{DUMMY}, v{S8}, {sr(SV if x[0] == 'V' else SK)}, s52 offen")
                    e.label(f"G1_ml{bt}_{r}")
    e(f"v_add_u32 v{T3}, 49152, v{WA}")
    stamp(e, 2)
    early = int(OPT["regfrom"]) < 5
    lw = lambda: e.wait(lgkm=0) if early else None
    need_free("G1_fa0", 28)
    if early:
        e.wait(vm=12)
    fill(0)
    fill(1)
    lw()
    publish(34)
    need_free("G1_fa2", 30)
    fill(2)
    lw()
    publish(35)
    fill(3)
    lw()
    publish(36)
    need_free("G1_fa4", 32)
    fill(4)
    lw()
    publish(37)
    e(f"s_mov_b32 s50, {f32bits(THR):#x}")

    def load_q8(img):
        e(f"s_sub_u32 s44, {img + 32768}, s41")
        e(f"v_add_u32 v{PL}, s44, v{WA}")
        for u in range(4):
            e(f"ds_read_b128 {vr(Q8(u))}, v{PL} offset:{1024 * u}")
        for r in range(4):
            e(f"v_mov_b32 v{NEGM + r}, 0")
        e.wait(lgkm=0)

    slow_states = []

    def qk8_reads(j):
        landed(0 if j == 0 else 2 * j - 1)
        for u in range(4):
            e(f"ds_read_b128 {vr(KF(u))}, v{AK(u)} offset:{KS + 16384 * (j % 3)}")
        return 4

    def hi(tag):
        if tag in OPT["mprio"]:
            e.wait(lgkm=0)
            e("s_setprio 3")

    def lo(tag):
        if tag in OPT["mprio"]:
            e(f"s_setprio {OPT['g1prio']}")

    def qk8_math(j):
        hi("q")
        for u in range(4):
            e(f"{MF} {vr(S8)}, {vr(KF(u))}, {vr(Q8(u))}, {vr(NEGM) if u == 0 else vr(S8)}")
        lo("q")
        e(f"v_max_f32 v{TM}, v{S8}, v{S8 + 1}")
        e(f"v_max3_f32 v{TM}, v{S8 + 2}, v{S8 + 3}, v{TM}")
        if j % 8 == 0:
            lane_reduce(e, "v_max_f32", TM, TM2)
            for r in range(4):
                e(f"v_sub_f32 v{NEGM + r}, 0, v{TM}")
                e(f"v_sub_f32 v{S8 + r}, v{S8 + r}, v{TM}")
            e(f"v_mov_b32 v{L8}, 0")
        else:
            e(f"v_cmp_lt_f32 vcc, s50, v{TM}")
            e("s_nop 1")
            e(f"s_cbranch_vccnz G1_g{j}")
            snap = e.snapshot()
            slow_states.append(snap)
            e.label(f"G1_g{j}_ret")

            def tramp():
                e.restore(snap)
                e.label(f"G1_g{j}")
                e("s_call_b64 s[38:39], G1_slow")
                e(f"s_branch G1_g{j}_ret")
            late.append(tramp)
        for r in range(4):
            e(f"v_exp_f32 v{S8 + r}, v{S8 + r}")
        for r in range(4):
            e(f"v_add_f32 v{L8}, v{L8}, v{S8 + r}")
        e(f"v_cvt_pk_bf16_f32 v{S8}, v{S8}, v{S8 + 1}")
        e(f"v_cvt_pk_bf16_f32 v{S8 + 1}, v{S8 + 2}, v{S8 + 3}")

    def pv8_reads(j):
        landed(2 * j + 2)
        for T in range(8):
            e(f"ds_read_b64_tr_b16 {vr(VF(T), 2)}, v{AV(T)} offset:{16384 * (j % 3)}")
        return 8

    def pv8_math(j):
        hi("p")
        for T in range(8):
            e(f"{MF16} {vr(O8(T))}, {vr(VF(T), 2)}, {vr(S8, 2)}, {'0' if j % 8 == 0 else vr(O8(T))}")
        lo("p")

    X1, X2, X3 = T0, T1, T2

    def merge1(hd):
        lane_reduce(e, "v_add_f32", L8, TM)
        e(f"v_lshlrev_b32 v{X3}, 4, v{LANE}")
        for c in range(1, 4):
            e(f"s_xor_b32 s44, s{W}, {c}")
            e(f"s_mul_i32 s44, s44, 6144")
            e(f"s_add_u32 s44, s44, {MRG + 2048 * (c - 1)}")
            e(f"v_add_u32 v{X1}, s44, v{X3}")
            for k in range(2):
                e(f"ds_write_b128 v{X1}, {vr(O8(2 * c + k))} offset:{1024 * k}")
        e(f"s_lshl_b32 s44, s{W}, 9")
        e(f"s_add_u32 s44, s44, {MRG + 24576}")
        e(f"v_lshl_add_u32 v{X2}, v{LANE}, 3, s44")
        e(f"v_mov_b32 v{NEGM + 1}, v{L8}")
        e(f"v_mov_b32 v{TM2}, {hd + 1}")
        e(f"ds_write_b64 v{X2}, {vr(NEGM, 2)}")
        e(f"ds_write_b32 v{FW}, v{TM2} offset:{F_GB1}")
        for r in range(8):
            e(f"v_mov_b32 v{r}, v{O8(0) + r}")
        e.wait(lgkm=0)

    def merge2(hd):
        ST = lambda c: 32 + 2 * c
        PO = lambda c, k: 8 * c + 4 * k
        e(f"v_lshlrev_b32 v{X3}, 4, v{LANE}")
        blocking_poll4(e, f"G1_gb1{hd}", FQ, F_GB1, PL + 1, hd + 1)
        for c in range(4):
            e(f"s_xor_b32 s44, s{W}, {c}")
            e(f"s_lshl_b32 s44, s44, 9")
            e(f"s_add_u32 s44, s44, {MRG + 24576}")
            e(f"v_lshl_add_u32 v{X2}, v{LANE}, 3, s44")
            e(f"ds_read_b64 {vr(ST(c), 2)}, v{X2}")
        e(f"s_mul_i32 s44, s{W}, 6144")
        e(f"s_add_u32 s44, s44, {MRG}")
        e(f"v_add_u32 v{X1}, s44, v{X3}")
        for c in range(1, 4):
            for k in range(2):
                e(f"ds_read_b128 {vr(PO(c, k))}, v{X1} offset:{2048 * (c - 1) + 1024 * k}")
        if hd == 1:
            e(f"v_mov_b32 v{TM2}, 3")
            e(f"ds_write_b32 v{FW}, v{TM2} offset:{F_GB1}")
        mn = TM
        e(f"v_min_f32 v{mn}, v{ST(0)}, v{ST(1)}")
        e(f"v_min3_f32 v{mn}, v{ST(2)}, v{ST(3)}, v{mn}")
        for c in range(4):
            e(f"v_sub_f32 v{ST(c)}, v{mn}, v{ST(c)}")
        for c in range(4):
            e(f"v_exp_f32 v{ST(c)}, v{ST(c)}")
        e(f"v_mul_f32 v{mn}, v{ST(0)}, v{ST(0) + 1}")
        for c in range(1, 4):
            e(f"v_fma_f32 v{mn}, v{ST(c)}, v{ST(c) + 1}, v{mn}")
        e(f"v_rcp_f32 v{mn}, v{mn}")
        for c in range(4):
            e(f"v_mul_f32 v{ST(c)}, v{ST(c)}, v{mn}")
        for r in range(8):
            e(f"v_mul_f32 v{r}, v{r}, v{ST(0)}")
        for c in range(1, 4):
            for r in range(8):
                e(f"v_fma_f32 v{r}, v{PO(c, 0) + r}, v{ST(c)}, v{r}")
        for k in range(4):
            e(f"v_cvt_pk_bf16_f32 v{k}, v{2 * k}, v{2 * k + 1}")
        e(f"s_mul_i32 s45, s{W}, 9216")
        e(f"s_add_u32 s45, s45, {8192 + 36864 * hd}")
        e(f"buffer_store_dwordx4 {vr(0)}, v{X3}, {sr(SO)}, s45 offen {OPT['ostore']}", ("st", hd))

    def fast_free(nm, need):
        e(f"v_cmp_lt_u32 s[56:57], v{PL}, {need}")
        e("s_cmp_eq_u64 s[56:57], 0")
        e(f"s_cbranch_scc0 {nm}")
        snap = e.snapshot()
        e.label(nm + "_ret")

        def slow():
            e.restore(snap)
            e.label(nm)
            e("s_setprio 0")
            blocking_poll4(e, nm + "_p", FQ, F_FREE, PL, need, sleep=int(OPT["sleep"]))
            e(f"s_setprio {OPT['g1prio']}")
            e(f"s_branch {nm}_ret")
        late.append(slow)
        trace()

    CO, CW, CD, CG = 4, 8, 12, 16
    of = OPT["oflag"]
    acc_regs = list(range(0, 40, 4)) + list(range(112, 216, 4))
    ACC = lambda mt, t: acc_regs[4 * mt + t]
    FB = lambda p, mt: 40 + 36 * p + 4 * mt
    FA = lambda p, t: 216 + 16 * p + 4 * t
    AA = lambda t: 248 + t
    VB, VA, PG, PH = 252, 253, 254, 255

    def c_setup():
        e("s_load_dwordx4 s[28:31], s[0:1], 32")
        e("s_load_dwordx2 s[32:33], s[0:1], 48")
        out_tile_ids(e, False)
        e(f"s_mul_i32 s44, s{W}, 9216")
        e(f"v_lshl_add_u32 v{VB}, v{LANE}, 4, s44")
        wo_voffset(e, VA, LANE, T0)
        e.wait(lgkm=0)
        e(f"s_mul_i32 s44, s34, {32 * 36864}")
        e(f"s_add_u32 s{CO}, s36, s44")
        e(f"s_addc_u32 s{CO + 1}, s37, 0")
        e(f"s_mov_b32 s{CO + 2}, {32 * 36864}")
        e(f"s_mov_b32 s{CO + 3}, 0x20000")
        wo_dbg_srds(e, CW, CG)
        e("s_mul_i32 s45, s34, 294912")
        e("s_add_u32 s44, s44, s45")
        e(f"s_add_u32 s{CD}, s30, s44")
        e(f"s_addc_u32 s{CD + 1}, s31, 0")
        e(f"s_sub_u32 s{CD + 2}, {16 * 294912}, s44")
        e(f"s_mov_b32 s{CD + 3}, 0x20000")

    def dma_a(pos):
        return wo_dma(pos, f"s_add_u32 m0, s41, {AR1 + 16384 * (pos & 1)}", VA, CW)

    def b_prep(pos):
        return head_of(pos, 54) + ["s_mul_i32 s54, s54, 36864", "s_add_u32 s55, s54, 4096", f"s_add_u32 s{(47, 51)[pos & 1]}, s54, 8192"]

    def b_load(pos, mt):
        return f"buffer_load_dwordx4 {vr(FB(pos & 1, mt))}, v{VB}, {sr(CO)}, s{(54, 55, (47, 51)[pos & 1])[mt // 4]} offen offset:{1024 * (mt % 4)} {of}"

    def a_reads(pos):
        return [f"ds_read_b64_tr_b16 {vr(FA(pos & 1, t) + 2 * ee, 2)}, v{AA(t)} offset:{16384 * (pos & 1) + 2048 * ee}"
                for t in range(4) for ee in range(2)]

    def gflag_issue(rnd):
        e(f"buffer_load_dword v{PG}, off, {sr(CG)}, s40 offset:{64 * rnd} sc1")

    def gflag_check(rnd):
        nm = f"G1_gf{rnd}"
        e(f"v_cmp_gt_u32 vcc, 16, v{PG}")
        e("s_nop 1")
        e(f"s_cbranch_vccnz {nm}")
        snap = e.snapshot()
        e.label(nm + "_ret")

        def slow():
            e.restore(snap)
            e.label(nm)
            e(f"s_mov_b32 s59, {1 << 16}")
            e.label(nm + "_l")
            e("s_sleep 32")
            gflag_issue(rnd)
            e.wait(vm=0)
            e(f"v_cmp_gt_u32 vcc, 16, v{PG}")
            e("s_nop 1")
            e(f"s_cbranch_vccz {nm}_ret")
            e("s_sub_u32 s59, s59, 1")
            e("s_cmp_lg_u32 s59, 0")
            e(f"s_cbranch_scc1 {nm}_l")
            e(f"s_branch {nm}_ret")
        late.append(slow)

    assert all(k >= 10 or n < 19 for k, (n, c) in enumerate(regp))
    e(f"s_setprio {OPT['g1prio']}")
    blocking_poll4(e, "G1_gb0", FQ, F_GB, PL, 1)
    load_q8(QIA)
    qk8_reads(0)
    e(f"ds_read_b32 v{PL}, v{FQ} offset:{F_FREE}")
    qk8_math(0)
    for n in range(5, 33):
        if n != 31:
            fast_free(f"G1_fb{n}", 33 + (0 if n == 5 else n - 6))
            fill(n)
        j = (n - 5) // 2 if n & 1 else (n - 4) // 2
        skip8 = "not8" in OPT["abl"] and j % 8 not in (0, 7)
        nr = 0 if skip8 else (pv8_reads(j) if n & 1 else qk8_reads(j))
        e(f"ds_read_b32 v{PL}, v{FQ} offset:{F_FREE}")
        if n != 31:
            e.wait(lgkm=nr + 1)
            publish(33 + n)
        if n == int(OPT["pwround"]) and OPT["prewarm"]:
            e("s_load_dwordx2 s[54:55], s[0:1], 32")
            e("s_lshl_b32 s44, s2, 2")
            e(f"s_add_u32 s44, s44, s{W}")
            e("s_lshl_b32 s44, s44, 13")
            e(f"v_lshl_add_u32 v{T1}, v{LANE}, 7, s44")
            e.wait(lgkm=0)
            e(f"global_load_dword v{DUMMY}, v{T1}, s[54:55]")
        if skip8:
            pass
        elif n & 1:
            pv8_math(j)
        else:
            qk8_math(j)
        if n == 19:
            merge1(0)
            load_q8(QIB)
            e(f"ds_read_b32 v{PL}, v{FQ} offset:{F_FREE}")
        if n == 21:
            merge2(0)
        if n == int(OPT["dn"]):
            k = e.vm_needed_for_tags(lambda t: t[0] == "st")
            if k is not None:
                e.wait(vm=k)
            e(f"v_mov_b32 v{TM2}, 1")
            e(f"ds_write_b32 v{FW}, v{TM2} offset:{F_DONE1}")
        if n == int(OPT["sn"]):
            e(f"s_cmp_lg_u32 s{W}, 0")
            e("s_cbranch_scc1 G1_nosig")
            st0 = e.snapshot()
            signal(e, "G1_sig", FQ, PL + 2, 0)
            st1 = e.snapshot()
            st1.lgkm = st0.lgkm
            e.merge([st0, st1])
            e.label("G1_nosig")
    if OPT["trace"]:
        e("s_lshl_b32 s58, s2, 2")
        e(f"s_add_u32 s58, s58, s{W}")
        e("s_lshl_b32 s58, s58, 9")
        e(f"s_add_u32 s58, s58, {STAMP_OFF + (2 << 20)}")
        e(f"v_lshl_add_u32 v{T0}, v{LANE}, 2, s58")
        e(f"global_store_dword v{T0}, v254, s[36:37]")
        e(f"global_store_dword v{T0}, v255, s[36:37] offset:256")
        e("s_nop 4")
        sys.stderr.write("trace points: %d\n" % trace_n[0])
    c_setup()
    gflag_issue(0)
    emit(dma_a(0) + dma_a(1))
    pv8_reads(14)
    pv8_math(14)
    qk8_reads(15)
    qk8_math(15)
    gflag_check(0)
    emit(b_prep(0) + [b_load(0, mt) for mt in range(9)])
    pv8_reads(15)
    pv8_math(15)
    merge1(1)
    emit(b_prep(1) + [b_load(1, mt) for mt in range(9)])
    merge2(1)
    blocking_poll4(e, "G1_l0", FQ, F_GB, PL, 2)
    stamp(e, 3)
    e(f"s_add_u32 s44, s41, {AR1}")
    wo_read_addr(e, AA, LANE, T0, "s44")
    e(f"v_mov_b32 v{PH}, v{FW}")
    e("s_xor_b32 s44, s2, 1")
    e(f"s_mul_i32 s44, s44, 36864")
    e(f"s_add_u32 s44, s44, {MBOX}")
    e(f"s_add_u32 s{SO}, s36, s44")
    e(f"s_addc_u32 s{SO + 1}, s37, 0")
    e(f"s_mov_b32 s{SO + 2}, 36864")
    e(f"s_mov_b32 s{SO + 3}, 0x20000")

    def w_landed(pos):
        k = e.vm_needed_for_tags(lambda t: t[0] == "w" and t[1] <= pos)
        if k is not None:
            e.wait(vm=k)

    w_landed(0)
    emit(a_reads(0))
    e(f"s_setprio {OPT['oprio'].split(',')[0]}")
    LAST = NPOS - 1
    held = []
    RA = 4 if OPT["aspread"] else 2

    def partner_loads():
        e.raw("    s_mov_b32 s55, 4096\n    s_mov_b32 s51, 1")
        for k in range(5):
            e.raw(f"    buffer_load_dwordx4 {vr(FB((LAST & 1) ^ 1, k))}, v{VB}, {sr(SO)}, {'s55' if k == 4 else 0} offen offset:{1024 * (k % 4)} sc1")
    for pos in range(NPOS):
        p = pos & 1
        ot = [int(x) for x in OPT["otrace"].split(",") if x]
        if pos in ot:
            stamp(e, 1 + ot.index(pos))
        if pos < 19 or pos == LAST:
            pt(e, pos == 0)
        e.wait(lgkm=2 if 1 <= pos <= NM1 else 0)
        dm, cur = [], []
        for it in (dma_a(pos + 2) if pos + 2 < NPOS else []):
            cur.append(it)
            if isinstance(it, tuple):
                dm.append(cur)
                cur = []
        if not OPT["aspread"] or pos == 5:
            for d in dm:
                emit(d)
            dm = []
        if pos == 1:
            k = e.vm_needed_for_tags(lambda t: t[0] == "st")
            if k is not None:
                e.wait(vm=k)
            e(f"v_mov_b32 v{PG}, 2")
            e(f"ds_write_b32 v{PH}, v{PG} offset:{F_DONE1}")
        if pos == 2:
            e(f"s_cmp_lg_u32 s{W}, 0")
            e("s_cbranch_scc1 G1_nosig2")
            st0 = e.snapshot()
            t0_, t1_ = FA(p ^ 1, 0), FA(p ^ 1, 0) + 2
            e(f"v_mbcnt_lo_u32_b32 v{t0_}, -1, 0")
            e(f"v_and_b32 v{t0_}, 3, v{t0_}")
            e(f"v_lshlrev_b32 v{t0_}, 2, v{t0_}")
            e(f"v_add_u32 v{t0_}, {FLG}, v{t0_}")
            signal(e, "G1_sig2", t0_, t1_, 1)
            e("s_nop 4")
            st1 = e.snapshot()
            st1.lgkm = st0.lgkm
            e.merge([st0, st1])
            e.label("G1_nosig2")
        t0_ = FA(p ^ 1, 0)

        def bflag_addr():
            e(f"v_mbcnt_lo_u32_b32 v{t0_}, -1, 0")
            e(f"v_and_b32 v{t0_}, 15, v{t0_}")
            e("s_lshl_b32 s44, s34, 12")
            e(f"s_add_u32 s44, s44, {FLAGS}")
            e(f"v_lshl_add_u32 v{t0_ + 1}, v{t0_}, 7, s44")
        if pos == 5:
            bflag_addr()
            e(f"s_lshl_b32 s44, s{W}, 6")
            e(f"s_add_u32 m0, s44, {PAREA}")
            e("s_mov_b64 exec, 0xffff")
            e(f"global_load_lds_dword v{t0_ + 1}, s[36:37] sc1", ("pf", 0))
            e("s_mov_b64 exec, -1")
        if pos == 6:
            bflag_addr()
            e(f"s_lshl_b32 s44, s{W}, 6")
            e(f"s_add_u32 s44, s44, {PAREA}")
            e(f"v_lshl_add_u32 v{t0_}, v{t0_}, 2, s44")
            k = e.vm_needed_for_tags(lambda t: t[0] == "pf")
            if k is not None:
                e.wait(vm=k)
            e(f"ds_read_b32 v{PG}, v{t0_}")
            e(f"v_cmp_eq_u32 vcc, 0, v{PG}")
            e("s_nop 1")
            e("s_cbranch_vccnz G1_gwb")
            snap = e.snapshot()
            e.label("G1_gwb_ret")

            def slowb(snap=snap, t0_=t0_):
                e.restore(snap)
                e.label("G1_gwb")
                flag_wait(e, "G1_gwb_p", t0_ + 1, PG, 8)
                e("s_branch G1_gwb_ret")
            late.append(slowb)
        if pos + 2 < NPOS:
            emit(b_prep(pos + 2))
        if pos == LAST:
            e.wait(vm=0)
            e(f"ds_read_b32 v{PG}, v{PH} offset:{F_XRDY}")
            e("s_mov_b32 s51, 0")
            e(f"v_cmp_eq_u32 vcc, 0, v{PG}")
            e("s_nop 1")
            e("s_cbranch_vccnz G1_xlate")
            partner_loads()
            e.label("G1_xlate")
            e(f"v_mbcnt_lo_u32_b32 v{PG}, -1, 0")
            e(f"v_mbcnt_hi_u32_b32 v{PG}, -1, v{PG}")
            e(f"v_and_b32 v{t0_}, 3, v{PG}")
            e(f"v_lshlrev_b32 v{t0_}, 2, v{t0_}")
            e(f"v_add_u32 v{t0_}, {FLG}, v{t0_}")
            blocking_poll4(e, "G1_scr", t0_, F_GB, t0_ + 1, 5)
            red_write_addr(e, AA, PG)
        rd = a_reads(pos + 1) if pos < LAST else []
        fwd = pos < NM1
        chk = word_check(e, late, f"G1_fr{pos + 1}", PH, F_FREEB, PG, pos) if 2 <= pos + 1 < NM1 else []
        for mt in range(9):
            m = [f"{MF} {vr(ACC(mt, t))}, {vr(FA(p, t))}, {vr(FB(p, mt))}, {'0' if pos == 0 else vr(ACC(mt, t))}" for t in range(4)]
            if mt == RA and rd:
                w_landed(pos + 1)
            fl = [f"ds_write_b128 v{VB}, {vr(FB(p, mt))} offset:{36864 * p + 1024 * mt}"] if fwd else []
            if RA <= mt < RA + 4:
                fl += rd[2 * (mt - RA): 2 * (mt - RA + 1)]
            if mt == 6:
                fl += chk[:1]
            if mt == 7 and chk:
                fl += [chk[1]]
            if mt == 8 and fwd:
                fl = [f"v_mov_b32 v{PG}, {pos + 1}"] + fl + [f"ds_write_b32 v{PH}, v{PG} offset:{F_FULLB}"] + chk[2:]
            if pos == LAST and mt >= 2:
                fl = [f"ds_write_b128 v{AA(c)}, {vr(ACC(mt - 2, c))} offset:{1024 * (mt - 2)}" for c in range(1, 4)]
            if dm and mt % 2 == 0:
                fl = fl + [lambda d=dm.pop(0): emit(d)]
            emit(interleave(m, fl))
            if held:
                e(held.pop())
            if pos + 2 < NPOS:
                if fwd:
                    held.append(b_load(pos + 2, mt))
                else:
                    e(b_load(pos + 2, mt))
    stamp(e, 4)
    for mt in (7, 8):
        for c in range(1, 4):
            e(f"ds_write_b128 v{AA(c)}, {vr(ACC(mt, c))} offset:{1024 * mt}")
    LN = PG
    XP = lambda mt: FB((LAST & 1) ^ 1, mt // 2) + 2 * (mt & 1)
    X0, X1, X2, X3 = 216, 217, 218, 219
    OB = 220
    e(f"v_lshrrev_b32 v{X0}, 5, v{LN}")
    e(f"s_lshl_b32 s44, s{W}, 1")
    e(f"v_add_u32 v{X0}, s44, v{X0}")
    e(f"v_and_b32 v{X1}, 7, v{LN}")
    e(f"v_xor_b32 v{X0}, v{X0}, v{X1}")
    e(f"v_lshlrev_b32 v{X0}, 4, v{X0}")
    e(f"v_bfe_u32 v{X1}, v{LN}, 4, 1")
    e(f"v_lshl_add_u32 v{X0}, v{X1}, 3, v{X0}")
    e(f"v_and_b32 v{X1}, 15, v{LN}")
    e(f"v_lshl_add_u32 v{X0}, v{X1}, 7, v{X0}")
    e(f"v_add_u32 v{X0}, {IMG}, v{X0}")
    e(f"v_lshrrev_b32 v{X1}, 3, v{LN}")
    e(f"v_and_b32 v{X2}, 7, v{LN}")
    e(f"v_xor_b32 v{X2}, v{X2}, v{X1}")
    e(f"v_lshlrev_b32 v{X2}, 4, v{X2}")
    e(f"v_lshl_add_u32 v{X2}, v{X1}, 11, v{X2}")
    e(f"s_add_u32 s44, s41, {IMG}")
    e(f"v_lshl_add_u32 v{X3}, v{LN}, 4, s44")
    e(f"s_lshl_b32 s45, s{W}, 10")
    e(f"s_add_u32 s45, s45, {IMG}")
    e(f"v_lshl_add_u32 v{X1}, v{LN}, 4, s45")
    e.wait(lgkm=0)
    e("s_barrier")
    e("s_cmp_lg_u32 s51, 0")
    e("s_cbranch_scc1 G1_xdone")
    partner_loads()
    e.label("G1_xdone")
    for mt in range(9):
        for c in range(1, 4):
            e(f"ds_read_b128 {vr(ACC(mt, c))}, v{AA(0)} offset:{9216 * (c - 1) + 1024 * mt}")
    for mt in range(9):
        a = ACC(mt, 0)
        for r in range(4):
            e(f"v_add_f32 v{a + r}, v{a + r}, v{ACC(mt, 1) + r}")
            e(f"v_add_f32 v{ACC(mt, 2) + r}, v{ACC(mt, 2) + r}, v{ACC(mt, 3) + r}")
        for r in range(4):
            e(f"v_add_f32 v{a + r}, v{a + r}, v{ACC(mt, 2) + r}")
    e.wait(vm=0)
    for mt in range(9):
        a = ACC(mt, 0)
        t = ACC(mt, 1)
        for h in range(2):
            e(f"v_lshlrev_b32 v{t + 2 * h}, 16, v{XP(mt) + h}")
            e(f"v_and_b32 v{t + 2 * h + 1}, 0xffff0000, v{XP(mt) + h}")
        for r in range(4):
            e(f"v_add_f32 v{a + r}, v{a + r}, v{t + r}")
        e(f"v_cvt_pk_bf16_f32 v{a}, v{a}, v{a + 1}")
        e(f"v_cvt_pk_bf16_f32 v{a + 1}, v{a + 2}, v{a + 3}")
        e(f"ds_write_b64 v{X0}, {vr(a, 2)} offset:{2048 * mt}")
    e.wait(lgkm=0)
    e("s_barrier")
    for i in range(4):
        e(f"ds_read_b128 {vr(OB + 4 * i)}, v{X3} offset:{1024 * i}")
    e(f"ds_read_b128 {vr(OB + 16)}, v{X1} offset:16384")
    e(f"s_lshl_b32 s44, s{W}, 16")
    outf = OPT["outflag"]
    for i in range(4):
        e(f"buffer_store_dwordx4 {vr(OB + 4 * i)}, v{X2}, {sr(CD)}, s44 offen {outf}")
        e(f"s_add_u32 s44, s44, 16384")
    e(f"s_cmp_ge_u32 s{W}, 2")
    e("s_cbranch_scc1 G1_done")
    e(f"s_lshl_b32 s44, s{W}, 14")
    e(f"s_add_u32 s44, s44, {128 * 2048}")
    e(f"buffer_store_dwordx4 {vr(OB + 16)}, v{X2}, {sr(CD)}, s44 offen {outf}")
    e.label("G1_done")
    pt(e)
    pt_store(e, 1)
    if OPT["stamp"] or OPT["dbg"]:
        e.wait(vm=0, lgkm=0)
    stamp(e, 5)
    stamp_store(e, 6, 36, STAMP_OFF, ["s_lshl_b32 s58, s2, 2", f"s_add_u32 s58, s58, s{W}", "s_add_u32 s58, s58, 1024"])
    e("s_endpgm")
    for f in late:
        f()
    e.restore(joined(e, slow_states))
    e.st.lgkm = []
    e.label("G1_slow")
    lane_reduce(e, "v_max_f32", TM, TM2)
    e(f"v_max_f32 v{TM}, 0, v{TM}")
    for r in range(4):
        e(f"v_sub_f32 v{NEGM + r}, v{NEGM + r}, v{TM}")
        e(f"v_sub_f32 v{S8 + r}, v{S8 + r}, v{TM}")
    e(f"v_exp_f32 v{TM}, -v{TM}")
    e(f"v_mul_f32 v{L8}, v{L8}, v{TM}")
    for r in range(32):
        e(f"v_mul_f32 v{O8(0) + r}, v{O8(0) + r}, v{TM}")
    e("s_nop 1")
    e("s_setpc_b64 s[38:39]")


def engine(e):
    stamp(e, 0)
    e("s_load_dwordx4 s[28:31], s[0:1], 0")
    e("s_load_dwordx4 s[32:35], s[0:1], 16")
    e("s_load_dwordx2 s[36:37], s[0:1], 56")
    e("v_lshrrev_b32 v1, 6, v0")
    e("s_and_b32 s25, s2, 1")
    e("v_readfirstlane_b32 s3, v1")
    e("s_lshl_b32 s25, s25, 3")
    e("s_bfe_u32 s26, s2, 0x30003")
    e("s_add_u32 s25, s25, s26")
    e("s_bfe_u32 s26, s2, 0x20001")
    e("s_lshl_b32 s26, s26, 2")
    e("s_lshr_b32 s27, s2, 6")
    e("s_add_u32 s26, s26, s27")
    e("s_lshl_b32 s26, s26, 1")
    e("s_lshl_b32 s27, s25, 5")
    e("s_add_u32 s27, s27, s26")
    e(f"s_and_b32 s{W}, s3, 3")
    e("s_cmp_lt_u32 s3, 4")
    e("s_cbranch_scc1 G0_start")
    st = e.snapshot()
    loader_group(e)
    e.restore(st)
    e.label("G0_start")
    compute_group(e)


def kd(name):
    return f""".section .rodata,"a"
.p2align 6
.amdhsa_kernel {name}
  .amdhsa_next_free_vgpr 256
  .amdhsa_next_free_sgpr 102
  .amdhsa_accum_offset 256
  .amdhsa_group_segment_fixed_size 0
  .amdhsa_kernarg_size 64
  .amdhsa_user_sgpr_count 2
  .amdhsa_user_sgpr_kernarg_segment_ptr 1
  .amdhsa_system_sgpr_workgroup_id_x 1
.end_amdhsa_kernel
"""


def main():
    out = HEADER
    out += "; @launch grid=(256,1,1) block=(512,1,1) lds=163840\n"
    out += '.amdgcn_target "amdgcn-amd-amdhsa--gfx950"\n.text\n'
    e = Emitter()
    e.raw(f".globl {KNAME}\n.p2align 8\n.type {KNAME},@function\n{KNAME}:")
    e("s_cmp_lt_u32 s2, 256")
    e("s_cbranch_scc1 P_go")
    e("s_endpgm")
    e.label("P_go")
    engine(e)
    e.raw(".p2align 8\n.type cnt_table,@object\ncnt_table:")
    for k in range(96):
        e.raw(f".long {k}")
    e.raw(".size cnt_table, 384")
    e.label("P_end")
    e.raw(f".set CODE_KB_P, (P_end - {KNAME}) / 1024 - 1")
    sys.stderr.write("engine counts: %s\n" % e.count)
    hold = {}
    import re as _re
    for ln in e.lines:
        mm = _re.search(r"; f(\d+)$", ln)
        if not mm:
            continue
        ins = Inst(ln.strip())
        if ins.cls == "ldsr":
            for r in ins.defs:
                hold[r] = mm.group(1)
        else:
            for r in regs_of(ins.ops[1]):
                assert hold.get(r) == mm.group(1), ln
    out += _re.sub(r" ; f\d+\n", "\n", e.text())
    out += kd(KNAME)
    open(sys.argv[1], "w").write(out)


main()
```
